```python
import torch

def _softmax(x, axis=-1):
    return torch.softmax(x, dim=axis)
def _gelu(x):
    return torch.nn.functional.gelu(x, approximate="tanh")
def _silu(x):
    return torch.nn.functional.silu(x)
def _sigmoid(x):
    return torch.sigmoid(x)
def _layernorm(x, axis=-1, eps=1e-5):
    m = x.mean(dim=axis, keepdim=True)
    v = x.var(dim=axis, keepdim=True, unbiased=False)
    return (x - m) / torch.sqrt(v + eps)
def _scatter_add(tgt, idx, src, axis=0):
    return tgt.clone().index_add_(axis, idx, src)
def _segment_sum(src, seg, n):
    out = torch.zeros((n,) + src.shape[1:], dtype=src.dtype)
    return out.index_add_(0, seg, src)
def _pad(x, pw):
    flat = tuple(v for pair in reversed(pw) for v in pair)
    return torch.nn.functional.pad(x, flat)

kernel_name = 'sequential_preLN__grouped_kv_mqa__dense_activation_mish__prompt'

def setup_inputs():

    _w = (lambda a: (lambda t: t.to(torch.bfloat16) if t.is_floating_point() else t)(torch.as_tensor(a)))
    def _A_setup():
        B, S, D, H = 1, 2048, 512, 32
        Dh = D // H
        return {
            "x": _w((lambda *s: torch.randn(*s, dtype=torch.bfloat16) * 0.05)(B, S, D)),
            "wq": _w((lambda *s: torch.randn(*s, dtype=torch.bfloat16) * 0.05)(D, H * Dh)),
            "wk": _w((lambda *s: torch.randn(*s, dtype=torch.bfloat16) * 0.05)(D, Dh)),
            "wv": _w((lambda *s: torch.randn(*s, dtype=torch.bfloat16) * 0.05)(D, Dh)),
            "wo": _w((lambda *s: torch.randn(*s, dtype=torch.bfloat16) * 0.05)(H * Dh, D)),
        }
    _A_in = _A_setup()

    def _B_setup():
        B, S, D, F = 1, 2048, 512, 1792
        return {
            "x": _w((lambda *s: torch.randn(*s, dtype=torch.bfloat16) * 0.05)(B, S, D)),
            "w1": _w((lambda *s: torch.randn(*s, dtype=torch.bfloat16) * 0.8)(D, F) * (D ** -0.5)),
            "b1": _w((lambda *s: torch.randn(*s, dtype=torch.bfloat16) * 0.4)(F)),
            "w2": _w((lambda *s: torch.randn(*s, dtype=torch.bfloat16) * 0.2)(F, D) * (F ** -0.5)),
        }
    _B_in = _B_setup()

    return {
        "A_x": _A_in["x"],
        "A_wq": _A_in["wq"],
        "A_wk": _A_in["wk"],
        "A_wv": _A_in["wv"],
        "A_wo": _A_in["wo"],
        "B_x": _B_in["x"],
        "B_w1": _B_in["w1"],
        "B_b1": _B_in["b1"],
        "B_w2": _B_in["w2"],
    }

def reference(A_x, A_wq, A_wk, A_wv, A_wo, B_x, B_w1, B_b1, B_w2):
    def _A_ref(x, wq, wk, wv, wo):
        B, S, D = x.shape
        H = 32
        Dh = D // H
        q = (lambda x, *d: x.permute(*d))((x @ wq).reshape(B, S, H, Dh), 0, 2, 1, 3)
        k = x @ wk
        v = x @ wv
        scores = torch.einsum("bhqd,bkd->bhqk", q, k) * (Dh ** -0.5)
        p = _softmax(scores, axis=-1)
        o = torch.einsum("bhqk,bkd->bhqd", p, v)
        return (lambda x, *d: x.permute(*d))(o, 0, 2, 1, 3).reshape(B, S, H * Dh) @ wo

    def _B_ref(x, w1, b1, w2):
        h = torch.einsum("bsd,df->bsf", x, w1) + b1
        sp = torch.log1p(torch.exp(-torch.abs(h))) + torch.where(h > 0, h, torch.zeros_like(h))
        act = h * torch.tanh(sp)
        return torch.einsum("bsf,fd->bsd", act, w2)

    x = A_x
    h = x + _A_ref(_layernorm(x, axis=-1), A_wq, A_wk, A_wv, A_wo)
    h2 = h + _B_ref(_layernorm(h, axis=-1), B_w1, B_b1, B_w2)
    return h2
```

```python
import re

REG_RE = re.compile(r'^(-|\|)?([vsa])(\d+)\|?$')
RANGE_RE = re.compile(r'^(-|\|)?([vsa])\[(\d+):(\d+)\]\|?$')

def parse_reg(tok):
    tok = tok.strip()
    m = REG_RE.match(tok)
    if m:
        return [(m.group(2), int(m.group(3)))]
    m = RANGE_RE.match(tok)
    if m:
        return [(m.group(2), i) for i in range(int(m.group(3)), int(m.group(4)) + 1)]
    if tok == 'vcc':
        return [('s', 'vcc_lo'), ('s', 'vcc_hi')]
    if tok in ('vcc_lo', 'vcc_hi', 'm0', 'exec_lo', 'exec_hi'):
        return [('s', tok)]
    if tok == 'exec':
        return [('s', 'exec_lo'), ('s', 'exec_hi')]
    return []

def split_ops(s):
    out, depth, cur = [], 0, ''
    for ch in s:
        if ch == '[': depth += 1
        if ch == ']': depth -= 1
        if ch == ',' and depth == 0:
            out.append(cur.strip()); cur = ''
        else:
            cur += ch
    if cur.strip(): out.append(cur.strip())
    return out

TRANS = ('v_exp_', 'v_log_', 'v_rcp_', 'v_rsq_', 'v_sqrt_', 'v_sin_', 'v_cos_')

class Ins:
    __slots__ = ('text', 'op', 'kind', 'wr', 'rd', 'passes', 'srcC', 'srcAB', 'dpp', 'trans', 'dot',
                 'states', 'wide_store', 'lds_dma', 'opsel', 'sgpr_rd', 'permlane', 'readlane', 'cndmask')

def analyze(text):
    t = text.split(';')[0].strip()
    ins = Ins()
    ins.text = text
    parts = t.split(None, 1)
    op = parts[0]
    rest = parts[1] if len(parts) > 1 else ''
    ins.op = op
    ins.wr = set(); ins.rd = set(); ins.passes = 0; ins.srcC = set(); ins.srcAB = set()
    ins.dpp = False; ins.trans = False; ins.dot = False; ins.states = 1; ins.wide_store = False
    ins.lds_dma = False; ins.opsel = False; ins.permlane = False; ins.readlane = False
    ops = split_ops(rest)
    mods = ''
    if ops:
        last = ops[-1].split()
        if len(last) > 1:
            ops[-1] = last[0]
            mods = ' '.join(last[1:])
    regs = [parse_reg(o) for o in ops]
    if op == 's_nop':
        ins.kind = 'nop'; ins.states = int(ops[0], 0) + 1
    elif op.startswith('v_mfma') or op.startswith('v_smfmac'):
        ins.kind = 'mfma'
        ins.passes = 8 if '32x32' in op else 4
        ins.wr = set(regs[0]); ins.srcAB = set(regs[1]) | set(regs[2]); ins.srcC = set(regs[3])
        ins.rd = ins.srcAB | ins.srcC
    elif op.startswith('v_'):
        ins.kind = 'valu'
        ins.trans = op.startswith(TRANS)
        ins.dot = op.startswith('v_dot')
        ins.dpp = ('quad_perm' in mods or 'row_' in mods or 'wave_' in mods or op.endswith('_dpp'))
        ins.opsel = ('dst_sel' in mods) or ('op_sel' in mods and not op.startswith('v_pk'))
        if op.startswith('v_permlane') or op.startswith('v_swap'):
            ins.permlane = op.startswith('v_permlane')
            ins.wr = set(regs[0]) | set(regs[1]); ins.rd = set(ins.wr)
        elif op.startswith('v_cmp'):
            ins.wr = set(regs[0])
            for r in regs[1:]: ins.rd |= set(r)
            if op.startswith('v_cmpx'): ins.wr |= {('s', 'exec_lo'), ('s', 'exec_hi')}
        elif op.startswith('v_readfirstlane') or op.startswith('v_readlane'):
            ins.readlane = True
            ins.wr = set(regs[0])
            for r in regs[1:]: ins.rd |= set(r)
        else:
            ins.wr = set(regs[0])
            for r in regs[1:]: ins.rd |= set(r)
            if op.startswith(('v_fmac', 'v_mac', 'v_dot2c', 'v_dot4c', 'v_pk_fmac', 'v_writelane')) or ins.dpp or ('dst_unused:UNUSED_PRESERVE' in mods):
                ins.rd |= set(regs[0])
            if op.startswith('v_cndmask') and len(ops) == 3:
                ins.rd |= set(parse_reg('vcc'))
            if op.startswith(('v_add_co', 'v_sub_co', 'v_addc_co', 'v_subb_co')):
                ins.wr |= set(regs[1])
    elif op.startswith(('buffer_', 'global_', 'flat_')):
        ins.kind = 'vmem'
        is_lds = (' lds' in (' ' + mods)) or op.startswith('global_load_lds')
        ins.lds_dma = is_lds
        if 'load' in op and not is_lds:
            ins.wr = set(regs[0])
            for r in regs[1:]: ins.rd |= set(r)
        elif is_lds:
            for r in regs: ins.rd |= set(r)
            ins.rd.add(('s', 'm0'))
        elif 'atomic' in op:
            for r in regs: ins.rd |= set(r)
            if 'sc0' in mods.split(): ins.wr = set(regs[0])
        else:
            for r in regs: ins.rd |= set(r)
            if 'x4' in op or 'x3' in op:
                ins.wide_store = True
                ins.srcC = set(regs[0]) if op.startswith('buffer_') else set(regs[1])
    elif op.startswith('ds_'):
        ins.kind = 'ds'
        if op.startswith(('ds_read', 'ds_bpermute', 'ds_permute', 'ds_swizzle')) or '_rtn' in op:
            ins.wr = set(regs[0])
            for r in regs[1:]: ins.rd |= set(r)
        else:
            for r in regs: ins.rd |= set(r)
    elif op.startswith('s_'):
        ins.kind = 'salu'
        if op.startswith(('s_cmp', 's_cbranch', 's_branch', 's_waitcnt', 's_barrier', 's_endpgm', 's_setprio', 's_sleep', 's_bitcmp')):
            for r in regs: ins.rd |= set(r)
        else:
            if regs: ins.wr = set(regs[0])
            for r in regs[1:]: ins.rd |= set(r)
            if 'saveexec' in op:
                ins.wr |= {('s', 'exec_lo'), ('s', 'exec_hi')}
    else:
        ins.kind = 'other'
    return ins

def isv(r): return r[0] in ('v', 'a')

def required(prev, cur):
    need = 0
    pw = prev.wr
    if prev.kind == 'valu':
        vw = {r for r in pw if isv(r)}
        sw = {r for r in pw if r[0] == 's'}
        if cur.kind == 'mfma' and (vw & cur.rd): need = max(need, 2)
        if cur.kind == 'valu':
            if cur.dpp and (vw & cur.rd): need = max(need, 2)
            if cur.permlane and (vw & cur.rd): need = max(need, 2)
            if cur.readlane and (vw & cur.rd): need = max(need, 1)
            if prev.trans and not cur.trans and (vw & cur.rd): need = max(need, 1)
            if prev.trans and cur.trans and (vw & cur.rd): need = max(need, 1)
            if prev.opsel and (vw & (cur.rd | cur.wr)): need = max(need, 1)
            if sw & cur.rd:
                need = max(need, 4 if cur.readlane or cur.op.startswith('v_writelane') else 2)
            if prev.dot and (vw & (cur.rd | cur.wr)):
                if cur.dot and cur.op == prev.op:
                    toks = split_ops(cur.text.split(';')[0].strip().split(None, 1)[1])
                    ab = set()
                    if cur.op.startswith('v_dot2c'):
                        for o in toks[1:3]: ab |= set(parse_reg(o.split()[0]))
                    else:
                        for o in toks[1:3]: ab |= set(parse_reg(o.split()[0]))
                    if vw & ab: need = max(need, 3)
                else:
                    need = max(need, 3)
            if ('s', 'exec_lo') in sw and cur.dpp: need = max(need, 5)
        if cur.kind == 'mfma' and prev.dot and (vw & cur.rd): need = max(need, 3)
        if cur.kind == 'mfma' and ('s', 'exec_lo') in sw: need = max(need, 4)
        if cur.kind in ('vmem',) and (sw & cur.rd): need = max(need, 5)
        if cur.kind in ('vmem', 'ds') and prev.dot and (vw & cur.rd): need = max(need, 3)
        if cur.kind in ('vmem', 'ds') and prev.trans and (vw & cur.rd): need = max(need, 1)
        if cur.kind == 'salu' and (sw & cur.rd): need = max(need, 1)
    elif prev.kind == 'mfma':
        p = prev.passes
        if cur.kind == 'mfma':
            if pw & cur.srcC:
                if pw == cur.srcC and cur.passes == p: pass
                else: need = max(need, {4: 6, 8: 10}[p])
            if pw & cur.srcAB: need = max(need, {4: 8, 8: 12}[p])
            if (pw & cur.wr) and not (pw == cur.srcC and cur.passes == p) and not (pw & cur.srcC):
                need = max(need, {4: 6, 8: 10}[p])
        elif cur.kind in ('valu', 'vmem', 'ds'):
            if pw & (cur.rd | cur.wr): need = max(need, {4: 8, 8: 12}[p])
            if cur.kind == 'valu' and (prev.srcC & cur.wr): need = max(need, {4: 3, 8: 7}[p])
    elif prev.kind == 'salu':
        if ('s', 'm0') in pw and cur.kind == 'vmem' and cur.lds_dma: need = max(need, 1)
    elif prev.kind == 'vmem':
        if prev.wide_store and (prev.srcC & cur.wr):
            need = max(need, 2 if cur.kind == 'valu' else 1)
    return need

class Asm:
    def __init__(self):
        self.lines = []
        self.hist = []
        self.nins = 0
        self.nops = 0
    def raw(self, text):
        self.lines.append(text)
    def comment(self, text):
        self.lines.append('    ; ' + text)
    def label(self, name):
        self.lines.append(name + ':')
    def fence(self, n=12):
        self('s_nop %d' % (min(n, 16) - 1))
    def __call__(self, text):
        ins = analyze(text)
        dist = 0
        need_extra = 0
        for prev in reversed(self.hist):
            req = required(prev, ins)
            if req > dist:
                need_extra = max(need_extra, req - dist)
            dist += prev.states
            if dist >= 20: break
        while need_extra > 0:
            k = min(need_extra, 16)
            n = analyze('s_nop %d' % (k - 1))
            self.hist.append(n); self.lines.append('    ' + n.text); self.nops += 1
            need_extra -= k
        self.hist.append(ins)
        if len(self.hist) > 64: self.hist = self.hist[-40:]
        self.lines.append('    ' + text)
        self.nins += 1
    def text(self):
        return '\n'.join(self.lines) + '\n'

def check_wrap(body_lines):
    a = Asm()
    for t in body_lines: a(t)
    n0 = a.nops
    for t in body_lines[:24]: a(t)
    return a.nops - n0
```

```python
import sys, os
sys.path.insert(0, os.path.dirname(__file__))
from asmlib import Asm

NAME = 'sequential_preLN__grouped_kv_mqa__dense_activation_mish__prompt'

WS_KV = 0x0
WS_KMAX = 0x20000
WS_FLAGS = 0x30000
WS_Q = 0x40000
WS_WO = 0x240000
WS_W1 = 0x2C0000
WS_W2 = 0x480000
WS_O = 0x640000
WS_H = 0x840000
WS_P = 0xB00000
WS_SIZE = 0x1B00000

S_X, S_WQ, S_WKV, S_WO, S_W1, S_B1, S_W2, S_OUT, S_WS = 4, 8, 12, 16, 20, 24, 28, 32, 36
S_J, S_RB, S_W = 40, 41, 42
LOG2E = 1.4426950408889634


def f2u(x):
    import struct
    return struct.unpack('<I', struct.pack('<f', x))[0]


def srd(r):
    return 's[%d:%d]' % (r, r + 3)


def vr(r, n=1):
    return 'v%d' % r if n == 1 else 'v[%d:%d]' % (r, r + n - 1)


def mk_srd(a, d, p, size):
    a('s_mov_b32 s%d, s%d' % (d, p))
    a('s_mov_b32 s%d, s%d' % (d + 1, p + 1))
    a('s_mov_b32 s%d, 0x%x' % (d + 2, size))
    a('s_mov_b32 s%d, 0x20000' % (d + 3))


def setup(a, endlabel, srds):
    a('s_cmp_ge_u32 s2, 256')
    a('s_cbranch_scc1 %s' % endlabel)
    a('s_load_dwordx16 s[64:79], s[0:1], 0')
    a('s_load_dwordx8 s[80:87], s[0:1], 64')
    a('v_lshrrev_b32 v2, 6, v0')
    a('v_and_b32 v1, 63, v0')
    a('v_readfirstlane_b32 s%d, v2' % S_W)
    a('v_lshlrev_b32 v2, 4, v1')
    a('s_lshr_b32 s%d, s2, 3' % S_J)
    a('s_and_b32 s%d, s%d, 7' % (S_J, S_J))
    a('s_and_b32 s%d, s2, 7' % S_RB)
    a('s_lshl_b32 s%d, s%d, 2' % (S_RB, S_RB))
    a('s_lshr_b32 s3, s2, 6')
    a('s_add_u32 s%d, s%d, s3' % (S_RB, S_RB))
    a('s_waitcnt lgkmcnt(0)')
    tab = {'x': (S_X, 64, 2048 * 512 * 2), 'wq': (S_WQ, 66, 512 * 512 * 2), 'wo': (S_WO, 72, 512 * 512 * 2),
           'w1': (S_W1, 76, 512 * 1792 * 2), 'b1': (S_B1, 78, 1792 * 2), 'w2': (S_W2, 80, 1792 * 512 * 2),
           'out': (S_OUT, 82, 2048 * 512 * 2), 'ws': (S_WS, 86, WS_SIZE)}
    for n in srds:
        if n == 'wkv':
            a('s_bitcmp1_b32 s%d, 0' % S_J)
            a('s_cselect_b32 s%d, s70, s68' % S_WKV)
            a('s_cselect_b32 s%d, s71, s69' % (S_WKV + 1))
            a('s_mov_b32 s%d, 0x%x' % (S_WKV + 2, 512 * 16 * 2))
            a('s_mov_b32 s%d, 0x20000' % (S_WKV + 3))
        else:
            d, p, sz = tab[n]
            mk_srd(a, d, p, sz)


L_WKV, L_TB, L_X, L_WQ = 0, 16384, 32768, 98304


def ln_stats(a, rows, tS, tQ, sbase):
    n = len(rows)
    ONES = 's44'
    for k in range(4):
        for i, r in enumerate(rows):
            if k == 0:
                a('v_dot2_f32_bf16 v%d, v%d, %s, 0' % (tS + i, r, ONES))
                a('v_dot2_f32_bf16 v%d, v%d, v%d, 0' % (tQ + i, r, r))
            else:
                a('v_dot2_f32_bf16 v%d, v%d, %s, v%d' % (tS + i, r + k, ONES, tS + i))
                a('v_dot2_f32_bf16 v%d, v%d, v%d, v%d' % (tQ + i, r + k, r + k, tQ + i))
    for t in (tS, tQ):
        for p in range(n // 2):
            a('v_permlane32_swap_b32 v%d, v%d' % (t + 2 * p, t + 2 * p + 1))
    for t in (tS, tQ):
        for p in range(n // 2):
            a('v_add_f32 v%d, v%d, v%d' % (t + 2 * p, t + 2 * p, t + 2 * p + 1))
    l1 = [2 * p for p in range(n // 2)]
    l2 = []
    pairs = []
    i = 0
    while i < len(l1):
        if i + 1 < len(l1):
            A, B = l1[i], l1[i + 1]
            pairs.append((A, B, False)); l2.append((A, [A, B, A + 1, B + 1])); i += 2
        else:
            A = l1[i]
            pairs.append((A, A + 1, True)); l2.append((A, [A, A, A + 1, A + 1])); i += 1
    for t in (tS, tQ):
        for A, B, self_ in pairs:
            if self_:
                a('v_mov_b32 v%d, v%d' % (t + B, t + A))
    for t in (tS, tQ):
        for A, B, self_ in pairs:
            a('v_permlane16_swap_b32 v%d, v%d' % (t + A, t + B))
    for t in (tS, tQ):
        for A, B, self_ in pairs:
            a('v_add_f32 v%d, v%d, v%d' % (t + A, t + A, t + B))
    for sh in (8, 4, 2, 1):
        for t in (tS, tQ):
            for A, _ in l2:
                a('v_add_f32_dpp v%d, v%d, v%d row_ror:%d row_mask:0xf bank_mask:0xf' % (t + A, t + A, t + A, sh))
    for A, _ in l2:
        a('v_mul_f32 v%d, s45, v%d' % (tS + A, tS + A))
    for A, _ in l2:
        a('v_mul_f32 v%d, v%d, v%d' % (tS + A + 1, tS + A, tS + A))
    for A, _ in l2:
        a('v_fma_f32 v%d, v%d, s45, -v%d' % (tQ + A, tQ + A, tS + A + 1))
    for A, _ in l2:
        a('v_add_f32 v%d, s46, v%d' % (tQ + A, tQ + A))
    for A, _ in l2:
        a('v_rsq_f32 v%d, v%d' % (tQ + A, tQ + A))
    for A, _ in l2:
        a('v_mul_f32_e64 v%d, -v%d, v%d' % (tS + A, tS + A, tQ + A))
    for A, rws in l2:
        seen = set()
        for lr, ri in enumerate(rws):
            if ri in seen: continue
            seen.add(ri)
            a('v_readlane_b32 s%d, v%d, %d' % (sbase + 2 * ri, tQ + A, 16 * lr))
            a('v_readlane_b32 s%d, v%d, %d' % (sbase + 2 * ri + 1, tS + A, 16 * lr))


def ln_apply(a, r, sp, t):
    for k in range(4):
        a('v_lshlrev_b32 v%d, 16, v%d' % (t + 2 * k, r + k))
        a('v_and_b32 v%d, 0xffff0000, v%d' % (t + 2 * k + 1, r + k))
    for k in range(4):
        a('v_pk_fma_f32 v[%d:%d], v[%d:%d], s[%d:%d], s[%d:%d] op_sel:[0,0,1] op_sel_hi:[1,0,1]' %
          (t + 2 * k, t + 2 * k + 1, t + 2 * k, t + 2 * k + 1, sp, sp + 1, sp, sp + 1))
    for k in range(4):
        a('v_cvt_pk_bf16_f32 v%d, v%d, v%d' % (r + k, t + 2 * k, t + 2 * k + 1))


def dma(a, voff, srdr, soff_expr, m0_expr):
    a('s_mov_b32 m0, %s' % m0_expr)
    a('buffer_load_dwordx4 v%d, %s, %s offen lds' % (voff, srd(srdr), soff_expr))


def phase1(a, store_q=True):
    XR = 32
    TS, TQ, TT = 8, 16, 24
    a('s_mov_b32 s44, 0x3f803f80')
    a('s_mov_b32 s45, 0x%x' % f2u(1.0 / 512))
    a('s_mov_b32 s46, 0x%x' % f2u(1e-5))
    a('s_lshr_b32 s47, s%d, 1' % S_J)
    a('s_lshl_b32 s47, s47, 4')
    a('s_lshl_b32 s88, s%d, 1' % S_W)
    a('s_add_u32 s88, s88, s47')
    a('s_add_u32 s89, s88, 1')
    a('s_mul_i32 s3, s%d, 6' % S_W)
    for i in range(6):
        a('s_add_u32 s%d, s3, %d' % (90 + i, i))
        a('s_add_u32 s43, s%d, 16' % (90 + i))
        a('s_cmp_lt_u32 s%d, s47' % (90 + i))
        a('s_cselect_b32 s%d, s%d, s43' % (90 + i, 90 + i))
    a('s_lshl_b32 s48, s%d, 16' % S_RB)
    def xload(i):
        a('s_lshl_b32 s43, s%d, 10' % (88 + i))
        a('s_add_u32 s43, s43, s48')
        a('buffer_load_dwordx4 %s, v2, %s, s43 offen' % (vr(XR + 4 * i, 4), srd(S_X)))
    xload(0); xload(1)
    a('s_lshl_b32 s43, s%d, 11' % S_W)
    a('s_mov_b32 m0, s43')
    a('buffer_load_dwordx4 v2, %s, s43 offen lds' % srd(S_WKV))
    a('buffer_load_dwordx4 v2, %s, s43 offen offset:1024 lds' % srd(S_WKV))
    for i in range(2, 8): xload(i)
    a('v_lshrrev_b32 v3, 3, v1')
    a('v_and_b32 v4, 7, v1')
    a('v_lshlrev_b32 v5, 1, v3')
    a('v_and_b32 v5, 4, v5')
    a('v_xor_b32 v4, v4, v5')
    a('v_lshlrev_b32 v4, 4, v4')
    a('v_lshl_add_u32 v5, v3, 10, v4')
    a('s_lshl_b32 s49, s%d, 16' % S_W)
    a('s_lshl_b32 s43, s%d, 7' % S_J)
    a('s_add_u32 s49, s49, s43')
    a('s_lshl_b32 s50, s%d, 13' % S_W)
    a('s_add_u32 s50, s50, %d' % L_WQ)
    for i in range(8):
        a('s_mov_b32 m0, s50')
        a('s_add_u32 s50, s50, 1024')
        a('buffer_load_dwordx4 v5, %s, s49 offen lds' % srd(S_WQ))
        if i < 7: a('s_add_u32 s49, s49, 8192')
    a('s_cmp_lt_u32 s2, 112')
    a('s_cbranch_scc1 L_tb_w1')
    a('s_cmp_lt_u32 s2, 224')
    a('s_cbranch_scc1 L_tb_w2')
    a('s_sub_u32 s3, s2, 224')
    a('s_mov_b32 s52, s72'); a('s_mov_b32 s53, s73'); a('s_mov_b32 s54, 0x%x' % (512 * 512 * 2))
    a('s_mov_b32 s56, 1024')
    a('s_and_b32 s60, s3, 3'); a('s_lshr_b32 s61, s3, 2')
    a('s_mov_b32 s59, %d' % (32 * 1024))
    a('s_mov_b32 s62, 0x%x' % WS_WO)
    a('s_branch L_tb_go')
    a.label('L_tb_w1')
    a('s_mov_b32 s52, s76'); a('s_mov_b32 s53, s77'); a('s_mov_b32 s54, 0x%x' % (512 * 1792 * 2))
    a('s_mov_b32 s56, 3584')
    a('s_and_b32 s60, s2, 3'); a('s_lshr_b32 s61, s2, 2')
    a('s_mov_b32 s59, %d' % (32 * 1024))
    a('s_mov_b32 s62, 0x%x' % WS_W1)
    a('s_branch L_tb_go')
    a.label('L_tb_w2')
    a('s_sub_u32 s3, s2, 112')
    a('s_mov_b32 s52, s80'); a('s_mov_b32 s53, s81'); a('s_mov_b32 s54, 0x%x' % (1792 * 512 * 2))
    a('s_mov_b32 s56, 1024')
    a('s_lshr_b32 s60, s3, 3'); a('s_and_b32 s61, s3, 7')
    a('s_mov_b32 s59, %d' % (112 * 1024))
    a('s_mov_b32 s62, 0x%x' % WS_W2)
    a.label('L_tb_go')
    a('s_mov_b32 s55, 0x20000')
    a('s_lshl_b32 s3, s60, 7')
    a('s_lshl_b32 s43, s%d, 4' % S_W)
    a('s_add_u32 s3, s3, s43')
    a('s_mul_i32 s57, s3, s56')
    a('s_lshl_b32 s3, s61, 7')
    a('s_add_u32 s57, s57, s3')
    a('s_lshl_b32 s3, s61, 1')
    a('s_mul_i32 s58, s3, s59')
    a('s_add_u32 s58, s58, s62')
    a('s_lshl_b32 s3, s60, 3')
    a('s_add_u32 s3, s3, s%d' % S_W)
    a('s_lshl_b32 s3, s3, 10')
    a('s_add_u32 s58, s58, s3')
    a('v_mul_lo_u32 v6, v3, s56')
    a('v_add_u32 v6, v6, v4')
    a('s_lshl_b32 s3, s%d, 11' % S_W)
    a('s_add_u32 s3, s3, %d' % L_TB)
    a('s_mov_b32 m0, s3')
    a('s_lshl_b32 s43, s56, 3')
    a('buffer_load_dwordx4 v6, s[52:55], s57 offen lds')
    a('s_add_u32 s3, s3, 1024')
    a('s_add_u32 s57, s57, s43')
    a('s_mov_b32 m0, s3')
    a('s_nop 0')
    a('buffer_load_dwordx4 v6, s[52:55], s57 offen lds')
    a('s_waitcnt vmcnt(18)')
    SB = 72
    ln_stats(a, [XR, XR + 4], TS, TQ, SB)
    def xstore(i):
        a('s_lshl_b32 s3, s%d, 10' % (88 + i))
        a('s_and_b32 s43, s%d, 15' % (88 + i))
        a('s_lshl_b32 s43, s43, 4')
        a('s_add_u32 s3, s3, s43')
        a('s_add_u32 s3, s3, %d' % L_X)
        a('v_xor_b32 v7, s3, v2')
        a('ds_write_b128 v7, %s' % vr(XR + 4 * i, 4))
    for i in range(2):
        ln_apply(a, XR + 4 * i, SB + 2 * i, TT)
        xstore(i)
    a('s_waitcnt vmcnt(16) lgkmcnt(0)')
    a('s_barrier')
    a('s_cmp_lg_u32 s%d, 0' % S_W)
    a('s_cbranch_scc1 L_kv_done')
    KW, KX = 64, 128
    a('v_lshrrev_b32 v8, 4, v1')
    a('v_and_b32 v9, 15, v1')
    a('v_lshlrev_b32 v10, 8, v8')
    a('v_lshl_add_u32 v10, v9, 3, v10')
    a('v_xor_b32 v11, v8, v9')
    a('v_lshlrev_b32 v11, 4, v11')
    a('v_add_u32 v12, s47, v9')
    a('v_lshlrev_b32 v12, 10, v12')
    a('v_add_u32 v12, %d, v12' % L_X)
    a('v_add_u32 v12, v12, v11')
    a('v_xor_b32 v13, 64, v12')
    a('v_xor_b32 v14, 0x80, v12')
    a('v_xor_b32 v15, 0xc0, v12')
    def kvload(ks):
        a('ds_read_b64_tr_b16 %s, v10 offset:%d' % (vr(KW + 4 * ks, 2), 1024 * ks))
        a('ds_read_b64_tr_b16 %s, v10 offset:%d' % (vr(KW + 4 * ks + 2, 2), 1024 * ks + 128))
        a('ds_read_b128 %s, v%d offset:%d' % (vr(KX + 4 * ks, 4), 12 + ks % 4, (ks // 4) * 256))
    for ks in range(4): kvload(ks)
    a('s_bitcmp1_b32 s%d, 0' % S_J)
    a('s_cbranch_scc1 L_kv_v')
    for var in (0, 1):
        if var: a.label('L_kv_v'); a.fence(4)
        for ks in range(16):
            if ks + 4 < 16: kvload(ks + 4)
            a('s_waitcnt lgkmcnt(%d)' % (3 * (min(16, ks + 5) - (ks + 1))))
            acc = 16 + 4 * (ks % 2)
            A, B = (KW + 4 * ks, KX + 4 * ks) if var == 0 else (KX + 4 * ks, KW + 4 * ks)
            a('v_mfma_f32_16x16x32_bf16 %s, %s, %s, %s' % (vr(acc, 4), vr(A, 4), vr(B, 4), '0' if ks < 2 else vr(acc, 4)))
        for k in range(4):
            a('v_add_f32 v%d, v%d, v%d' % (16 + k, 16 + k, 20 + k))
        a('v_cvt_pk_bf16_f32 v16, v16, v17')
        a('v_cvt_pk_bf16_f32 v17, v18, v19')
        a('v_and_b32 v18, 1, v8')
        a('v_lshlrev_b32 v18, %d, v18' % (9 if var == 0 else 8))
        a('v_lshl_add_u32 v18, v9, 4, v18')
        a('v_lshrrev_b32 v19, 1, v8')
        a('v_lshl_add_u32 v18, v19, 3, v18')
        a('s_lshl_b32 s3, s%d, 1' % S_RB)
        a('s_lshr_b32 s43, s47, 5')
        a('s_add_u32 s3, s3, s43')
        a('s_lshl_b32 s3, s3, 11')
        a('s_and_b32 s43, s47, 16')
        if var == 0:
            a('s_lshl_b32 s43, s43, 4')
        else:
            a('s_lshl_b32 s43, s43, 5')
            a('s_add_u32 s43, s43, 1024')
        a('s_add_u32 s3, s3, s43')
        if WS_KV: a('s_add_u32 s3, s3, 0x%x' % WS_KV)
        a('buffer_store_dwordx2 v[16:17], v18, %s, s3 offen' % srd(S_WS))
        if var == 0:
            a('v_dot2_f32_bf16 v20, v16, v16, 0')
            a('v_dot2_f32_bf16 v20, v17, v17, v20')
            a('v_mov_b32 v21, v20')
            a('v_permlane32_swap_b32 v20, v21')
            a('v_add_f32 v20, v20, v21')
            a('v_mov_b32 v21, v20')
            a('v_permlane16_swap_b32 v20, v21')
            a('v_add_f32 v20, v20, v21')
            for sh in (8, 4, 2, 1):
                a('v_max_f32_dpp v20, v20, v20 row_ror:%d row_mask:0xf bank_mask:0xf' % sh)
            a('s_lshl_b32 s3, s%d, 2' % S_RB)
            a('s_lshr_b32 s43, s%d, 1' % S_J)
            a('s_add_u32 s3, s3, s43')
            a('s_lshl_b32 s3, s3, 2')
            a('s_add_u32 s3, s3, 0x%x' % WS_KMAX)
            a('v_mov_b32 v21, 0')
            a('s_mov_b64 exec, 1')
            a('buffer_store_dword v20, v21, %s, s3 offen' % srd(S_WS))
            a('s_mov_b64 exec, -1')
            a('s_branch L_kv_done')
    a.label('L_kv_done')
    a.fence(4)
    a('s_waitcnt vmcnt(10)')
    rows = [XR + 4 * i for i in range(2, 8)]
    ln_stats(a, rows, TS, TQ, SB)
    for i in range(2, 8):
        ln_apply(a, XR + 4 * i, SB + 2 * (i - 2), TT)
        xstore(i)
    a('s_waitcnt vmcnt(0) lgkmcnt(0)')
    a('s_barrier')
    a('s_and_b32 s48, s%d, 1' % S_W)
    a('s_bfe_u32 s49, s%d, 0x10001' % S_W)
    a('s_lshr_b32 s50, s%d, 2' % S_W)
    a('v_lshrrev_b32 v8, 5, v1')
    a('v_bfe_u32 v9, v1, 4, 1')
    a('v_bfe_u32 v10, v1, 2, 2')
    a('v_and_b32 v11, 3, v1')
    a('v_lshrrev_b32 v12, 1, v11')
    a('v_lshl_add_u32 v12, v9, 1, v12')
    a('v_lshrrev_b32 v13, 1, v10')
    a('v_lshlrev_b32 v13, 2, v13')
    a('v_xor_b32 v12, v12, v13')
    a('v_lshlrev_b32 v12, 4, v12')
    a('v_and_b32 v11, 1, v11')
    a('v_lshl_add_u32 v12, v11, 3, v12')
    a('v_lshl_add_u32 v13, v8, 3, v10')
    a('v_lshl_add_u32 v13, v13, 7, v12')
    a('s_lshl_b32 s3, s50, 15')
    a('s_lshl_b32 s43, s48, 6')
    a('s_add_u32 s3, s3, %d' % L_WQ)
    a('v_xor_b32 v13, s43, v13')
    a('v_add_u32 v13, s3, v13')
    a('v_lshl_add_u32 v14, v8, 2, v10')
    a('v_lshl_add_u32 v14, v14, 7, v12')
    a('s_lshl_b32 s3, s%d, 11' % S_W)
    a('s_add_u32 s3, s3, %d' % L_TB)
    a('v_add_u32 v14, s3, v14')
    a('v_xor_b32 v15, 64, v14')
    for nt in range(2):
        a('ds_read_b64_tr_b16 %s, v%d' % (vr(192 + 4 * nt, 2), 14 + nt))
        a('ds_read_b64_tr_b16 %s, v%d offset:1024' % (vr(194 + 4 * nt, 2), 14 + nt))
    a('v_and_b32 v16, 31, v1')
    a('v_and_b32 v17, 15, v1')
    a('v_xor_b32 v17, v17, v8')
    a('v_lshlrev_b32 v17, 4, v17')
    a('v_lshl_add_u32 v17, v16, 10, v17')
    a('s_lshl_b32 s3, s49, 15')
    a('s_lshl_b32 s43, s50, 9')
    a('s_add_u32 s3, s3, s43')
    a('s_add_u32 s3, s3, %d' % L_X)
    a('v_add_u32 v24, s3, v17')
    for q in range(1, 8):
        a('v_xor_b32 v%d, %d, v24' % (24 + q, 32 * q))
    QA, QB, QD = 64, 128, 32
    def qload(s):
        a('ds_read_b64_tr_b16 %s, v13 offset:%d' % (vr(QA + 4 * s, 2), 2048 * s))
        a('ds_read_b64_tr_b16 %s, v13 offset:%d' % (vr(QA + 4 * s + 2, 2), 2048 * s + 512))
        a('ds_read_b128 %s, v%d offset:%d' % (vr(QB + 4 * s, 4), 24 + s % 8, (s // 8) * 256))
    PF = 4
    a('s_waitcnt lgkmcnt(0)')
    for s in range(PF): qload(s)
    a('buffer_store_dwordx4 %s, v2, %s, s58 offen' % (vr(192, 4), srd(S_WS)))
    a('s_add_u32 s58, s58, s59')
    a('buffer_store_dwordx4 %s, v2, %s, s58 offen' % (vr(196, 4), srd(S_WS)))
    for s in range(16):
        if s + PF < 16: qload(s + PF)
        rem = min(16, s + PF + 1) - (s + 1)
        a('s_waitcnt lgkmcnt(%d)' % (3 * rem))
        a('v_mfma_f32_32x32x16_bf16 %s, %s, %s, %s' % (vr(QD, 16), vr(QA + 4 * s, 4), vr(QB + 4 * s, 4), '0' if s == 0 else vr(QD, 16)))
    a('s_lshl_b32 s3, s%d, 11' % S_W)
    a('v_add_u32 v8, s3, v2')
    a('s_xor_b32 s3, s3, %d' % (4 << 11))
    a('v_add_u32 v9, s3, v2')
    a('s_cmp_eq_u32 s50, 0')
    a('s_cbranch_scc0 L_q_kh1')
    a('ds_write_b128 v8, %s' % vr(QD + 8, 4))
    a('ds_write_b128 v8, %s offset:1024' % vr(QD + 12, 4))
    a('s_branch L_q_x')
    a.label('L_q_kh1')
    a.fence(12)
    a('ds_write_b128 v8, %s' % vr(QD, 4))
    a('ds_write_b128 v8, %s offset:1024' % vr(QD + 4, 4))
    for k in range(8):
        a('v_mov_b32 v%d, v%d' % (QD + k, QD + 8 + k))
    a.label('L_q_x')
    a.fence(4)
    a('s_waitcnt lgkmcnt(0)')
    a('s_barrier')
    a('ds_read_b128 %s, v9' % vr(48, 4))
    a('ds_read_b128 %s, v9 offset:1024' % vr(52, 4))
    a('s_mov_b32 s3, 0x%x' % f2u(0.25 * LOG2E))
    a('s_waitcnt lgkmcnt(0)')
    for k in range(8):
        a('v_add_f32 v%d, v%d, v%d' % (QD + k, QD + k, 48 + k))
    for k in range(8):
        a('v_mul_f32 v%d, s3, v%d' % (QD + k, QD + k))
    for k in range(4):
        a('v_cvt_pk_bf16_f32 v%d, v%d, v%d' % (QD + k, QD + 2 * k, QD + 2 * k + 1))
    if store_q:
        q_frag_off(a, WS_Q, 's48', 's49', 's50', 's3')
        a('buffer_store_dwordx4 %s, v2, %s, s3 offen' % (vr(QD, 4), srd(S_WS)))


def q_frag_off(a, base, nt, mt, kh, dst):
    a('s_lshl_b32 %s, s%d, 1' % (dst, S_RB))
    a('s_add_u32 %s, %s, %s' % (dst, dst, mt))
    a('s_lshl_b32 %s, %s, 3' % (dst, dst))
    a('s_add_u32 %s, %s, s%d' % (dst, dst, S_J))
    a('s_lshl_b32 %s, %s, 1' % (dst, dst))
    a('s_add_u32 %s, %s, %s' % (dst, dst, nt))
    a('s_lshl_b32 %s, %s, 1' % (dst, dst))
    a('s_add_u32 %s, %s, %s' % (dst, dst, kh))
    a('s_lshl_b32 %s, %s, 10' % (dst, dst))
    a('s_add_u32 %s, %s, 0x%x' % (dst, dst, base))


LIMIT2 = 60.0 * 60.0


def attn_regs():
    R = {}
    R['Q'] = 4
    R['S0'] = 8
    R['S1'] = 24
    R['O'] = 40
    R['P'] = 56
    R['K0'] = 64; R['K1'] = 68
    R['V0'] = 72; R['V1'] = 80
    R['VA'] = 3
    return R


def attention_main(a, R, unroll=2):
    Q, O, P = R['Q'], R['O'], R['P']
    S = [R['S0'], R['S1']]; K = [R['K0'], R['K1']]; V = [R['V0'], R['V1']]
    VA = R['VA']
    KA = 2
    MASK = 's[60:61]'
    body = []

    def rdK(buf, off):
        a('ds_read_b128 %s, v%d offset:%d' % (vr(K[buf], 4), R['KAD'], off))

    def rdV(buf, off):
        a('s_mov_b64 exec, %s' % MASK)
        a('ds_read_b128 %s, v%d offset:%d' % (vr(V[buf], 4), VA, off + 1024))
        a('ds_read_b128 %s, v%d offset:%d' % (vr(V[buf] + 4, 4), VA, off + 1024 + 512))
        a('s_mov_b64 exec, -1')

    rdK(0, 0); rdK(1, 2048); rdV(0, 0)
    for k in range(16): a('v_mov_b32 v%d, 0' % (O + k))
    a('s_waitcnt lgkmcnt(3)')
    a('v_mfma_f32_32x32x16_bf16 %s, %s, %s, 0' % (vr(S[0], 16), vr(K[0], 4), vr(Q, 4)))
    NT = 64
    U = 8
    a('s_mov_b32 s62, %d' % (NT // U))
    a.fence(12)
    a.raw('.p2align 6')
    a.label('L_attn_loop')

    def tile(u, last_iter_guard=False):
        c, n = u % 2, (u + 1) % 2
        a('s_waitcnt lgkmcnt(2)')
        a('v_mfma_f32_32x32x16_bf16 %s, %s, %s, 0' % (vr(S[n], 16), vr(K[n], 4), vr(Q, 4)))
        for k in range(0, 4): a('v_exp_f32 v%d, v%d' % (S[c] + k, S[c] + k))
        rdK(c, (u + 2) * 2048)
        for k in range(4, 8): a('v_exp_f32 v%d, v%d' % (S[c] + k, S[c] + k))
        rdV(n, (u + 1) * 2048)
        for k in range(4): a('v_cvt_pk_bf16_f32 v%d, v%d, v%d' % (P + k, S[c] + 2 * k, S[c] + 2 * k + 1))
        for k in range(8, 10): a('v_exp_f32 v%d, v%d' % (S[c] + k, S[c] + k))
        a('s_waitcnt lgkmcnt(3)')
        a('v_mfma_f32_32x32x16_bf16 %s, %s, %s, %s' % (vr(O, 16), vr(V[c], 4), vr(P, 4), vr(O, 16)))
        for k in range(10, 16): a('v_exp_f32 v%d, v%d' % (S[c] + k, S[c] + k))
        for k in range(4, 8): a('v_cvt_pk_bf16_f32 v%d, v%d, v%d' % (P + k, S[c] + 2 * k, S[c] + 2 * k + 1))
        a('s_nop 1')
        a('v_mfma_f32_32x32x16_bf16 %s, %s, %s, %s' % (vr(O, 16), vr(V[c] + 4, 4), vr(P + 4, 4), vr(O, 16)))

    for u in range(U): tile(u)
    a('v_add_u32 v%d, 0x%x, v%d' % (R['KAD'], U * 2048, R['KAD']))
    a('v_add_u32 v%d, 0x%x, v%d' % (VA, U * 2048, VA))
    a('s_sub_u32 s62, s62, 1')
    a('s_cmp_lg_u32 s62, 0')
    a('s_cbranch_scc1 L_attn_loop')
    a('s_waitcnt lgkmcnt(0)')


def attention_slow(a, R):
    Q, O, P = R['Q'], R['O'], R['P']
    S = R['S0']; K = R['K0']; V = R['V0']; VA = R['VA']
    M, MN, AL, T = R['S1'], R['S1'] + 1, R['S1'] + 2, R['S1'] + 3
    MASK = 's[60:61]'
    for k in range(16): a('v_mov_b32 v%d, 0' % (O + k))
    a('v_mov_b32 v%d, 0xff7fffff' % M)
    a('s_mov_b32 s62, 64')
    a.fence(4)
    a.label('L_attn_slow')
    a('ds_read_b128 %s, v%d' % (vr(K, 4), R['KAD']))
    a('s_mov_b64 exec, %s' % MASK)
    a('ds_read_b128 %s, v%d offset:1024' % (vr(V, 4), VA))
    a('ds_read_b128 %s, v%d offset:1536' % (vr(V + 4, 4), VA))
    a('v_add_u32 v%d, 0x800, v%d' % (VA, VA))
    a('s_mov_b64 exec, -1')
    a('v_add_u32 v%d, 0x800, v%d' % (R['KAD'], R['KAD']))
    a('s_waitcnt lgkmcnt(0)')
    a('v_mfma_f32_32x32x16_bf16 %s, %s, %s, 0' % (vr(S, 16), vr(K, 4), vr(Q, 4)))
    a('v_max_f32 v%d, v%d, v%d' % (MN, S, S + 1))
    for k in range(2, 16, 2):
        a('v_max3_f32 v%d, v%d, v%d, v%d' % (MN, MN, S + k, S + k + 1))
    a('v_mov_b32 v%d, v%d' % (T, MN))
    a('v_permlane32_swap_b32 v%d, v%d' % (MN, T))
    a('v_max3_f32 v%d, v%d, v%d, v%d' % (MN, MN, T, M))
    a('v_sub_f32 v%d, v%d, v%d' % (AL, M, MN))
    a('v_exp_f32 v%d, v%d' % (AL, AL))
    a('v_mov_b32 v%d, v%d' % (M, MN))
    for k in range(16):
        a('v_sub_f32 v%d, v%d, v%d' % (S + k, S + k, MN))
    for k in range(16):
        a('v_exp_f32 v%d, v%d' % (S + k, S + k))
    for k in range(16):
        a('v_mul_f32 v%d, v%d, v%d' % (O + k, O + k, AL))
    for k in range(8):
        a('v_cvt_pk_bf16_f32 v%d, v%d, v%d' % (P + k, S + 2 * k, S + 2 * k + 1))
    a('v_mfma_f32_32x32x16_bf16 %s, %s, %s, %s' % (vr(O, 16), vr(V, 4), vr(P, 4), vr(O, 16)))
    a('v_mfma_f32_32x32x16_bf16 %s, %s, %s, %s' % (vr(O, 16), vr(V + 4, 4), vr(P + 4, 4), vr(O, 16)))
    a('s_sub_u32 s62, s62, 1')
    a('s_cmp_lg_u32 s62, 0')
    a('s_nop 7'); a('s_nop 7')
    a('s_cbranch_scc1 L_attn_slow')


def phase2(a, force_slow=False):
    R = attn_regs(); R['KAD'] = 88
    Q, O = R['Q'], R['O']
    a('s_and_b32 s48, s%d, 1' % S_W)
    a('s_bfe_u32 s49, s%d, 0x10001' % S_W)
    a('s_lshr_b32 s50, s%d, 2' % S_W)
    q_frag_off(a, WS_Q, 's48', 's49', 's50', 's3')
    a('buffer_load_dwordx4 %s, v2, %s, s3 offen' % (vr(Q, 4), srd(S_WS)))
    a('v_lshlrev_b32 v8, 3, v1')
    a('s_mov_b32 s3, 0x%x' % WS_KMAX)
    a('buffer_load_dwordx2 v[10:11], v8, %s, s3 offen' % srd(S_WS))
    a('s_lshl_b32 s3, s%d, 10' % S_W)
    for i in range(16):
        a('s_mov_b32 m0, s3')
        if WS_KV:
            raise NotImplementedError
        a('buffer_load_dwordx4 v2, %s, s3 offen lds' % srd(S_WS))
        a('s_add_u32 s3, s3, 8192')
    a('s_mov_b32 s60, 0x0000ffff')
    a('s_mov_b32 s61, 0x0000ffff')
    a('v_lshrrev_b32 v8, 5, v1')
    a('v_and_b32 v9, 15, v1')
    a('v_lshl_add_u32 v8, v8, 4, v9')
    a('v_lshlrev_b32 v%d, 4, v8' % R['VA'])
    a('v_mov_b32 v%d, v2' % R['KAD'])
    for b in (R['V0'], R['V1']):
        for k in range(8): a('v_mov_b32 v%d, 0x3f803f80' % (b + k))
    a('s_waitcnt vmcnt(16)')
    a('v_max_f32 v10, v10, v11')
    a('v_dot2_f32_bf16 v12, v%d, v%d, 0' % (Q, Q))
    for k in range(1, 4): a('v_dot2_f32_bf16 v12, v%d, v%d, v12' % (Q + k, Q + k))
    a('v_mov_b32 v11, v10')
    a('v_permlane32_swap_b32 v10, v11')
    a('v_max_f32 v10, v10, v11')
    a('v_mov_b32 v11, v10')
    a('v_permlane16_swap_b32 v10, v11')
    a('v_max_f32 v10, v10, v11')
    for sh in (8, 4, 2, 1):
        a('v_max_f32_dpp v10, v10, v10 row_ror:%d row_mask:0xf bank_mask:0xf' % sh)
    a('v_mov_b32 v13, v12')
    a('v_permlane32_swap_b32 v12, v13')
    a('v_add_f32 v12, v12, v13')
    a('v_mul_f32 v12, v12, v10')
    a('s_mov_b32 s3, 0x%x' % f2u(-1.0 if force_slow else LIMIT2))
    a('v_cmp_nle_f32 vcc, v12, s3')
    a('s_waitcnt vmcnt(0)')
    a('s_barrier')
    a('s_cbranch_vccnz L_attn_fb')
    attention_main(a, R)
    a('s_branch L_attn_fin')
    a.label('L_attn_fb')
    a.fence(4)
    attention_slow(a, R)
    a.label('L_attn_fin')
    a.fence(12)
    a('v_rcp_f32 v8, v%d' % (O + 8))
    for k in range(8): a('v_mul_f32 v%d, v%d, v8' % (O + k, O + k))
    for k in range(4): a('v_cvt_pk_bf16_f32 v%d, v%d, v%d' % (O + k, O + 2 * k, O + 2 * k + 1))
    q_frag_off(a, WS_O, 's48', 's49', 's50', 's3')
    a('buffer_store_dwordx4 %s, v2, %s, s3 offen' % (vr(O, 4), srd(S_WS)))


def phase3(a):
    A, B, D = 64, 128, 192
    a('s_and_b32 s48, s%d, 1' % S_W)
    a('s_lshr_b32 s49, s%d, 1' % S_W)
    a('s_lshl_b32 s3, s%d, 1' % S_RB)
    a('s_add_u32 s3, s3, s48')
    a('s_lshl_b32 s50, s3, 5')
    a('s_lshl_b32 s43, s49, 3')
    a('s_add_u32 s3, s50, s43')
    a('s_lshl_b32 s3, s3, 10')
    a('s_add_u32 s3, s3, 0x%x' % WS_O)
    a('s_lshl_b32 s51, s%d, 6' % S_J)
    a('s_add_u32 s51, s51, s43')
    a('s_lshl_b32 s51, s51, 10')
    a('s_add_u32 s51, s51, 0x%x' % WS_WO)
    a('s_add_u32 s52, s51, %d' % (32 * 1024))
    for s in range(8):
        o = (s % 4) * 1024
        if s == 4:
            a('s_add_u32 s3, s3, 4096'); a('s_add_u32 s51, s51, 4096'); a('s_add_u32 s52, s52, 4096')
        a('buffer_load_dwordx4 %s, v2, %s, s3 offen offset:%d' % (vr(B + 4 * s, 4), srd(S_WS), o))
        a('buffer_load_dwordx4 %s, v2, %s, s51 offen offset:%d' % (vr(A + 4 * s, 4), srd(S_WS), o))
        a('buffer_load_dwordx4 %s, v2, %s, s52 offen offset:%d' % (vr(A + 32 + 4 * s, 4), srd(S_WS), o))
    a('v_and_b32 v3, 31, v1')
    a('v_lshrrev_b32 v4, 5, v1')
    a('v_lshlrev_b32 v3, 10, v3')
    a('v_lshl_add_u32 v3, v4, 4, v3')
    a('s_lshl_b32 s3, s%d, 1' % S_RB)
    a('s_add_u32 s3, s3, s48')
    a('s_lshl_b32 s3, s3, 15')
    a('s_lshl_b32 s43, s%d, 7' % S_J)
    a('s_add_u32 s3, s3, s43')
    a('s_lshl_b32 s43, s49, 5')
    a('s_add_u32 s53, s3, s43')
    a('buffer_load_dwordx4 v[8:11], v3, %s, s53 offen' % srd(S_X))
    for s in range(8):
        a('s_waitcnt vmcnt(%d)' % (3 * (7 - s) + 1))
        for nt in range(2):
            a('v_mfma_f32_32x32x16_bf16 %s, %s, %s, %s' % (vr(D + 16 * nt, 16), vr(A + 32 * nt + 4 * s, 4), vr(B + 4 * s, 4),
                                                          '0' if s == 0 else vr(D + 16 * nt, 16)))
    a('s_lshl_b32 s3, s48, 15')
    a('s_lshl_b32 s43, s49, 11')
    a('s_add_u32 s3, s3, s43')
    a('v_add_u32 v5, s3, v2')
    for q in range(4):
        a('s_cmp_eq_u32 s49, %d' % q)
        a('s_cbranch_scc1 L_o_skip%d' % q)
        a('ds_write_b128 v5, %s offset:%d' % (vr(D + 8 * q, 4), q * 8192))
        a('ds_write_b128 v5, %s offset:%d' % (vr(D + 8 * q + 4, 4), q * 8192 + 1024))
        a('s_branch L_o_nxt%d' % q)
        a.label('L_o_skip%d' % q)
        a.fence(12)
        for k in range(8): a('v_mov_b32 v%d, v%d' % (16 + k, D + 8 * q + k))
        a.label('L_o_nxt%d' % q)
    a('s_waitcnt lgkmcnt(0)')
    a('s_barrier')
    a('s_lshl_b32 s3, s48, 15')
    a('s_lshl_b32 s43, s49, 13')
    a('s_add_u32 s3, s3, s43')
    for d in range(1, 4):
        a('s_add_u32 s43, s49, %d' % d)
        a('s_and_b32 s43, s43, 3')
        a('s_lshl_b32 s43, s43, 11')
        a('s_add_u32 s43, s43, s3')
        a('v_add_u32 v5, s43, v2')
        a('ds_read_b128 %s, v5' % vr(24 + 8 * (d - 1), 4))
        a('ds_read_b128 %s, v5 offset:1024' % vr(28 + 8 * (d - 1), 4))
    a('s_waitcnt vmcnt(0)')
    a('v_permlane32_swap_b32 v8, v10')
    a('v_permlane32_swap_b32 v9, v11')
    for k in range(4):
        a('v_lshlrev_b32 v%d, 16, v%d' % (48 + 2 * k, 8 + k))
        a('v_and_b32 v%d, 0xffff0000, v%d' % (49 + 2 * k, 8 + k))
    a('s_waitcnt lgkmcnt(0)')
    for k in range(8):
        a('v_add_f32 v%d, v%d, v%d' % (16 + k, 16 + k, 24 + k))
        a('v_add_f32 v%d, v%d, v%d' % (32 + k, 32 + k, 40 + k))
    for k in range(8):
        a('v_add_f32 v%d, v%d, v%d' % (16 + k, 16 + k, 32 + k))
    for k in range(8):
        a('v_add_f32 v%d, v%d, v%d' % (16 + k, 16 + k, 48 + k))
    for k in range(4):
        a('v_cvt_pk_bf16_f32 v%d, v%d, v%d' % (16 + k, 16 + 2 * k, 17 + 2 * k))
    a('s_lshl_b32 s3, s%d, 2' % S_J)
    a('s_add_u32 s3, s3, s49')
    a('s_add_u32 s3, s3, s50')
    a('s_lshl_b32 s3, s3, 10')
    a('s_add_u32 s3, s3, 0x%x' % WS_H)
    a('buffer_store_dwordx4 v[16:19], v2, %s, s3 offen' % srd(S_WS))


L_H, L_ACT, L_ST, L_CS = 0, 65536, 94208, 95232


def phase45(a):
    A = 128
    D1 = 96
    D2 = 32
    BB = 8
    a('s_mov_b32 s44, 0x3f803f80')
    a('s_lshl_b32 s3, s%d, 10' % S_W)
    a('s_lshl_b32 s43, s%d, 16' % S_RB)
    a('s_add_u32 s43, s43, 0x%x' % WS_H)
    a('s_add_u32 s43, s43, s3')
    a('s_cmp_eq_u32 s%d, 7' % S_W)
    a('s_cbranch_scc1 L_g1_now1')
    a('s_mul_i32 s48, s%d, 7' % S_J)
    a('s_add_u32 s48, s48, s%d' % S_W)
    a('s_lshl_b32 s49, s48, 15')
    a('s_add_u32 s49, s49, 0x%x' % WS_W1)
    for ks in range(32):
        if ks and ks % 4 == 0: a('s_add_u32 s49, s49, 4096')
        a('buffer_load_dwordx4 %s, v2, %s, s49 offen offset:%d' % (vr(A + 4 * ks, 4), srd(S_WS), (ks % 4) * 1024))
    a('v_lshrrev_b32 v3, 5, v1')
    a('v_lshlrev_b32 v3, 3, v3')
    a('s_lshl_b32 s50, s48, 6')
    for q in range(4):
        a('buffer_load_dwordx2 %s, v3, %s, s50 offen offset:%d' % (vr(64 + 2 * q, 2), srd(S_B1), 16 * q))
    a.label('L_g1_now1')
    for i in range(8):
        a('s_mov_b32 m0, s3')
        a('s_add_u32 s3, s3, 8192')
        a('buffer_load_dwordx4 v2, %s, s43 offen lds' % srd(S_WS))
        a('s_add_u32 s43, s43, 8192')
    a('s_mul_i32 s52, s%d, %d' % (S_W, 2 * 112))
    a('s_mul_i32 s53, s%d, 14' % S_J)
    a('s_add_u32 s52, s52, s53')
    a('s_lshl_b32 s52, s52, 10')
    a('s_add_u32 s52, s52, 0x%x' % WS_W2)
    a('s_add_u32 s53, s52, %d' % (112 * 1024))
    a('s_cmp_eq_u32 s%d, 7' % S_W)
    a('s_cbranch_scc1 L_g1_stats')
    a('s_waitcnt vmcnt(12)')
    for ks in range(32):
        for k in range(4):
            c = 72 + k
            a('v_dot2_f32_bf16 v%d, v%d, s44, %s' % (c, A + 4 * ks + k, '0' if ks == 0 else 'v%d' % c))
    a('v_add_f32 v72, v72, v73')
    a('v_add_f32 v74, v74, v75')
    a('v_add_f32 v72, v72, v74')
    a('v_mov_b32 v73, v72')
    a('v_permlane32_swap_b32 v72, v73')
    a('v_add_f32 v72, v72, v73')
    a('s_lshl_b32 s3, s%d, 7' % S_W)
    a('s_add_u32 s3, s3, %d' % L_CS)
    a('v_and_b32 v4, 31, v1')
    a('v_lshlrev_b32 v4, 2, v4')
    a('v_add_u32 v4, s3, v4')
    a('ds_write_b32 v4, v72')
    a('v_lshrrev_b32 v4, 5, v1')
    a('v_lshlrev_b32 v4, 4, v4')
    a('v_add_u32 v4, s3, v4')
    a('s_waitcnt lgkmcnt(0)')
    for q in range(4):
        a('ds_read_b128 %s, v4 offset:%d' % (vr(72 + 4 * q, 4), 32 * q))
    a('s_waitcnt vmcnt(0)')
    a('s_barrier')
    seq = [(ks, mt) for ks in range(32) for mt in range(2)]
    NB = 6
    def bload(i):
        ks, mt = seq[i]
        a('ds_read_b128 %s, v2 offset:%d' % (vr(BB + 4 * (i % NB), 4), L_H + (mt * 32 + ks) * 1024))
    PF = 5
    for i in range(PF): bload(i)
    w2list = [(nt, s) for s in range(14) for nt in range(2)]
    for i, (ks, mt) in enumerate(seq):
        if i + PF < len(seq): bload(i + PF)
        rem = min(len(seq), i + PF + 1) - (i + 1)
        a('s_waitcnt lgkmcnt(%d)' % rem)
        a('v_mfma_f32_32x32x16_bf16 %s, %s, %s, %s' % (vr(D1 + 16 * mt, 16), vr(A + 4 * ks, 4), vr(BB + 4 * (i % NB), 4),
                                                      '0' if ks == 0 else vr(D1 + 16 * mt, 16)))
        if mt == 1 and 1 <= ks <= 28:
            w2load(a, w2list[ks - 1], A + 4 * (ks - 1))
    a('s_branch L_g1_epi')
    a.label('L_g1_stats')
    a.fence(4)
    for i, (nt, s) in enumerate(w2list):
        w2load(a, (nt, s), A + 4 * i)
    a('s_waitcnt vmcnt(28)')
    a('s_barrier')
    for mt in range(2):
        SA, QA = 64 + 8 * mt, 68 + 8 * mt
        for ks0 in range(0, 32, 4):
            for u in range(4):
                a('ds_read_b128 %s, v2 offset:%d' % (vr(BB + 4 * u, 4), L_H + (mt * 32 + ks0 + u) * 1024))
            for u in range(4):
                a('s_waitcnt lgkmcnt(%d)' % (3 - u))
                for k in range(4):
                    first = (ks0 == 0 and u == 0)
                    a('v_dot2_f32_bf16 v%d, v%d, s44, %s' % (SA + k, BB + 4 * u + k, '0' if first else 'v%d' % (SA + k)))
                    a('v_dot2_f32_bf16 v%d, v%d, v%d, %s' % (QA + k, BB + 4 * u + k, BB + 4 * u + k, '0' if first else 'v%d' % (QA + k)))
        for base in (SA, QA):
            a('v_add_f32 v%d, v%d, v%d' % (base, base, base + 1))
            a('v_add_f32 v%d, v%d, v%d' % (base + 2, base + 2, base + 3))
            a('v_add_f32 v%d, v%d, v%d' % (base, base, base + 2))
    for (x, y) in ((64, 72), (68, 76)):
        a('v_permlane32_swap_b32 v%d, v%d' % (x, y))
        a('v_add_f32 v%d, v%d, v%d' % (x, x, y))
    a('s_mov_b32 s45, 0x%x' % f2u(1.0 / 512))
    a('s_mov_b32 s46, 0x%x' % f2u(1e-5))
    a('v_mul_f32 v64, s45, v64')
    a('v_mul_f32 v65, v64, v64')
    a('v_fma_f32 v68, v68, s45, -v65')
    a('v_add_f32 v68, s46, v68')
    a('v_rsq_f32 v68, v68')
    a('v_mul_f32_e64 v69, -v64, v68')
    a('v_lshlrev_b32 v4, 3, v1')
    a('v_add_u32 v4, %d, v4' % L_ST)
    a('ds_write_b64 v4, v[68:69]')
    a.label('L_g1_epi')
    a.fence(12)
    a('s_waitcnt lgkmcnt(0)')
    a('s_barrier')
    a('s_cmp_eq_u32 s%d, 7' % S_W)
    a('s_cbranch_scc1 L_g1_done')
    a('v_and_b32 v4, 31, v1')
    a('v_lshlrev_b32 v4, 3, v4')
    a('v_add_u32 v4, %d, v4' % L_ST)
    a('ds_read_b64 v[8:9], v4')
    a('ds_read_b64 v[10:11], v4 offset:256')
    for q in range(4):
        for e in range(2):
            a('v_lshlrev_b32 v%d, 16, v%d' % (48 + 4 * q + 2 * e, 64 + 2 * q + e))
            a('v_and_b32 v%d, 0xffff0000, v%d' % (48 + 4 * q + 2 * e + 1, 64 + 2 * q + e))
    a('s_mov_b32 s45, 0x%x' % f2u(LOG2E))
    a('s_lshl_b32 s3, s%d, 11' % S_W)
    a('s_add_u32 s3, s3, %d' % L_ACT)
    a('v_add_u32 v5, s3, v2')
    a('s_waitcnt lgkmcnt(0)')
    for mt in range(2):
        RS, NM = 8 + 2 * mt, 9 + 2 * mt
        T = 12
        for r in range(16):
            d = D1 + 16 * mt + r
            a('v_fma_f32 v%d, v%d, v%d, v%d' % (T + r, 72 + r, NM, 48 + r))
        for r in range(16):
            d = D1 + 16 * mt + r
            a('v_fma_f32 v%d, v%d, v%d, v%d' % (d, d, RS, T + r))
        for g in range(0, 16, 4):
            rs = range(g, g + 4)
            for r in rs: a('v_mul_f32 v%d, s45, v%d' % (T + r, D1 + 16 * mt + r))
            for r in rs: a('v_min_f32 v%d, 0x42000000, v%d' % (T + r, T + r))
            for r in rs: a('v_exp_f32 v%d, v%d' % (T + r, T + r))
            for r in rs: a('v_fma_f32 v%d, v%d, 0.5, 1.0' % (28 + r - g, T + r))
            for r in rs: a('v_fma_f32 v%d, v%d, v%d, 1.0' % (28 + r - g, T + r, 28 + r - g))
            for r in rs: a('v_rcp_f32 v%d, v%d' % (28 + r - g, 28 + r - g))
            for r in rs: a('v_fma_f32 v%d, -v%d, v%d, v%d' % (D1 + 16 * mt + r, D1 + 16 * mt + r, 28 + r - g, D1 + 16 * mt + r))
        for k in range(8):
            a('v_cvt_pk_bf16_f32 v%d, v%d, v%d' % (T + k, D1 + 16 * mt + 2 * k, D1 + 16 * mt + 2 * k + 1))
        a('ds_write_b128 v5, %s offset:%d' % (vr(T, 4), mt * 14 * 1024))
        a('ds_write_b128 v5, %s offset:%d' % (vr(T + 4, 4), mt * 14 * 1024 + 1024))
    a.label('L_g1_done')
    a.fence(4)
    a('s_waitcnt vmcnt(0) lgkmcnt(0)')
    a('s_barrier')
    seq = [(s, mt) for s in range(14) for mt in range(2)]
    def bload2(i):
        s, mt = seq[i]
        a('ds_read_b128 %s, v6 offset:%d' % (vr(BB + 4 * (i % NB), 4), (mt * 14 + s) * 1024))
    a('v_add_u32 v6, %d, v2' % L_ACT)
    for i in range(PF): bload2(i)
    for i, (s, mt) in enumerate(seq):
        if i + PF < len(seq): bload2(i + PF)
        rem = min(len(seq), i + PF + 1) - (i + 1)
        a('s_waitcnt lgkmcnt(%d)' % rem)
        for nt in range(2):
            slot = w2list.index((nt, s))
            acc = D2 + 16 * (2 * nt + mt)
            a('v_mfma_f32_32x32x16_bf16 %s, %s, %s, %s' % (vr(acc, 16), vr(A + 4 * slot, 4), vr(BB + 4 * (i % NB), 4),
                                                          '0' if s == 0 else vr(acc, 16)))
    a('s_lshl_b32 s3, s%d, 3' % S_RB)
    a('s_add_u32 s3, s3, s%d' % S_W)
    a('s_lshl_b32 s3, s3, 3')
    a('s_add_u32 s3, s3, s%d' % S_J)
    a('s_lshl_b32 s3, s3, 13')
    a('s_add_u32 s3, s3, 0x%x' % WS_P)
    a('s_add_u32 s43, s3, 4096')
    for nt in range(2):
        for mt in range(2):
            acc = D2 + 16 * (2 * nt + mt)
            for k in range(8):
                a('v_cvt_pk_bf16_f32 v%d, v%d, v%d' % (acc + k, acc + 2 * k, acc + 2 * k + 1))
            for hf in range(2):
                a('buffer_store_dwordx4 %s, v2, %s, %s offen offset:%d' % (vr(acc + 4 * hf, 4), srd(S_WS), 's3' if nt == 0 else 's43',
                                                                          (mt * 2 + hf) * 1024))


def w2load(a, ns, reg):
    nt, s = ns
    hi = (s // 4) * 4096
    base = 's52' if nt == 0 else 's53'
    if hi:
        a('s_add_u32 s54, %s, %d' % (base, hi))
        base = 's54'
    a('buffer_load_dwordx4 %s, v2, %s, %s offen offset:%d' % (vr(reg, 4), srd(S_WS), base, (s % 4) * 1024))


def phase6(a):
    a('s_and_b32 s48, s%d, 1' % S_W)
    a('s_bfe_u32 s49, s%d, 0x10001' % S_W)
    a('s_lshr_b32 s50, s%d, 2' % S_W)
    a('s_lshl_b32 s3, s%d, 3' % S_RB)
    a('s_add_u32 s3, s3, s%d' % S_J)
    a('s_lshl_b32 s3, s3, 16')
    a('s_lshl_b32 s43, s%d, 10' % S_W)
    a('s_add_u32 s3, s3, s43')
    a('s_add_u32 s3, s3, 0x%x' % WS_P)
    for src in range(8):
        a('buffer_load_dwordx4 %s, v2, %s, s3 offen' % (vr(16 + 4 * src, 4), srd(S_WS)))
        if src < 7: a('s_add_u32 s3, s3, 8192')
    q_frag_off(a, WS_H, 's50', 's49', 's48', 's3')
    a('buffer_load_dwordx4 v[8:11], v2, %s, s3 offen' % srd(S_WS))
    for src in range(8):
        a('s_waitcnt vmcnt(%d)' % (8 - src))
        for k in range(4):
            r = 16 + 4 * src + k
            if src == 0:
                a('v_lshlrev_b32 v%d, 16, v%d' % (48 + 2 * k, r))
                a('v_and_b32 v%d, 0xffff0000, v%d' % (49 + 2 * k, r))
            else:
                a('v_lshlrev_b32 v%d, 16, v%d' % (56 + 2 * k, r))
                a('v_and_b32 v%d, 0xffff0000, v%d' % (57 + 2 * k, r))
        if src:
            for k in range(8): a('v_add_f32 v%d, v%d, v%d' % (48 + k, 48 + k, 56 + k))
    a('s_waitcnt vmcnt(0)')
    for k in range(4):
        a('v_lshlrev_b32 v%d, 16, v%d' % (56 + 2 * k, 8 + k))
        a('v_and_b32 v%d, 0xffff0000, v%d' % (57 + 2 * k, 8 + k))
    for k in range(8): a('v_add_f32 v%d, v%d, v%d' % (48 + k, 48 + k, 56 + k))
    for k in range(4): a('v_cvt_pk_bf16_f32 v%d, v%d, v%d' % (8 + k, 48 + 2 * k, 49 + 2 * k))
    a('v_permlane32_swap_b32 v8, v10')
    a('v_permlane32_swap_b32 v9, v11')
    a('v_and_b32 v3, 31, v1')
    a('v_lshrrev_b32 v4, 5, v1')
    a('v_lshlrev_b32 v3, 10, v3')
    a('v_lshl_add_u32 v3, v4, 4, v3')
    a('s_lshl_b32 s3, s%d, 1' % S_RB)
    a('s_add_u32 s3, s3, s49')
    a('s_lshl_b32 s3, s3, 15')
    a('s_lshl_b32 s43, s%d, 7' % S_J)
    a('s_add_u32 s3, s3, s43')
    a('s_lshl_b32 s43, s50, 6')
    a('s_add_u32 s3, s3, s43')
    a('s_lshl_b32 s43, s48, 5')
    a('s_add_u32 s3, s3, s43')
    a('buffer_store_dwordx4 v[8:11], v3, %s, s3 offen' % srd(S_OUT))


HEADER = open('cdna_kernels/%s.s.ref' % NAME).read().split('; Override launch')[0]


def kernel_wrap(name, body):
    return ('.globl %s\n.p2align 8\n.type %s,@function\n%s:\n' % (name, name, name)) + body


def desc(name, vgpr=256):
    return ('.amdhsa_kernel %s\n  .amdhsa_next_free_vgpr %d\n  .amdhsa_next_free_sgpr 102\n  .amdhsa_accum_offset %d\n'
            '  .amdhsa_group_segment_fixed_size 0\n  .amdhsa_kernarg_size 96\n  .amdhsa_user_sgpr_count 2\n'
            '  .amdhsa_user_sgpr_kernarg_segment_ptr 1\n  .amdhsa_system_sgpr_workgroup_id_x 1\n.end_amdhsa_kernel\n') % (name, vgpr, (vgpr + 3) // 4 * 4)


def gen_split(force_slow=False, upto=5):
    ks = []
    specs = [
        ('k1_kernel', ['x', 'wq', 'wkv', 'ws'], lambda a: phase1(a), 163840),
        ('k2_kernel', ['ws'], lambda a: phase2(a, force_slow), 131072),
        ('k3_kernel', ['x', 'ws'], phase3, 65536),
        ('k4_kernel', ['b1', 'ws'], phase45, 98304),
        (NAME + '_kernel', ['out', 'ws'], phase6, 0),
    ]
    specs = specs[:upto - 0] if upto < 5 else specs
    text = HEADER
    for n, _, _, lds in specs:
        text += '; @launch kernel=%s grid=(256,1,1) block=(512,1,1) lds=%d\n' % (n, lds)
    text += '.amdgcn_target "amdgcn-amd-amdhsa--gfx950"\n.text\n'
    for n, srds, fn, lds in specs:
        a = Asm()
        end = 'END_' + n
        setup(a, end, srds)
        fn(a)
        a('s_waitcnt vmcnt(0)')
        a.label(end)
        a('s_endpgm')
        text += kernel_wrap(n, a.text())
    text += '.section .rodata,"a"\n'
    for n, _, _, _ in specs:
        text += '.p2align 6\n' + desc(n)
    return text


if __name__ == '__main__':
    out = sys.argv[1] if len(sys.argv) > 1 else 'cdna_kernels/%s.s' % NAME
    mode = sys.argv[2] if len(sys.argv) > 2 else 'split'
    if mode == 'split':
        t = gen_split()
    elif mode == 'slow':
        t = gen_split(force_slow=True)
    open(out, 'w').write(t)
    print('wrote', out, len(t))
```

```python
import sys, os
sys.path.insert(0, os.path.dirname(__file__))
from asmlib import Asm

NAME = 'sequential_preLN__grouped_kv_mqa__dense_activation_mish__prompt'

WS_KV = 0x0
WS_KMAX = 0x20000
WS_FLAGS = 0x30000
WS_Q = 0x40000
WS_WO = 0x240000
WS_W1 = 0x2C0000
WS_W2 = 0x480000
WS_O = 0x640000
WS_H = 0x840000
WS_P = 0xB00000
WS_STAMP = 0x1B00000
WS_SIZE = 0x1E00000
STAMPS = False
STAMP_V = 250

S_X, S_WQ, S_WKV, S_WO, S_W1, S_B1, S_W2, S_OUT, S_WS = 4, 8, 12, 16, 20, 24, 28, 32, 36
S_J, S_RB, S_W = 40, 41, 42
LOG2E = 1.4426950408889634


def f2u(x):
    import struct
    return struct.unpack('<I', struct.pack('<f', x))[0]


def srd(r):
    return 's[%d:%d]' % (r, r + 3)


def vr(r, n=1):
    return 'v%d' % r if n == 1 else 'v[%d:%d]' % (r, r + n - 1)


def stamp(a, idx):
    if not STAMPS: return
    a('s_waitcnt lgkmcnt(0)')
    a('s_memtime s[96:97]')
    a('s_memrealtime s[98:99]')
    a('s_waitcnt lgkmcnt(0)')
    a('v_writelane_b32 v%d, s96, %d' % (STAMP_V, idx))
    a('v_writelane_b32 v%d, s98, %d' % (STAMP_V, idx + 32))


def stamp_flush(a, kidx):
    if not STAMPS: return
    a('s_lshl_b32 s3, s2, 11')
    a('s_lshl_b32 s43, s%d, 8' % S_W)
    a('s_add_u32 s3, s3, s43')
    a('s_add_u32 s3, s3, 0x%x' % (WS_STAMP + kidx * 0x80000))
    a('v_lshlrev_b32 v3, 2, v1')
    a('buffer_store_dword v%d, v3, %s, s3 offen' % (STAMP_V, srd(S_WS)))


def mk_srd(a, d, p, size):
    a('s_mov_b32 s%d, s%d' % (d, p))
    a('s_mov_b32 s%d, s%d' % (d + 1, p + 1))
    a('s_mov_b32 s%d, 0x%x' % (d + 2, size))
    a('s_mov_b32 s%d, 0x20000' % (d + 3))


def setup(a, endlabel, srds):
    a('s_cmp_ge_u32 s2, 256')
    a('s_cbranch_scc1 %s' % endlabel)
    a('s_load_dwordx16 s[64:79], s[0:1], 0')
    a('s_load_dwordx8 s[80:87], s[0:1], 64')
    a('v_lshrrev_b32 v2, 6, v0')
    a('v_and_b32 v1, 63, v0')
    a('v_readfirstlane_b32 s%d, v2' % S_W)
    a('v_lshlrev_b32 v2, 4, v1')
    a('s_lshr_b32 s%d, s2, 3' % S_J)
    a('s_and_b32 s%d, s%d, 7' % (S_J, S_J))
    a('s_and_b32 s%d, s2, 7' % S_RB)
    a('s_lshl_b32 s%d, s%d, 2' % (S_RB, S_RB))
    a('s_lshr_b32 s3, s2, 6')
    a('s_add_u32 s%d, s%d, s3' % (S_RB, S_RB))
    a('s_waitcnt lgkmcnt(0)')
    tab = {'x': (S_X, 64, 2048 * 512 * 2), 'wq': (S_WQ, 66, 512 * 512 * 2), 'wo': (S_WO, 72, 512 * 512 * 2),
           'w1': (S_W1, 76, 512 * 1792 * 2), 'b1': (S_B1, 78, 1792 * 2), 'w2': (S_W2, 80, 1792 * 512 * 2),
           'out': (S_OUT, 82, 2048 * 512 * 2), 'ws': (S_WS, 86, WS_SIZE)}
    for n in srds:
        if n == 'wkv':
            a('s_bitcmp1_b32 s%d, 0' % S_J)
            a('s_cselect_b32 s%d, s70, s68' % S_WKV)
            a('s_cselect_b32 s%d, s71, s69' % (S_WKV + 1))
            a('s_mov_b32 s%d, 0x%x' % (S_WKV + 2, 512 * 16 * 2))
            a('s_mov_b32 s%d, 0x20000' % (S_WKV + 3))
        else:
            d, p, sz = tab[n]
            mk_srd(a, d, p, sz)


L_WKV, L_TB, L_X, L_WQ = 0, 16384, 32768, 98304


def ln_stats(a, rows, tS, tQ, sbase):
    n = len(rows)
    ONES = 's44'
    for k in range(4):
        for i, r in enumerate(rows):
            if k == 0:
                a('v_dot2_f32_bf16 v%d, v%d, %s, 0' % (tS + i, r, ONES))
                a('v_dot2_f32_bf16 v%d, v%d, v%d, 0' % (tQ + i, r, r))
            else:
                a('v_dot2_f32_bf16 v%d, v%d, %s, v%d' % (tS + i, r + k, ONES, tS + i))
                a('v_dot2_f32_bf16 v%d, v%d, v%d, v%d' % (tQ + i, r + k, r + k, tQ + i))
    for t in (tS, tQ):
        for p in range(n // 2):
            a('v_permlane32_swap_b32 v%d, v%d' % (t + 2 * p, t + 2 * p + 1))
    for t in (tS, tQ):
        for p in range(n // 2):
            a('v_add_f32 v%d, v%d, v%d' % (t + 2 * p, t + 2 * p, t + 2 * p + 1))
    l1 = [2 * p for p in range(n // 2)]
    l2 = []
    pairs = []
    i = 0
    while i < len(l1):
        if i + 1 < len(l1):
            A, B = l1[i], l1[i + 1]
            pairs.append((A, B, False)); l2.append((A, [A, B, A + 1, B + 1])); i += 2
        else:
            A = l1[i]
            pairs.append((A, A + 1, True)); l2.append((A, [A, A, A + 1, A + 1])); i += 1
    for t in (tS, tQ):
        for A, B, self_ in pairs:
            if self_:
                a('v_mov_b32 v%d, v%d' % (t + B, t + A))
    for t in (tS, tQ):
        for A, B, self_ in pairs:
            a('v_permlane16_swap_b32 v%d, v%d' % (t + A, t + B))
    for t in (tS, tQ):
        for A, B, self_ in pairs:
            a('v_add_f32 v%d, v%d, v%d' % (t + A, t + A, t + B))
    for sh in (8, 4, 2, 1):
        for t in (tS, tQ):
            for A, _ in l2:
                a('v_add_f32_dpp v%d, v%d, v%d row_ror:%d row_mask:0xf bank_mask:0xf' % (t + A, t + A, t + A, sh))
    for A, _ in l2:
        a('v_mul_f32 v%d, s45, v%d' % (tS + A, tS + A))
    for A, _ in l2:
        a('v_mul_f32 v%d, v%d, v%d' % (tS + A + 1, tS + A, tS + A))
    for A, _ in l2:
        a('v_fma_f32 v%d, v%d, s45, -v%d' % (tQ + A, tQ + A, tS + A + 1))
    for A, _ in l2:
        a('v_add_f32 v%d, s46, v%d' % (tQ + A, tQ + A))
    for A, _ in l2:
        a('v_rsq_f32 v%d, v%d' % (tQ + A, tQ + A))
    for A, _ in l2:
        a('v_mul_f32_e64 v%d, -v%d, v%d' % (tS + A, tS + A, tQ + A))
    for A, rws in l2:
        seen = set()
        for lr, ri in enumerate(rws):
            if ri in seen: continue
            seen.add(ri)
            a('v_readlane_b32 s%d, v%d, %d' % (sbase + 2 * ri, tQ + A, 16 * lr))
            a('v_readlane_b32 s%d, v%d, %d' % (sbase + 2 * ri + 1, tS + A, 16 * lr))


def ln_apply(a, r, sp, t):
    for k in range(4):
        a('v_lshlrev_b32 v%d, 16, v%d' % (t + 2 * k, r + k))
        a('v_and_b32 v%d, 0xffff0000, v%d' % (t + 2 * k + 1, r + k))
    for k in range(4):
        a('v_pk_fma_f32 v[%d:%d], v[%d:%d], s[%d:%d], s[%d:%d] op_sel:[0,0,1] op_sel_hi:[1,0,1]' %
          (t + 2 * k, t + 2 * k + 1, t + 2 * k, t + 2 * k + 1, sp, sp + 1, sp, sp + 1))
    for k in range(4):
        a('v_cvt_pk_bf16_f32 v%d, v%d, v%d' % (r + k, t + 2 * k, t + 2 * k + 1))


def dma(a, voff, srdr, soff_expr, m0_expr):
    a('s_mov_b32 m0, %s' % m0_expr)
    a('buffer_load_dwordx4 v%d, %s, %s offen lds' % (voff, srd(srdr), soff_expr))


def phase1(a, store_q=True):
    XR = 32
    TS, TQ, TT = 8, 16, 24
    a('s_mov_b32 s44, 0x3f803f80')
    a('s_mov_b32 s45, 0x%x' % f2u(1.0 / 512))
    a('s_mov_b32 s46, 0x%x' % f2u(1e-5))
    a('s_lshr_b32 s47, s%d, 1' % S_J)
    a('s_lshl_b32 s47, s47, 4')
    a('s_lshl_b32 s88, s%d, 1' % S_W)
    a('s_add_u32 s88, s88, s47')
    a('s_add_u32 s89, s88, 1')
    a('s_mul_i32 s3, s%d, 6' % S_W)
    for i in range(6):
        a('s_add_u32 s%d, s3, %d' % (90 + i, i))
        a('s_add_u32 s43, s%d, 16' % (90 + i))
        a('s_cmp_lt_u32 s%d, s47' % (90 + i))
        a('s_cselect_b32 s%d, s%d, s43' % (90 + i, 90 + i))
    a('s_lshl_b32 s48, s%d, 16' % S_RB)
    def xload(i):
        a('s_lshl_b32 s43, s%d, 10' % (88 + i))
        a('s_add_u32 s43, s43, s48')
        a('buffer_load_dwordx4 %s, v2, %s, s43 offen' % (vr(XR + 4 * i, 4), srd(S_X)))
    xload(0); xload(1)
    a('s_lshl_b32 s43, s%d, 11' % S_W)
    a('s_mov_b32 m0, s43')
    a('buffer_load_dwordx4 v2, %s, s43 offen lds' % srd(S_WKV))
    a('buffer_load_dwordx4 v2, %s, s43 offen offset:1024 lds' % srd(S_WKV))
    for i in range(2, 8): xload(i)
    a('v_lshrrev_b32 v3, 3, v1')
    a('v_and_b32 v4, 7, v1')
    a('v_lshlrev_b32 v5, 1, v3')
    a('v_and_b32 v5, 4, v5')
    a('v_xor_b32 v4, v4, v5')
    a('v_lshlrev_b32 v4, 4, v4')
    a('v_lshl_add_u32 v5, v3, 10, v4')
    a('s_lshl_b32 s49, s%d, 16' % S_W)
    a('s_lshl_b32 s43, s%d, 7' % S_J)
    a('s_add_u32 s49, s49, s43')
    a('s_lshl_b32 s50, s%d, 13' % S_W)
    a('s_add_u32 s50, s50, %d' % L_WQ)
    for i in range(8):
        a('s_mov_b32 m0, s50')
        a('s_add_u32 s50, s50, 1024')
        a('buffer_load_dwordx4 v5, %s, s49 offen lds' % srd(S_WQ))
        if i < 7: a('s_add_u32 s49, s49, 8192')
    a('s_cmp_lt_u32 s2, 112')
    a('s_cbranch_scc1 L_tb_w1')
    a('s_cmp_lt_u32 s2, 224')
    a('s_cbranch_scc1 L_tb_w2')
    a('s_sub_u32 s3, s2, 224')
    a('s_mov_b32 s52, s72'); a('s_mov_b32 s53, s73'); a('s_mov_b32 s54, 0x%x' % (512 * 512 * 2))
    a('s_mov_b32 s56, 1024')
    a('s_and_b32 s60, s3, 3'); a('s_lshr_b32 s61, s3, 2')
    a('s_mov_b32 s59, %d' % (32 * 1024))
    a('s_mov_b32 s62, 0x%x' % WS_WO)
    a('s_branch L_tb_go')
    a.label('L_tb_w1')
    a('s_mov_b32 s52, s76'); a('s_mov_b32 s53, s77'); a('s_mov_b32 s54, 0x%x' % (512 * 1792 * 2))
    a('s_mov_b32 s56, 3584')
    a('s_and_b32 s60, s2, 3'); a('s_lshr_b32 s61, s2, 2')
    a('s_mov_b32 s59, %d' % (32 * 1024))
    a('s_mov_b32 s62, 0x%x' % WS_W1)
    a('s_branch L_tb_go')
    a.label('L_tb_w2')
    a('s_sub_u32 s3, s2, 112')
    a('s_mov_b32 s52, s80'); a('s_mov_b32 s53, s81'); a('s_mov_b32 s54, 0x%x' % (1792 * 512 * 2))
    a('s_mov_b32 s56, 1024')
    a('s_lshr_b32 s60, s3, 3'); a('s_and_b32 s61, s3, 7')
    a('s_mov_b32 s59, %d' % (112 * 1024))
    a('s_mov_b32 s62, 0x%x' % WS_W2)
    a.label('L_tb_go')
    a('s_mov_b32 s55, 0x20000')
    a('s_lshl_b32 s3, s60, 7')
    a('s_lshl_b32 s43, s%d, 4' % S_W)
    a('s_add_u32 s3, s3, s43')
    a('s_mul_i32 s57, s3, s56')
    a('s_lshl_b32 s3, s61, 7')
    a('s_add_u32 s57, s57, s3')
    a('s_lshl_b32 s3, s61, 1')
    a('s_mul_i32 s58, s3, s59')
    a('s_add_u32 s58, s58, s62')
    a('s_lshl_b32 s3, s60, 3')
    a('s_add_u32 s3, s3, s%d' % S_W)
    a('s_lshl_b32 s3, s3, 10')
    a('s_add_u32 s58, s58, s3')
    a('v_mul_lo_u32 v6, v3, s56')
    a('v_add_u32 v6, v6, v4')
    a('s_lshl_b32 s3, s%d, 11' % S_W)
    a('s_add_u32 s3, s3, %d' % L_TB)
    a('s_mov_b32 m0, s3')
    a('s_lshl_b32 s43, s56, 3')
    a('buffer_load_dwordx4 v6, s[52:55], s57 offen lds')
    a('s_add_u32 s3, s3, 1024')
    a('s_add_u32 s57, s57, s43')
    a('s_mov_b32 m0, s3')
    a('s_nop 0')
    a('buffer_load_dwordx4 v6, s[52:55], s57 offen lds')
    stamp(a, 1)
    a('s_waitcnt vmcnt(18)')
    stamp(a, 2)
    SB = 72
    ln_stats(a, [XR, XR + 4], TS, TQ, SB)
    def xstore(i):
        a('s_lshl_b32 s3, s%d, 10' % (88 + i))
        a('s_and_b32 s43, s%d, 15' % (88 + i))
        a('s_lshl_b32 s43, s43, 4')
        a('s_add_u32 s3, s3, s43')
        a('s_add_u32 s3, s3, %d' % L_X)
        a('v_xor_b32 v7, s3, v2')
        a('ds_write_b128 v7, %s' % vr(XR + 4 * i, 4))
    for i in range(2):
        ln_apply(a, XR + 4 * i, SB + 2 * i, TT)
        xstore(i)
    a('s_waitcnt vmcnt(16) lgkmcnt(0)')
    stamp(a, 3)
    a('s_barrier')
    stamp(a, 4)
    a('s_cmp_lg_u32 s%d, 0' % S_W)
    a('s_cbranch_scc1 L_kv_done')
    KW, KX = 64, 128
    a('v_lshrrev_b32 v8, 4, v1')
    a('v_and_b32 v9, 15, v1')
    a('v_lshlrev_b32 v10, 8, v8')
    a('v_lshl_add_u32 v10, v9, 3, v10')
    a('v_xor_b32 v11, v8, v9')
    a('v_lshlrev_b32 v11, 4, v11')
    a('v_add_u32 v12, s47, v9')
    a('v_lshlrev_b32 v12, 10, v12')
    a('v_add_u32 v12, %d, v12' % L_X)
    a('v_add_u32 v12, v12, v11')
    a('v_xor_b32 v13, 64, v12')
    a('v_xor_b32 v14, 0x80, v12')
    a('v_xor_b32 v15, 0xc0, v12')
    def kvload(ks):
        a('ds_read_b64_tr_b16 %s, v10 offset:%d' % (vr(KW + 4 * ks, 2), 1024 * ks))
        a('ds_read_b64_tr_b16 %s, v10 offset:%d' % (vr(KW + 4 * ks + 2, 2), 1024 * ks + 128))
        a('ds_read_b128 %s, v%d offset:%d' % (vr(KX + 4 * ks, 4), 12 + ks % 4, (ks // 4) * 256))
    for ks in range(4): kvload(ks)
    a('s_bitcmp1_b32 s%d, 0' % S_J)
    a('s_cbranch_scc1 L_kv_v')
    for var in (0, 1):
        if var: a.label('L_kv_v'); a.fence(4)
        for ks in range(16):
            if ks + 4 < 16: kvload(ks + 4)
            a('s_waitcnt lgkmcnt(%d)' % (3 * (min(16, ks + 5) - (ks + 1))))
            acc = 16 + 4 * (ks % 2)
            A, B = (KW + 4 * ks, KX + 4 * ks) if var == 0 else (KX + 4 * ks, KW + 4 * ks)
            a('v_mfma_f32_16x16x32_bf16 %s, %s, %s, %s' % (vr(acc, 4), vr(A, 4), vr(B, 4), '0' if ks < 2 else vr(acc, 4)))
        for k in range(4):
            a('v_add_f32 v%d, v%d, v%d' % (16 + k, 16 + k, 20 + k))
        a('v_cvt_pk_bf16_f32 v16, v16, v17')
        a('v_cvt_pk_bf16_f32 v17, v18, v19')
        a('v_and_b32 v18, 1, v8')
        a('v_lshlrev_b32 v18, %d, v18' % (9 if var == 0 else 8))
        a('v_lshl_add_u32 v18, v9, 4, v18')
        a('v_lshrrev_b32 v19, 1, v8')
        a('v_lshl_add_u32 v18, v19, 3, v18')
        a('s_lshl_b32 s3, s%d, 1' % S_RB)
        a('s_lshr_b32 s43, s47, 5')
        a('s_add_u32 s3, s3, s43')
        a('s_lshl_b32 s3, s3, 11')
        a('s_and_b32 s43, s47, 16')
        if var == 0:
            a('s_lshl_b32 s43, s43, 4')
        else:
            a('s_lshl_b32 s43, s43, 5')
            a('s_add_u32 s43, s43, 1024')
        a('s_add_u32 s3, s3, s43')
        if WS_KV: a('s_add_u32 s3, s3, 0x%x' % WS_KV)
        a('buffer_store_dwordx2 v[16:17], v18, %s, s3 offen' % srd(S_WS))
        if var == 0:
            a('v_dot2_f32_bf16 v20, v16, v16, 0')
            a('v_dot2_f32_bf16 v20, v17, v17, v20')
            a('v_mov_b32 v21, v20')
            a('v_permlane32_swap_b32 v20, v21')
            a('v_add_f32 v20, v20, v21')
            a('v_mov_b32 v21, v20')
            a('v_permlane16_swap_b32 v20, v21')
            a('v_add_f32 v20, v20, v21')
            for sh in (8, 4, 2, 1):
                a('v_max_f32_dpp v20, v20, v20 row_ror:%d row_mask:0xf bank_mask:0xf' % sh)
            a('s_lshl_b32 s3, s%d, 2' % S_RB)
            a('s_lshr_b32 s43, s%d, 1' % S_J)
            a('s_add_u32 s3, s3, s43')
            a('s_lshl_b32 s3, s3, 2')
            a('s_add_u32 s3, s3, 0x%x' % WS_KMAX)
            a('v_mov_b32 v21, 0')
            a('s_mov_b64 exec, 1')
            a('buffer_store_dword v20, v21, %s, s3 offen' % srd(S_WS))
            a('s_mov_b64 exec, -1')
            a('s_branch L_kv_done')
    a.label('L_kv_done')
    a.fence(4)
    stamp(a, 5)
    a('s_waitcnt vmcnt(10)')
    stamp(a, 6)
    rows = [XR + 4 * i for i in range(2, 8)]
    ln_stats(a, rows, TS, TQ, SB)
    for i in range(2, 8):
        ln_apply(a, XR + 4 * i, SB + 2 * (i - 2), TT)
        xstore(i)
    stamp(a, 7)
    a('s_waitcnt vmcnt(0) lgkmcnt(0)')
    stamp(a, 8)
    a('s_barrier')
    stamp(a, 9)
    a('s_and_b32 s48, s%d, 1' % S_W)
    a('s_bfe_u32 s49, s%d, 0x10001' % S_W)
    a('s_lshr_b32 s50, s%d, 2' % S_W)
    a('v_lshrrev_b32 v8, 5, v1')
    a('v_bfe_u32 v9, v1, 4, 1')
    a('v_bfe_u32 v10, v1, 2, 2')
    a('v_and_b32 v11, 3, v1')
    a('v_lshrrev_b32 v12, 1, v11')
    a('v_lshl_add_u32 v12, v9, 1, v12')
    a('v_lshrrev_b32 v13, 1, v10')
    a('v_lshlrev_b32 v13, 2, v13')
    a('v_xor_b32 v12, v12, v13')
    a('v_lshlrev_b32 v12, 4, v12')
    a('v_and_b32 v11, 1, v11')
    a('v_lshl_add_u32 v12, v11, 3, v12')
    a('v_lshl_add_u32 v13, v8, 3, v10')
    a('v_lshl_add_u32 v13, v13, 7, v12')
    a('s_lshl_b32 s3, s50, 15')
    a('s_lshl_b32 s43, s48, 6')
    a('s_add_u32 s3, s3, %d' % L_WQ)
    a('v_xor_b32 v13, s43, v13')
    a('v_add_u32 v13, s3, v13')
    a('v_lshl_add_u32 v14, v8, 2, v10')
    a('v_lshl_add_u32 v14, v14, 7, v12')
    a('s_lshl_b32 s3, s%d, 11' % S_W)
    a('s_add_u32 s3, s3, %d' % L_TB)
    a('v_add_u32 v14, s3, v14')
    a('v_xor_b32 v15, 64, v14')
    for nt in range(2):
        a('ds_read_b64_tr_b16 %s, v%d' % (vr(192 + 4 * nt, 2), 14 + nt))
        a('ds_read_b64_tr_b16 %s, v%d offset:1024' % (vr(194 + 4 * nt, 2), 14 + nt))
    a('v_and_b32 v16, 31, v1')
    a('v_and_b32 v17, 15, v1')
    a('v_xor_b32 v17, v17, v8')
    a('v_lshlrev_b32 v17, 4, v17')
    a('v_lshl_add_u32 v17, v16, 10, v17')
    a('s_lshl_b32 s3, s49, 15')
    a('s_lshl_b32 s43, s50, 9')
    a('s_add_u32 s3, s3, s43')
    a('s_add_u32 s3, s3, %d' % L_X)
    a('v_add_u32 v24, s3, v17')
    for q in range(1, 8):
        a('v_xor_b32 v%d, %d, v24' % (24 + q, 32 * q))
    QA, QB, QD = 64, 128, 32
    def qload(s):
        a('ds_read_b64_tr_b16 %s, v13 offset:%d' % (vr(QA + 4 * s, 2), 2048 * s))
        a('ds_read_b64_tr_b16 %s, v13 offset:%d' % (vr(QA + 4 * s + 2, 2), 2048 * s + 512))
        a('ds_read_b128 %s, v%d offset:%d' % (vr(QB + 4 * s, 4), 24 + s % 8, (s // 8) * 256))
    PF = 4
    a('s_waitcnt lgkmcnt(0)')
    for s in range(PF): qload(s)
    a('buffer_store_dwordx4 %s, v2, %s, s58 offen' % (vr(192, 4), srd(S_WS)))
    a('s_add_u32 s58, s58, s59')
    a('buffer_store_dwordx4 %s, v2, %s, s58 offen' % (vr(196, 4), srd(S_WS)))
    for s in range(16):
        if s + PF < 16: qload(s + PF)
        rem = min(16, s + PF + 1) - (s + 1)
        a('s_waitcnt lgkmcnt(%d)' % (3 * rem))
        a('v_mfma_f32_32x32x16_bf16 %s, %s, %s, %s' % (vr(QD, 16), vr(QA + 4 * s, 4), vr(QB + 4 * s, 4), '0' if s == 0 else vr(QD, 16)))
    stamp(a, 10)
    a('s_lshl_b32 s3, s%d, 11' % S_W)
    a('v_add_u32 v8, s3, v2')
    a('s_xor_b32 s3, s3, %d' % (4 << 11))
    a('v_add_u32 v9, s3, v2')
    a('s_cmp_eq_u32 s50, 0')
    a('s_cbranch_scc0 L_q_kh1')
    a('ds_write_b128 v8, %s' % vr(QD + 8, 4))
    a('ds_write_b128 v8, %s offset:1024' % vr(QD + 12, 4))
    a('s_branch L_q_x')
    a.label('L_q_kh1')
    a.fence(12)
    a('ds_write_b128 v8, %s' % vr(QD, 4))
    a('ds_write_b128 v8, %s offset:1024' % vr(QD + 4, 4))
    for k in range(8):
        a('v_mov_b32 v%d, v%d' % (QD + k, QD + 8 + k))
    a.label('L_q_x')
    a.fence(4)
    a('s_waitcnt lgkmcnt(0)')
    a('s_barrier')
    a('ds_read_b128 %s, v9' % vr(48, 4))
    a('ds_read_b128 %s, v9 offset:1024' % vr(52, 4))
    a('s_mov_b32 s3, 0x%x' % f2u(0.25 * LOG2E))
    a('s_waitcnt lgkmcnt(0)')
    for k in range(8):
        a('v_add_f32 v%d, v%d, v%d' % (QD + k, QD + k, 48 + k))
    for k in range(8):
        a('v_mul_f32 v%d, s3, v%d' % (QD + k, QD + k))
    for k in range(4):
        a('v_cvt_pk_bf16_f32 v%d, v%d, v%d' % (QD + k, QD + 2 * k, QD + 2 * k + 1))
    if store_q:
        q_frag_off(a, WS_Q, 's48', 's49', 's50', 's3')
        a('buffer_store_dwordx4 %s, v2, %s, s3 offen' % (vr(QD, 4), srd(S_WS)))


def q_frag_off(a, base, nt, mt, kh, dst):
    a('s_lshl_b32 %s, s%d, 1' % (dst, S_RB))
    a('s_add_u32 %s, %s, %s' % (dst, dst, mt))
    a('s_lshl_b32 %s, %s, 3' % (dst, dst))
    a('s_add_u32 %s, %s, s%d' % (dst, dst, S_J))
    a('s_lshl_b32 %s, %s, 1' % (dst, dst))
    a('s_add_u32 %s, %s, %s' % (dst, dst, nt))
    a('s_lshl_b32 %s, %s, 1' % (dst, dst))
    a('s_add_u32 %s, %s, %s' % (dst, dst, kh))
    a('s_lshl_b32 %s, %s, 10' % (dst, dst))
    a('s_add_u32 %s, %s, 0x%x' % (dst, dst, base))


LIMIT2 = 60.0 * 60.0


def attn_regs():
    R = {}
    R['Q'] = 4
    R['S0'] = 8
    R['S1'] = 24
    R['O'] = 40
    R['P'] = 56
    R['K0'] = 64; R['K1'] = 68
    R['V0'] = 72; R['V1'] = 80
    R['VA'] = 3
    return R


def attention_main(a, R, unroll=2):
    Q, O, P = R['Q'], R['O'], R['P']
    S = [R['S0'], R['S1']]; K = [R['K0'], R['K1']]; V = [R['V0'], R['V1']]
    VA = R['VA']
    KA = 2
    MASK = 's[60:61]'
    body = []

    def rdK(buf, off):
        a('ds_read_b128 %s, v%d offset:%d' % (vr(K[buf], 4), R['KAD'], off))

    def rdV(buf, off):
        a('s_mov_b64 exec, %s' % MASK)
        a('ds_read_b128 %s, v%d offset:%d' % (vr(V[buf], 4), VA, off + 1024))
        a('ds_read_b128 %s, v%d offset:%d' % (vr(V[buf] + 4, 4), VA, off + 1024 + 512))
        a('s_mov_b64 exec, -1')

    rdK(0, 0); rdK(1, 2048); rdV(0, 0)
    for k in range(16): a('v_mov_b32 v%d, 0' % (O + k))
    a('s_waitcnt lgkmcnt(3)')
    a('v_mfma_f32_32x32x16_bf16 %s, %s, %s, 0' % (vr(S[0], 16), vr(K[0], 4), vr(Q, 4)))
    NT = 64
    U = 8
    a('s_mov_b32 s62, %d' % (NT // U))
    a.fence(12)
    a.raw('.p2align 6')
    a.label('L_attn_loop')

    def tile(u, last_iter_guard=False):
        c, n = u % 2, (u + 1) % 2
        a('s_waitcnt lgkmcnt(2)')
        a('v_mfma_f32_32x32x16_bf16 %s, %s, %s, 0' % (vr(S[n], 16), vr(K[n], 4), vr(Q, 4)))
        for k in range(0, 4): a('v_exp_f32 v%d, v%d' % (S[c] + k, S[c] + k))
        rdK(c, (u + 2) * 2048)
        for k in range(4, 8): a('v_exp_f32 v%d, v%d' % (S[c] + k, S[c] + k))
        rdV(n, (u + 1) * 2048)
        for k in range(4): a('v_cvt_pk_bf16_f32 v%d, v%d, v%d' % (P + k, S[c] + 2 * k, S[c] + 2 * k + 1))
        for k in range(8, 10): a('v_exp_f32 v%d, v%d' % (S[c] + k, S[c] + k))
        a('s_waitcnt lgkmcnt(3)')
        a('v_mfma_f32_32x32x16_bf16 %s, %s, %s, %s' % (vr(O, 16), vr(V[c], 4), vr(P, 4), vr(O, 16)))
        for k in range(10, 16): a('v_exp_f32 v%d, v%d' % (S[c] + k, S[c] + k))
        for k in range(4, 8): a('v_cvt_pk_bf16_f32 v%d, v%d, v%d' % (P + k, S[c] + 2 * k, S[c] + 2 * k + 1))
        a('s_nop 1')
        a('v_mfma_f32_32x32x16_bf16 %s, %s, %s, %s' % (vr(O, 16), vr(V[c] + 4, 4), vr(P + 4, 4), vr(O, 16)))

    for u in range(U): tile(u)
    a('v_add_u32 v%d, 0x%x, v%d' % (R['KAD'], U * 2048, R['KAD']))
    a('v_add_u32 v%d, 0x%x, v%d' % (VA, U * 2048, VA))
    a('s_sub_u32 s62, s62, 1')
    a('s_cmp_lg_u32 s62, 0')
    a('s_cbranch_scc1 L_attn_loop')
    a('s_waitcnt lgkmcnt(0)')


def attention_slow(a, R):
    Q, O, P = R['Q'], R['O'], R['P']
    S = R['S0']; K = R['K0']; V = R['V0']; VA = R['VA']
    M, MN, AL, T = R['S1'], R['S1'] + 1, R['S1'] + 2, R['S1'] + 3
    MASK = 's[60:61]'
    for k in range(16): a('v_mov_b32 v%d, 0' % (O + k))
    a('v_mov_b32 v%d, 0xff7fffff' % M)
    a('s_mov_b32 s62, 64')
    a.fence(4)
    a.label('L_attn_slow')
    a('ds_read_b128 %s, v%d' % (vr(K, 4), R['KAD']))
    a('s_mov_b64 exec, %s' % MASK)
    a('ds_read_b128 %s, v%d offset:1024' % (vr(V, 4), VA))
    a('ds_read_b128 %s, v%d offset:1536' % (vr(V + 4, 4), VA))
    a('v_add_u32 v%d, 0x800, v%d' % (VA, VA))
    a('s_mov_b64 exec, -1')
    a('v_add_u32 v%d, 0x800, v%d' % (R['KAD'], R['KAD']))
    a('s_waitcnt lgkmcnt(0)')
    a('v_mfma_f32_32x32x16_bf16 %s, %s, %s, 0' % (vr(S, 16), vr(K, 4), vr(Q, 4)))
    a('v_max_f32 v%d, v%d, v%d' % (MN, S, S + 1))
    for k in range(2, 16, 2):
        a('v_max3_f32 v%d, v%d, v%d, v%d' % (MN, MN, S + k, S + k + 1))
    a('v_mov_b32 v%d, v%d' % (T, MN))
    a('v_permlane32_swap_b32 v%d, v%d' % (MN, T))
    a('v_max3_f32 v%d, v%d, v%d, v%d' % (MN, MN, T, M))
    a('v_sub_f32 v%d, v%d, v%d' % (AL, M, MN))
    a('v_exp_f32 v%d, v%d' % (AL, AL))
    a('v_mov_b32 v%d, v%d' % (M, MN))
    for k in range(16):
        a('v_sub_f32 v%d, v%d, v%d' % (S + k, S + k, MN))
    for k in range(16):
        a('v_exp_f32 v%d, v%d' % (S + k, S + k))
    for k in range(16):
        a('v_mul_f32 v%d, v%d, v%d' % (O + k, O + k, AL))
    for k in range(8):
        a('v_cvt_pk_bf16_f32 v%d, v%d, v%d' % (P + k, S + 2 * k, S + 2 * k + 1))
    a('v_mfma_f32_32x32x16_bf16 %s, %s, %s, %s' % (vr(O, 16), vr(V, 4), vr(P, 4), vr(O, 16)))
    a('v_mfma_f32_32x32x16_bf16 %s, %s, %s, %s' % (vr(O, 16), vr(V + 4, 4), vr(P + 4, 4), vr(O, 16)))
    a('s_sub_u32 s62, s62, 1')
    a('s_cmp_lg_u32 s62, 0')
    a('s_nop 7'); a('s_nop 7')
    a('s_cbranch_scc1 L_attn_slow')


def phase2(a, force_slow=False):
    R = attn_regs(); R['KAD'] = 88
    Q, O = R['Q'], R['O']
    a('s_and_b32 s48, s%d, 1' % S_W)
    a('s_bfe_u32 s49, s%d, 0x10001' % S_W)
    a('s_lshr_b32 s50, s%d, 2' % S_W)
    q_frag_off(a, WS_Q, 's48', 's49', 's50', 's3')
    a('buffer_load_dwordx4 %s, v2, %s, s3 offen' % (vr(Q, 4), srd(S_WS)))
    a('v_lshlrev_b32 v8, 3, v1')
    a('s_mov_b32 s3, 0x%x' % WS_KMAX)
    a('buffer_load_dwordx2 v[10:11], v8, %s, s3 offen' % srd(S_WS))
    a('s_lshl_b32 s3, s%d, 10' % S_W)
    for i in range(16):
        a('s_mov_b32 m0, s3')
        if WS_KV:
            raise NotImplementedError
        a('buffer_load_dwordx4 v2, %s, s3 offen lds' % srd(S_WS))
        a('s_add_u32 s3, s3, 8192')
    a('s_mov_b32 s60, 0x0000ffff')
    a('s_mov_b32 s61, 0x0000ffff')
    a('v_lshrrev_b32 v8, 5, v1')
    a('v_and_b32 v9, 15, v1')
    a('v_lshl_add_u32 v8, v8, 4, v9')
    a('v_lshlrev_b32 v%d, 4, v8' % R['VA'])
    a('v_mov_b32 v%d, v2' % R['KAD'])
    for b in (R['V0'], R['V1']):
        for k in range(8): a('v_mov_b32 v%d, 0x3f803f80' % (b + k))
    a('s_waitcnt vmcnt(16)')
    a('v_max_f32 v10, v10, v11')
    a('v_dot2_f32_bf16 v12, v%d, v%d, 0' % (Q, Q))
    for k in range(1, 4): a('v_dot2_f32_bf16 v12, v%d, v%d, v12' % (Q + k, Q + k))
    a('v_mov_b32 v11, v10')
    a('v_permlane32_swap_b32 v10, v11')
    a('v_max_f32 v10, v10, v11')
    a('v_mov_b32 v11, v10')
    a('v_permlane16_swap_b32 v10, v11')
    a('v_max_f32 v10, v10, v11')
    for sh in (8, 4, 2, 1):
        a('v_max_f32_dpp v10, v10, v10 row_ror:%d row_mask:0xf bank_mask:0xf' % sh)
    a('v_mov_b32 v13, v12')
    a('v_permlane32_swap_b32 v12, v13')
    a('v_add_f32 v12, v12, v13')
    a('v_mul_f32 v12, v12, v10')
    a('s_mov_b32 s3, 0x%x' % f2u(-1.0 if force_slow else LIMIT2))
    a('v_cmp_nle_f32 vcc, v12, s3')
    stamp(a, 1)
    a('s_waitcnt vmcnt(0)')
    stamp(a, 2)
    a('s_barrier')
    stamp(a, 3)
    a('s_cbranch_vccnz L_attn_fb')
    attention_main(a, R)
    a('s_branch L_attn_fin')
    a.label('L_attn_fb')
    a.fence(4)
    attention_slow(a, R)
    a.label('L_attn_fin')
    a.fence(12)
    stamp(a, 4)
    a('v_rcp_f32 v8, v%d' % (O + 8))
    for k in range(8): a('v_mul_f32 v%d, v%d, v8' % (O + k, O + k))
    for k in range(4): a('v_cvt_pk_bf16_f32 v%d, v%d, v%d' % (O + k, O + 2 * k, O + 2 * k + 1))
    q_frag_off(a, WS_O, 's48', 's49', 's50', 's3')
    a('buffer_store_dwordx4 %s, v2, %s, s3 offen' % (vr(O, 4), srd(S_WS)))


def phase3(a):
    A, B, D = 64, 128, 192
    a('s_and_b32 s48, s%d, 1' % S_W)
    a('s_lshr_b32 s49, s%d, 1' % S_W)
    a('s_lshl_b32 s3, s%d, 1' % S_RB)
    a('s_add_u32 s3, s3, s48')
    a('s_lshl_b32 s50, s3, 5')
    a('s_lshl_b32 s43, s49, 3')
    a('s_add_u32 s3, s50, s43')
    a('s_lshl_b32 s3, s3, 10')
    a('s_add_u32 s3, s3, 0x%x' % WS_O)
    a('s_lshl_b32 s51, s%d, 6' % S_J)
    a('s_add_u32 s51, s51, s43')
    a('s_lshl_b32 s51, s51, 10')
    a('s_add_u32 s51, s51, 0x%x' % WS_WO)
    a('s_add_u32 s52, s51, %d' % (32 * 1024))
    for s in range(8):
        o = (s % 4) * 1024
        if s == 4:
            a('s_add_u32 s3, s3, 4096'); a('s_add_u32 s51, s51, 4096'); a('s_add_u32 s52, s52, 4096')
        a('buffer_load_dwordx4 %s, v2, %s, s3 offen offset:%d' % (vr(B + 4 * s, 4), srd(S_WS), o))
        a('buffer_load_dwordx4 %s, v2, %s, s51 offen offset:%d' % (vr(A + 4 * s, 4), srd(S_WS), o))
        a('buffer_load_dwordx4 %s, v2, %s, s52 offen offset:%d' % (vr(A + 32 + 4 * s, 4), srd(S_WS), o))
    a('v_and_b32 v3, 31, v1')
    a('v_lshrrev_b32 v4, 5, v1')
    a('v_lshlrev_b32 v3, 10, v3')
    a('v_lshl_add_u32 v3, v4, 4, v3')
    a('s_lshl_b32 s3, s%d, 1' % S_RB)
    a('s_add_u32 s3, s3, s48')
    a('s_lshl_b32 s3, s3, 15')
    a('s_lshl_b32 s43, s%d, 7' % S_J)
    a('s_add_u32 s3, s3, s43')
    a('s_lshl_b32 s43, s49, 5')
    a('s_add_u32 s53, s3, s43')
    a('buffer_load_dwordx4 v[8:11], v3, %s, s53 offen' % srd(S_X))
    for s in range(8):
        a('s_waitcnt vmcnt(%d)' % (3 * (7 - s) + 1))
        for nt in range(2):
            a('v_mfma_f32_32x32x16_bf16 %s, %s, %s, %s' % (vr(D + 16 * nt, 16), vr(A + 32 * nt + 4 * s, 4), vr(B + 4 * s, 4),
                                                          '0' if s == 0 else vr(D + 16 * nt, 16)))
    a('s_lshl_b32 s3, s48, 15')
    a('s_lshl_b32 s43, s49, 11')
    a('s_add_u32 s3, s3, s43')
    a('v_add_u32 v5, s3, v2')
    for q in range(4):
        a('s_cmp_eq_u32 s49, %d' % q)
        a('s_cbranch_scc1 L_o_skip%d' % q)
        a('ds_write_b128 v5, %s offset:%d' % (vr(D + 8 * q, 4), q * 8192))
        a('ds_write_b128 v5, %s offset:%d' % (vr(D + 8 * q + 4, 4), q * 8192 + 1024))
        a('s_branch L_o_nxt%d' % q)
        a.label('L_o_skip%d' % q)
        a.fence(12)
        for k in range(8): a('v_mov_b32 v%d, v%d' % (16 + k, D + 8 * q + k))
        a.label('L_o_nxt%d' % q)
    a('s_waitcnt lgkmcnt(0)')
    a('s_barrier')
    a('s_lshl_b32 s3, s48, 15')
    a('s_lshl_b32 s43, s49, 13')
    a('s_add_u32 s3, s3, s43')
    for d in range(1, 4):
        a('s_add_u32 s43, s49, %d' % d)
        a('s_and_b32 s43, s43, 3')
        a('s_lshl_b32 s43, s43, 11')
        a('s_add_u32 s43, s43, s3')
        a('v_add_u32 v5, s43, v2')
        a('ds_read_b128 %s, v5' % vr(24 + 8 * (d - 1), 4))
        a('ds_read_b128 %s, v5 offset:1024' % vr(28 + 8 * (d - 1), 4))
    a('s_waitcnt vmcnt(0)')
    a('v_permlane32_swap_b32 v8, v10')
    a('v_permlane32_swap_b32 v9, v11')
    for k in range(4):
        a('v_lshlrev_b32 v%d, 16, v%d' % (48 + 2 * k, 8 + k))
        a('v_and_b32 v%d, 0xffff0000, v%d' % (49 + 2 * k, 8 + k))
    a('s_waitcnt lgkmcnt(0)')
    for k in range(8):
        a('v_add_f32 v%d, v%d, v%d' % (16 + k, 16 + k, 24 + k))
        a('v_add_f32 v%d, v%d, v%d' % (32 + k, 32 + k, 40 + k))
    for k in range(8):
        a('v_add_f32 v%d, v%d, v%d' % (16 + k, 16 + k, 32 + k))
    for k in range(8):
        a('v_add_f32 v%d, v%d, v%d' % (16 + k, 16 + k, 48 + k))
    for k in range(4):
        a('v_cvt_pk_bf16_f32 v%d, v%d, v%d' % (16 + k, 16 + 2 * k, 17 + 2 * k))
    a('s_lshl_b32 s3, s%d, 2' % S_J)
    a('s_add_u32 s3, s3, s49')
    a('s_add_u32 s3, s3, s50')
    a('s_lshl_b32 s3, s3, 10')
    a('s_add_u32 s3, s3, 0x%x' % WS_H)
    a('buffer_store_dwordx4 v[16:19], v2, %s, s3 offen' % srd(S_WS))


L_H, L_ACT, L_ST, L_CS = 0, 65536, 94208, 95232


def phase45(a):
    A = 128
    D1 = 96
    D2 = 32
    BB = 8
    a('s_mov_b32 s44, 0x3f803f80')
    a('s_lshl_b32 s3, s%d, 10' % S_W)
    a('s_lshl_b32 s43, s%d, 16' % S_RB)
    a('s_add_u32 s43, s43, 0x%x' % WS_H)
    a('s_add_u32 s43, s43, s3')
    a('s_cmp_eq_u32 s%d, 7' % S_W)
    a('s_cbranch_scc1 L_g1_now1')
    a('s_mul_i32 s48, s%d, 7' % S_J)
    a('s_add_u32 s48, s48, s%d' % S_W)
    a('s_lshl_b32 s49, s48, 15')
    a('s_add_u32 s49, s49, 0x%x' % WS_W1)
    for ks in range(32):
        if ks and ks % 4 == 0: a('s_add_u32 s49, s49, 4096')
        a('buffer_load_dwordx4 %s, v2, %s, s49 offen offset:%d' % (vr(A + 4 * ks, 4), srd(S_WS), (ks % 4) * 1024))
    a('v_lshrrev_b32 v3, 5, v1')
    a('v_lshlrev_b32 v3, 3, v3')
    a('s_lshl_b32 s50, s48, 6')
    for q in range(4):
        a('buffer_load_dwordx2 %s, v3, %s, s50 offen offset:%d' % (vr(64 + 2 * q, 2), srd(S_B1), 16 * q))
    a.label('L_g1_now1')
    for i in range(8):
        a('s_mov_b32 m0, s3')
        a('s_add_u32 s3, s3, 8192')
        a('buffer_load_dwordx4 v2, %s, s43 offen lds' % srd(S_WS))
        a('s_add_u32 s43, s43, 8192')
    a('s_mul_i32 s52, s%d, %d' % (S_W, 2 * 112))
    a('s_mul_i32 s53, s%d, 14' % S_J)
    a('s_add_u32 s52, s52, s53')
    a('s_lshl_b32 s52, s52, 10')
    a('s_add_u32 s52, s52, 0x%x' % WS_W2)
    a('s_add_u32 s53, s52, %d' % (112 * 1024))
    a('s_cmp_eq_u32 s%d, 7' % S_W)
    a('s_cbranch_scc1 L_g1_stats')
    stamp(a, 1)
    a('s_waitcnt vmcnt(12)')
    stamp(a, 2)
    for ks in range(32):
        for k in range(4):
            c = 72 + k
            a('v_dot2_f32_bf16 v%d, v%d, s44, %s' % (c, A + 4 * ks + k, '0' if ks == 0 else 'v%d' % c))
    a('v_add_f32 v72, v72, v73')
    a('v_add_f32 v74, v74, v75')
    a('v_add_f32 v72, v72, v74')
    a('v_mov_b32 v73, v72')
    a('v_permlane32_swap_b32 v72, v73')
    a('v_add_f32 v72, v72, v73')
    a('s_lshl_b32 s3, s%d, 7' % S_W)
    a('s_add_u32 s3, s3, %d' % L_CS)
    a('v_and_b32 v4, 31, v1')
    a('v_lshlrev_b32 v4, 2, v4')
    a('v_add_u32 v4, s3, v4')
    a('ds_write_b32 v4, v72')
    a('v_lshrrev_b32 v4, 5, v1')
    a('v_lshlrev_b32 v4, 4, v4')
    a('v_add_u32 v4, s3, v4')
    a('s_waitcnt lgkmcnt(0)')
    for q in range(4):
        a('ds_read_b128 %s, v4 offset:%d' % (vr(72 + 4 * q, 4), 32 * q))
    stamp(a, 3)
    a('s_waitcnt vmcnt(0)')
    stamp(a, 4)
    a('s_barrier')
    stamp(a, 5)
    seq = [(ks, mt) for ks in range(32) for mt in range(2)]
    NB = 6
    def bload(i):
        ks, mt = seq[i]
        a('ds_read_b128 %s, v2 offset:%d' % (vr(BB + 4 * (i % NB), 4), L_H + (mt * 32 + ks) * 1024))
    PF = 5
    for i in range(PF): bload(i)
    w2list = [(nt, s) for s in range(14) for nt in range(2)]
    for i, (ks, mt) in enumerate(seq):
        if i + PF < len(seq): bload(i + PF)
        rem = min(len(seq), i + PF + 1) - (i + 1)
        a('s_waitcnt lgkmcnt(%d)' % rem)
        a('v_mfma_f32_32x32x16_bf16 %s, %s, %s, %s' % (vr(D1 + 16 * mt, 16), vr(A + 4 * ks, 4), vr(BB + 4 * (i % NB), 4),
                                                      '0' if ks == 0 else vr(D1 + 16 * mt, 16)))
        if mt == 1 and 1 <= ks <= 28:
            w2load(a, w2list[ks - 1], A + 4 * (ks - 1))
    a('s_branch L_g1_epi')
    a.label('L_g1_stats')
    a.fence(4)
    for i, (nt, s) in enumerate(w2list):
        w2load(a, (nt, s), A + 4 * i)
    a('s_waitcnt vmcnt(28)')
    a('s_barrier')
    for mt in range(2):
        SA, QA = 64 + 8 * mt, 68 + 8 * mt
        for ks0 in range(0, 32, 4):
            for u in range(4):
                a('ds_read_b128 %s, v2 offset:%d' % (vr(BB + 4 * u, 4), L_H + (mt * 32 + ks0 + u) * 1024))
            for u in range(4):
                a('s_waitcnt lgkmcnt(%d)' % (3 - u))
                for k in range(4):
                    first = (ks0 == 0 and u == 0)
                    a('v_dot2_f32_bf16 v%d, v%d, s44, %s' % (SA + k, BB + 4 * u + k, '0' if first else 'v%d' % (SA + k)))
                    a('v_dot2_f32_bf16 v%d, v%d, v%d, %s' % (QA + k, BB + 4 * u + k, BB + 4 * u + k, '0' if first else 'v%d' % (QA + k)))
        for base in (SA, QA):
            a('v_add_f32 v%d, v%d, v%d' % (base, base, base + 1))
            a('v_add_f32 v%d, v%d, v%d' % (base + 2, base + 2, base + 3))
            a('v_add_f32 v%d, v%d, v%d' % (base, base, base + 2))
    for (x, y) in ((64, 72), (68, 76)):
        a('v_permlane32_swap_b32 v%d, v%d' % (x, y))
        a('v_add_f32 v%d, v%d, v%d' % (x, x, y))
    a('s_mov_b32 s45, 0x%x' % f2u(1.0 / 512))
    a('s_mov_b32 s46, 0x%x' % f2u(1e-5))
    a('v_mul_f32 v64, s45, v64')
    a('v_mul_f32 v65, v64, v64')
    a('v_fma_f32 v68, v68, s45, -v65')
    a('v_add_f32 v68, s46, v68')
    a('v_rsq_f32 v68, v68')
    a('v_mul_f32_e64 v69, -v64, v68')
    a('v_lshlrev_b32 v4, 3, v1')
    a('v_add_u32 v4, %d, v4' % L_ST)
    a('ds_write_b64 v4, v[68:69]')
    a.label('L_g1_epi')
    a.fence(12)
    stamp(a, 6)
    a('s_waitcnt lgkmcnt(0)')
    a('s_barrier')
    stamp(a, 7)
    a('s_cmp_eq_u32 s%d, 7' % S_W)
    a('s_cbranch_scc1 L_g1_done')
    a('v_and_b32 v4, 31, v1')
    a('v_lshlrev_b32 v4, 3, v4')
    a('v_add_u32 v4, %d, v4' % L_ST)
    a('ds_read_b64 v[8:9], v4')
    a('ds_read_b64 v[10:11], v4 offset:256')
    for q in range(4):
        for e in range(2):
            a('v_lshlrev_b32 v%d, 16, v%d' % (48 + 4 * q + 2 * e, 64 + 2 * q + e))
            a('v_and_b32 v%d, 0xffff0000, v%d' % (48 + 4 * q + 2 * e + 1, 64 + 2 * q + e))
    a('s_mov_b32 s45, 0x%x' % f2u(LOG2E))
    a('s_lshl_b32 s3, s%d, 11' % S_W)
    a('s_add_u32 s3, s3, %d' % L_ACT)
    a('v_add_u32 v5, s3, v2')
    a('s_waitcnt lgkmcnt(0)')
    for mt in range(2):
        RS, NM = 8 + 2 * mt, 9 + 2 * mt
        T = 12
        for r in range(16):
            d = D1 + 16 * mt + r
            a('v_fma_f32 v%d, v%d, v%d, v%d' % (T + r, 72 + r, NM, 48 + r))
        for r in range(16):
            d = D1 + 16 * mt + r
            a('v_fma_f32 v%d, v%d, v%d, v%d' % (d, d, RS, T + r))
        for g in range(0, 16, 4):
            rs = range(g, g + 4)
            for r in rs: a('v_mul_f32 v%d, s45, v%d' % (T + r, D1 + 16 * mt + r))
            for r in rs: a('v_min_f32 v%d, 0x42000000, v%d' % (T + r, T + r))
            for r in rs: a('v_exp_f32 v%d, v%d' % (T + r, T + r))
            for r in rs: a('v_fma_f32 v%d, v%d, 0.5, 1.0' % (28 + r - g, T + r))
            for r in rs: a('v_fma_f32 v%d, v%d, v%d, 1.0' % (28 + r - g, T + r, 28 + r - g))
            for r in rs: a('v_rcp_f32 v%d, v%d' % (28 + r - g, 28 + r - g))
            for r in rs: a('v_fma_f32 v%d, -v%d, v%d, v%d' % (D1 + 16 * mt + r, D1 + 16 * mt + r, 28 + r - g, D1 + 16 * mt + r))
        for k in range(8):
            a('v_cvt_pk_bf16_f32 v%d, v%d, v%d' % (T + k, D1 + 16 * mt + 2 * k, D1 + 16 * mt + 2 * k + 1))
        a('ds_write_b128 v5, %s offset:%d' % (vr(T, 4), mt * 14 * 1024))
        a('ds_write_b128 v5, %s offset:%d' % (vr(T + 4, 4), mt * 14 * 1024 + 1024))
    a.label('L_g1_done')
    a.fence(4)
    stamp(a, 8)
    a('s_waitcnt vmcnt(0) lgkmcnt(0)')
    stamp(a, 9)
    a('s_barrier')
    stamp(a, 10)
    seq = [(s, mt) for s in range(14) for mt in range(2)]
    def bload2(i):
        s, mt = seq[i]
        a('ds_read_b128 %s, v6 offset:%d' % (vr(BB + 4 * (i % NB), 4), (mt * 14 + s) * 1024))
    a('v_add_u32 v6, %d, v2' % L_ACT)
    for i in range(PF): bload2(i)
    for i, (s, mt) in enumerate(seq):
        if i + PF < len(seq): bload2(i + PF)
        rem = min(len(seq), i + PF + 1) - (i + 1)
        a('s_waitcnt lgkmcnt(%d)' % rem)
        for nt in range(2):
            slot = w2list.index((nt, s))
            acc = D2 + 16 * (2 * nt + mt)
            a('v_mfma_f32_32x32x16_bf16 %s, %s, %s, %s' % (vr(acc, 16), vr(A + 4 * slot, 4), vr(BB + 4 * (i % NB), 4),
                                                          '0' if s == 0 else vr(acc, 16)))
    stamp(a, 11)
    a('s_lshl_b32 s3, s%d, 3' % S_RB)
    a('s_add_u32 s3, s3, s%d' % S_W)
    a('s_lshl_b32 s3, s3, 3')
    a('s_add_u32 s3, s3, s%d' % S_J)
    a('s_lshl_b32 s3, s3, 13')
    a('s_add_u32 s3, s3, 0x%x' % WS_P)
    a('s_add_u32 s43, s3, 4096')
    for nt in range(2):
        for mt in range(2):
            acc = D2 + 16 * (2 * nt + mt)
            for k in range(8):
                a('v_cvt_pk_bf16_f32 v%d, v%d, v%d' % (acc + k, acc + 2 * k, acc + 2 * k + 1))
            for hf in range(2):
                a('buffer_store_dwordx4 %s, v2, %s, %s offen offset:%d' % (vr(acc + 4 * hf, 4), srd(S_WS), 's3' if nt == 0 else 's43',
                                                                          (mt * 2 + hf) * 1024))


def w2load(a, ns, reg):
    nt, s = ns
    hi = (s // 4) * 4096
    base = 's52' if nt == 0 else 's53'
    if hi:
        a('s_add_u32 s54, %s, %d' % (base, hi))
        base = 's54'
    a('buffer_load_dwordx4 %s, v2, %s, %s offen offset:%d' % (vr(reg, 4), srd(S_WS), base, (s % 4) * 1024))


def phase6(a):
    a('s_and_b32 s48, s%d, 1' % S_W)
    a('s_bfe_u32 s49, s%d, 0x10001' % S_W)
    a('s_lshr_b32 s50, s%d, 2' % S_W)
    a('s_lshl_b32 s3, s%d, 3' % S_RB)
    a('s_add_u32 s3, s3, s%d' % S_J)
    a('s_lshl_b32 s3, s3, 16')
    a('s_lshl_b32 s43, s%d, 10' % S_W)
    a('s_add_u32 s3, s3, s43')
    a('s_add_u32 s3, s3, 0x%x' % WS_P)
    for src in range(8):
        a('buffer_load_dwordx4 %s, v2, %s, s3 offen' % (vr(16 + 4 * src, 4), srd(S_WS)))
        if src < 7: a('s_add_u32 s3, s3, 8192')
    q_frag_off(a, WS_H, 's50', 's49', 's48', 's3')
    a('buffer_load_dwordx4 v[8:11], v2, %s, s3 offen' % srd(S_WS))
    for src in range(8):
        a('s_waitcnt vmcnt(%d)' % (8 - src))
        for k in range(4):
            r = 16 + 4 * src + k
            if src == 0:
                a('v_lshlrev_b32 v%d, 16, v%d' % (48 + 2 * k, r))
                a('v_and_b32 v%d, 0xffff0000, v%d' % (49 + 2 * k, r))
            else:
                a('v_lshlrev_b32 v%d, 16, v%d' % (56 + 2 * k, r))
                a('v_and_b32 v%d, 0xffff0000, v%d' % (57 + 2 * k, r))
        if src:
            for k in range(8): a('v_add_f32 v%d, v%d, v%d' % (48 + k, 48 + k, 56 + k))
    a('s_waitcnt vmcnt(0)')
    for k in range(4):
        a('v_lshlrev_b32 v%d, 16, v%d' % (56 + 2 * k, 8 + k))
        a('v_and_b32 v%d, 0xffff0000, v%d' % (57 + 2 * k, 8 + k))
    for k in range(8): a('v_add_f32 v%d, v%d, v%d' % (48 + k, 48 + k, 56 + k))
    for k in range(4): a('v_cvt_pk_bf16_f32 v%d, v%d, v%d' % (8 + k, 48 + 2 * k, 49 + 2 * k))
    a('v_permlane32_swap_b32 v8, v10')
    a('v_permlane32_swap_b32 v9, v11')
    a('v_and_b32 v3, 31, v1')
    a('v_lshrrev_b32 v4, 5, v1')
    a('v_lshlrev_b32 v3, 10, v3')
    a('v_lshl_add_u32 v3, v4, 4, v3')
    a('s_lshl_b32 s3, s%d, 1' % S_RB)
    a('s_add_u32 s3, s3, s49')
    a('s_lshl_b32 s3, s3, 15')
    a('s_lshl_b32 s43, s%d, 7' % S_J)
    a('s_add_u32 s3, s3, s43')
    a('s_lshl_b32 s43, s50, 6')
    a('s_add_u32 s3, s3, s43')
    a('s_lshl_b32 s43, s48, 5')
    a('s_add_u32 s3, s3, s43')
    a('buffer_store_dwordx4 v[8:11], v3, %s, s3 offen' % srd(S_OUT))


HEADER = open('cdna_kernels/%s.s.ref' % NAME).read().split('; Override launch')[0]


def kernel_wrap(name, body):
    return ('.globl %s\n.p2align 8\n.type %s,@function\n%s:\n' % (name, name, name)) + body


def desc(name, vgpr=256):
    return ('.amdhsa_kernel %s\n  .amdhsa_next_free_vgpr %d\n  .amdhsa_next_free_sgpr 102\n  .amdhsa_accum_offset %d\n'
            '  .amdhsa_group_segment_fixed_size 0\n  .amdhsa_kernarg_size 96\n  .amdhsa_user_sgpr_count 2\n'
            '  .amdhsa_user_sgpr_kernarg_segment_ptr 1\n  .amdhsa_system_sgpr_workgroup_id_x 1\n.end_amdhsa_kernel\n') % (name, vgpr, (vgpr + 3) // 4 * 4)


def gen_split(force_slow=False, upto=5):
    ks = []
    specs = [
        ('k1_kernel', ['x', 'wq', 'wkv', 'ws'], lambda a: phase1(a), 163840),
        ('k2_kernel', ['ws'], lambda a: phase2(a, force_slow), 131072),
        ('k3_kernel', ['x', 'ws'], phase3, 65536),
        ('k4_kernel', ['b1', 'ws'], phase45, 98304),
        (NAME + '_kernel', ['out', 'ws'], phase6, 0),
    ]
    specs = specs[:upto - 0] if upto < 5 else specs
    text = HEADER
    for n, _, _, lds in specs:
        text += '; @launch kernel=%s grid=(256,1,1) block=(512,1,1) lds=%d\n' % (n, lds)
    text += '.amdgcn_target "amdgcn-amd-amdhsa--gfx950"\n.text\n'
    global STAMP_V
    for ki, (n, srds, fn, lds) in enumerate(specs):
        a = Asm()
        end = 'END_' + n
        STAMP_V = 7 if ki == 3 else 250
        setup(a, end, srds)
        if STAMPS: a('v_mov_b32 v%d, 0' % STAMP_V)
        stamp(a, 0)
        fn(a)
        a('s_waitcnt vmcnt(0)')
        stamp(a, 31)
        stamp_flush(a, ki)
        a('s_waitcnt vmcnt(0)')
        a.label(end)
        a('s_endpgm')
        text += kernel_wrap(n, a.text())
    text += '.section .rodata,"a"\n'
    for n, _, _, _ in specs:
        text += '.p2align 6\n' + desc(n)
    return text


if __name__ == '__main__':
    out = sys.argv[1] if len(sys.argv) > 1 else 'cdna_kernels/%s.s' % NAME
    mode = sys.argv[2] if len(sys.argv) > 2 else 'split'
    STAMPS = 'stamps' in sys.argv
    if mode == 'split':
        t = gen_split()
    elif mode == 'slow':
        t = gen_split(force_slow=True)
    open(out, 'w').write(t)
    print('wrote', out, len(t))
```

```python
import sys, os
sys.path.insert(0, os.path.dirname(__file__))
from asmlib import Asm
import gen as G
from gen import (NAME, f2u, srd, vr, mk_srd, ln_stats, ln_apply, LOG2E, LIMIT2,
                 S_X, S_WQ, S_WKV, S_B1, S_OUT, S_WS, S_J, S_RB, S_W,
                 WS_KMAX, WS_WO, WS_W1, WS_W2, WS_O, WS_H, WS_P, WS_STAMP, WS_SIZE, HEADER)

WS_F1 = 0x30000
WS_F2 = 0x30400
WS_F3 = 0x31000
WS_F4 = 0x33000
WS_F5 = 0x35000
WS_EPOCH = 0x37000
S_TAG, S_FAST, S_E1, S_F1V = 100, 101, 16, 17
OPT = {}
STAMPS = False
STAMP_V = 0
SPIN = 1 << 17
_uid = [0]


def uid(p):
    _uid[0] += 1
    return '%s_%d' % (p, _uid[0])


def stamp(a, idx):
    if not STAMPS: return
    a('s_waitcnt lgkmcnt(0)')
    a('s_memtime s[96:97]')
    a('s_memrealtime s[98:99]')
    a('s_waitcnt lgkmcnt(0)')
    a('v_writelane_b32 v%d, s96, %d' % (STAMP_V, idx))
    a('v_writelane_b32 v%d, s98, %d' % (STAMP_V, idx + 32))


def stamp_flush(a):
    if not STAMPS: return
    a('s_lshl_b32 s3, s2, 11')
    a('s_lshl_b32 s43, s%d, 8' % S_W)
    a('s_add_u32 s3, s3, s43')
    a('s_add_u32 s3, s3, 0x%x' % WS_STAMP)
    a('v_lshlrev_b32 v3, 2, v1')
    a('buffer_store_dword v%d, v3, %s, s3 offen' % (STAMP_V, srd(S_WS)))


def both(a, fn):
    if OPT.get('nofast'):
        fn(' sc1'); return
    ls, ld = uid('L_sl'), uid('L_dn')
    a('s_cmp_eq_u32 s%d, 0' % S_FAST)
    a('s_cbranch_scc1 %s' % ls)
    fn('')
    a('s_branch %s' % ld)
    a.label(ls)
    fn(' sc1')
    a.label(ld)


def flag_store(a, soff, val, mod, vt):
    a('v_mov_b32 v%d, s%d' % (vt, val))
    a('s_mov_b64 exec, 1')
    a('buffer_store_dword v%d, off, %s, %s%s' % (vt, srd(S_WS), soff, mod))
    a('s_mov_b64 exec, -1')


def poll8(a, soff, vt, sleep=True):
    l, d = uid('L_poll'), uid('L_pd')
    a('v_and_b32 v%d, 7, v1' % (vt + 1))
    a('v_lshlrev_b32 v%d, 2, v%d' % (vt + 1, vt + 1))
    a('s_mov_b32 s43, %d' % SPIN)
    a.label(l)
    a('buffer_load_dword v%d, v%d, %s, %s offen sc1' % (vt, vt + 1, srd(S_WS), soff))
    a('s_waitcnt vmcnt(0)')
    a('v_cmp_ne_u32 vcc, s%d, v%d' % (S_TAG, vt))
    a('s_cbranch_vccz %s' % d)
    a('s_sub_u32 s43, s43, 1')
    a('s_cmp_lg_u32 s43, 0')
    a('s_cbranch_scc1 %s' % l)
    a.label(d)


def check256(a, vt):
    for k in range(4):
        a('v_xor_b32 v%d, s%d, v%d' % (vt + k, S_TAG, vt + k))
    a('v_or3_b32 v%d, v%d, v%d, v%d' % (vt, vt, vt + 1, vt + 2))
    a('v_or_b32 v%d, v%d, v%d' % (vt, vt, vt + 3))
    a('v_cmp_le_u32 vcc, 16, v%d' % vt)


def poll256(a, base, vt, first_loaded=False):
    l, d, c = uid('L_poll'), uid('L_pd'), uid('L_pc')
    a('s_mov_b32 s43, %d' % SPIN)
    a('s_mov_b32 s3, 0x%x' % base)
    if first_loaded:
        a('s_branch %s' % c)
    a.label(l)
    a('buffer_load_dwordx4 %s, v2, %s, s3 offen sc1' % (vr(vt, 4), srd(S_WS)))
    a.label(c)
    a('s_waitcnt vmcnt(0)')
    check256(a, vt)
    a('s_cbranch_vccz %s' % d)
    a('s_sub_u32 s43, s43, 1')
    a('s_cmp_lg_u32 s43, 0')
    a('s_cbranch_scc1 %s' % l)
    a.label(d)


def setup(a, endlabel):
    a('s_cmp_ge_u32 s2, 256')
    a('s_cbranch_scc1 %s' % endlabel)
    a('s_load_dwordx16 s[64:79], s[0:1], 0')
    a('s_load_dwordx8 s[80:87], s[0:1], 64')
    a('v_lshrrev_b32 v2, 6, v0')
    a('v_and_b32 v1, 63, v0')
    a('v_readfirstlane_b32 s%d, v2' % S_W)
    a('v_lshlrev_b32 v2, 4, v1')
    a('s_lshr_b32 s%d, s2, 3' % S_J)
    a('s_and_b32 s%d, s%d, 7' % (S_J, S_J))
    a('s_and_b32 s%d, s2, 7' % S_RB)
    a('s_lshl_b32 s%d, s%d, 2' % (S_RB, S_RB))
    a('s_lshr_b32 s3, s2, 6')
    a('s_add_u32 s%d, s%d, s3' % (S_RB, S_RB))
    a('s_getreg_b32 s%d, hwreg(HW_REG_XCC_ID, 0, 4)' % S_F1V)
    a('s_waitcnt lgkmcnt(0)')
    a('s_load_dword s%d, s[86:87], 0x%x' % (S_E1, WS_EPOCH))
    mk_srd(a, S_X, 64, 2048 * 512 * 2)
    a('s_bitcmp1_b32 s%d, 0' % S_J)
    a('s_cselect_b32 s%d, s70, s68' % S_WKV)
    a('s_cselect_b32 s%d, s71, s69' % (S_WKV + 1))
    a('s_mov_b32 s%d, 0x%x' % (S_WKV + 2, 512 * 16 * 2))
    a('s_mov_b32 s%d, 0x20000' % (S_WKV + 3))
    mk_srd(a, S_WQ, 66, 512 * 512 * 2)
    mk_srd(a, S_WS, 86, WS_SIZE)
    mk_srd(a, S_B1, 78, 1792 * 2)
    mk_srd(a, S_OUT, 82, 2048 * 512 * 2)


L_WKV, L_TB, L_X, L_WQ = 0, 16384, 32768, 98304
KVB, TS_ = 16384, 2064


def phase1(a):
    XR = 32
    TS, TQ, TT = 8, 16, 24
    a('s_mov_b32 s44, 0x3f803f80')
    a('s_mov_b32 s45, 0x%x' % f2u(1.0 / 512))
    a('s_mov_b32 s46, 0x%x' % f2u(1e-5))
    a('s_lshr_b32 s47, s%d, 1' % S_J)
    a('s_lshl_b32 s47, s47, 4')
    a('s_lshl_b32 s88, s%d, 1' % S_W)
    a('s_add_u32 s88, s88, s47')
    a('s_add_u32 s89, s88, 1')
    a('s_lshl_b32 s48, s%d, 16' % S_RB)
    def xload(i):
        a('s_lshl_b32 s43, s%d, 10' % (88 + i))
        a('s_add_u32 s43, s43, s48')
        a('buffer_load_dwordx4 %s, v2, %s, s43 offen' % (vr(XR + 4 * i, 4), srd(S_X)))
    xload(0); xload(1)
    a('s_lshl_b32 s43, s%d, 11' % S_W)
    a('s_mov_b32 m0, s43')
    a('s_nop 0')
    a('buffer_load_dwordx4 v2, %s, s43 offen lds' % srd(S_WKV))
    a('buffer_load_dwordx4 v2, %s, s43 offen offset:1024 lds' % srd(S_WKV))
    a('s_mul_i32 s3, s%d, 6' % S_W)
    for i in range(6):
        a('s_add_u32 s%d, s3, %d' % (90 + i, i))
        a('s_add_u32 s43, s%d, 16' % (90 + i))
        a('s_cmp_lt_u32 s%d, s47' % (90 + i))
        a('s_cselect_b32 s%d, s%d, s43' % (90 + i, 90 + i))
    a('v_lshrrev_b32 v3, 3, v1')
    a('v_and_b32 v4, 7, v1')
    a('v_lshlrev_b32 v5, 1, v3')
    a('v_and_b32 v5, 4, v5')
    a('v_xor_b32 v4, v4, v5')
    a('v_lshlrev_b32 v4, 4, v4')
    a('v_lshl_add_u32 v5, v3, 10, v4')
    if not OPT.get('nobar0'):
        a('s_barrier')
    for i in range(2, 8): xload(i)
    a('s_lshl_b32 s49, s%d, 16' % S_W)
    a('s_lshl_b32 s43, s%d, 7' % S_J)
    a('s_add_u32 s49, s49, s43')
    a('s_lshl_b32 s50, s%d, 13' % S_W)
    a('s_add_u32 s50, s50, %d' % L_WQ)
    for i in range(8):
        a('s_mov_b32 m0, s50')
        a('s_add_u32 s50, s50, 1024')
        a('buffer_load_dwordx4 v5, %s, s49 offen lds' % srd(S_WQ))
        if i < 7: a('s_add_u32 s49, s49, 8192')
    a('s_cmp_lt_u32 s2, 112')
    a('s_cbranch_scc1 L_tb_w1')
    a('s_cmp_lt_u32 s2, 224')
    a('s_cbranch_scc1 L_tb_w2')
    a('s_sub_u32 s3, s2, 224')
    a('s_mov_b32 s52, s72'); a('s_mov_b32 s53, s73'); a('s_mov_b32 s54, 0x%x' % (512 * 512 * 2))
    a('s_mov_b32 s56, 1024')
    a('s_and_b32 s60, s3, 3'); a('s_lshr_b32 s61, s3, 2')
    a('s_mov_b32 s59, %d' % (32 * 1024))
    a('s_mov_b32 s62, 0x%x' % WS_WO)
    a('s_branch L_tb_go')
    a.label('L_tb_w1')
    a('s_mov_b32 s52, s76'); a('s_mov_b32 s53, s77'); a('s_mov_b32 s54, 0x%x' % (512 * 1792 * 2))
    a('s_mov_b32 s56, 3584')
    a('s_and_b32 s60, s2, 3'); a('s_lshr_b32 s61, s2, 2')
    a('s_mov_b32 s59, %d' % (32 * 1024))
    a('s_mov_b32 s62, 0x%x' % WS_W1)
    a('s_branch L_tb_go')
    a.label('L_tb_w2')
    a('s_sub_u32 s3, s2, 112')
    a('s_mov_b32 s52, s80'); a('s_mov_b32 s53, s81'); a('s_mov_b32 s54, 0x%x' % (1792 * 512 * 2))
    a('s_mov_b32 s56, 1024')
    a('s_lshr_b32 s60, s3, 3'); a('s_and_b32 s61, s3, 7')
    a('s_mov_b32 s59, %d' % (112 * 1024))
    a('s_mov_b32 s62, 0x%x' % WS_W2)
    a.label('L_tb_go')
    a('s_mov_b32 s55, 0x20000')
    a('s_lshl_b32 s3, s60, 7')
    a('s_lshl_b32 s43, s%d, 4' % S_W)
    a('s_add_u32 s3, s3, s43')
    a('s_mul_i32 s57, s3, s56')
    a('s_lshl_b32 s3, s61, 7')
    a('s_add_u32 s57, s57, s3')
    a('s_lshl_b32 s3, s61, 1')
    a('s_mul_i32 s58, s3, s59')
    a('s_add_u32 s58, s58, s62')
    a('s_lshl_b32 s3, s60, 3')
    a('s_add_u32 s3, s3, s%d' % S_W)
    a('s_lshl_b32 s3, s3, 10')
    a('s_add_u32 s58, s58, s3')
    a('v_mul_lo_u32 v6, v3, s56')
    a('v_add_u32 v6, v6, v4')
    a('s_lshl_b32 s3, s%d, 11' % S_W)
    a('s_add_u32 s3, s3, %d' % L_TB)
    a('s_mov_b32 m0, s3')
    a('s_lshl_b32 s43, s56, 3')
    a('buffer_load_dwordx4 v6, s[52:55], s57 offen lds')
    a('s_add_u32 s3, s3, 1024')
    a('s_add_u32 s57, s57, s43')
    a('s_mov_b32 m0, s3')
    a('s_nop 0')
    a('buffer_load_dwordx4 v6, s[52:55], s57 offen lds')
    stamp(a, 1)
    a('s_waitcnt vmcnt(18) lgkmcnt(0)')
    a('s_mul_i32 s%d, s%d, 0x9E3779B1' % (S_TAG, S_E1))
    a('s_add_u32 s%d, s%d, 0x7F4A7C15' % (S_TAG, S_TAG))
    a('s_and_b32 s%d, s%d, 0xFFFFFFF0' % (S_TAG, S_TAG))
    a('s_or_b32 s%d, s%d, s%d' % (S_F1V, S_F1V, S_TAG))
    a('s_add_u32 s%d, s%d, 1' % (S_E1, S_E1))
    stamp(a, 2)
    SB = 72
    ln_stats(a, [XR, XR + 4], TS, TQ, SB)
    def xstore(i):
        a('s_lshl_b32 s3, s%d, 10' % (88 + i))
        a('s_and_b32 s43, s%d, 15' % (88 + i))
        a('s_lshl_b32 s43, s43, 4')
        a('s_add_u32 s3, s3, s43')
        a('s_add_u32 s3, s3, %d' % L_X)
        a('v_xor_b32 v7, s3, v2')
        a('ds_write_b128 v7, %s' % vr(XR + 4 * i, 4))
    for i in range(2):
        ln_apply(a, XR + 4 * i, SB + 2 * i, TT)
        xstore(i)
    a('s_waitcnt vmcnt(16) lgkmcnt(0)')
    stamp(a, 3)
    a('s_barrier')
    stamp(a, 4)
    a('s_cmp_lg_u32 s%d, 0' % S_W)
    a('s_cbranch_scc1 L_kv_done')
    KW, KX = 64, 128
    a('v_lshrrev_b32 v8, 4, v1')
    a('v_and_b32 v9, 15, v1')
    a('v_lshlrev_b32 v10, 8, v8')
    a('v_lshl_add_u32 v10, v9, 3, v10')
    a('v_xor_b32 v11, v8, v9')
    a('v_lshlrev_b32 v11, 4, v11')
    a('v_add_u32 v12, s47, v9')
    a('v_lshlrev_b32 v12, 10, v12')
    a('v_add_u32 v12, %d, v12' % L_X)
    a('v_add_u32 v12, v12, v11')
    a('v_xor_b32 v13, 64, v12')
    a('v_xor_b32 v14, 0x80, v12')
    a('v_xor_b32 v15, 0xc0, v12')
    def kvload(ks):
        a('ds_read_b64_tr_b16 %s, v10 offset:%d' % (vr(KW + 4 * ks, 2), 1024 * ks))
        a('ds_read_b64_tr_b16 %s, v10 offset:%d' % (vr(KW + 4 * ks + 2, 2), 1024 * ks + 128))
        a('ds_read_b128 %s, v%d offset:%d' % (vr(KX + 4 * ks, 4), 12 + ks % 4, (ks // 4) * 256))
    for ks in range(4): kvload(ks)
    a('s_bitcmp1_b32 s%d, 0' % S_J)
    a('s_cbranch_scc1 L_kv_v')
    for var in (0, 1):
        if var: a.label('L_kv_v'); a.fence(4)
        for ks in range(16):
            if ks + 4 < 16: kvload(ks + 4)
            a('s_waitcnt lgkmcnt(%d)' % (3 * (min(16, ks + 5) - (ks + 1))))
            acc = 16 + 4 * (ks % 2)
            A, B = (KW + 4 * ks, KX + 4 * ks) if var == 0 else (KX + 4 * ks, KW + 4 * ks)
            a('v_mfma_f32_16x16x32_bf16 %s, %s, %s, %s' % (vr(acc, 4), vr(A, 4), vr(B, 4), '0' if ks < 2 else vr(acc, 4)))
        for k in range(4):
            a('v_add_f32 v%d, v%d, v%d' % (16 + k, 16 + k, 20 + k))
        a('v_cvt_pk_bf16_f32 v16, v16, v17')
        a('v_cvt_pk_bf16_f32 v17, v18, v19')
        a('v_and_b32 v18, 1, v8')
        a('v_lshlrev_b32 v18, %d, v18' % (9 if var == 0 else 8))
        a('v_lshl_add_u32 v18, v9, 4, v18')
        a('v_lshrrev_b32 v19, 1, v8')
        a('v_lshl_add_u32 v18, v19, 3, v18')
        a('s_lshl_b32 s3, s%d, 1' % S_RB)
        a('s_lshr_b32 s43, s47, 5')
        a('s_add_u32 s3, s3, s43')
        a('s_lshl_b32 s3, s3, 11')
        a('s_and_b32 s43, s47, 16')
        if var == 0:
            a('s_lshl_b32 s43, s43, 4')
        else:
            a('s_lshl_b32 s43, s43, 5')
            a('s_add_u32 s43, s43, 1024')
        a('s_add_u32 s3, s3, s43')
        a('buffer_store_dwordx2 v[16:17], v18, %s, s3 offen sc1' % srd(S_WS))
        if var == 0:
            a('v_dot2_f32_bf16 v20, v16, v16, 0')
            a('v_dot2_f32_bf16 v20, v17, v17, v20')
            a('v_mov_b32 v21, v20')
            a('v_permlane32_swap_b32 v20, v21')
            a('v_add_f32 v20, v20, v21')
            a('v_mov_b32 v21, v20')
            a('v_permlane16_swap_b32 v20, v21')
            a('v_add_f32 v20, v20, v21')
            for sh in (8, 4, 2, 1):
                a('v_max_f32_dpp v20, v20, v20 row_ror:%d row_mask:0xf bank_mask:0xf' % sh)
            a('s_lshl_b32 s3, s%d, 2' % S_RB)
            a('s_lshr_b32 s43, s%d, 1' % S_J)
            a('s_add_u32 s3, s3, s43')
            a('s_lshl_b32 s3, s3, 2')
            a('s_add_u32 s3, s3, 0x%x' % WS_KMAX)
            a('s_mov_b64 exec, 1')
            a('buffer_store_dword v20, off, %s, s3 sc1' % srd(S_WS))
            a('s_mov_b64 exec, -1')
            a('s_branch L_kv_done')
    a.label('L_kv_done')
    a.fence(4)
    stamp(a, 5)
    a('s_waitcnt vmcnt(10)')
    stamp(a, 6)
    rows = [XR + 4 * i for i in range(2, 8)]
    ln_stats(a, rows, TS, TQ, SB)
    for i in range(2, 8):
        ln_apply(a, XR + 4 * i, SB + 2 * (i - 2), TT)
        xstore(i)
    stamp(a, 7)
    a('s_waitcnt vmcnt(0) lgkmcnt(0)')
    a('s_cmp_lg_u32 s%d, 0' % S_W)
    a('s_cbranch_scc1 L_f1_done')
    a('s_lshl_b32 s3, s%d, 3' % S_RB)
    a('s_add_u32 s3, s3, s%d' % S_J)
    a('s_lshl_b32 s3, s3, 2')
    a('s_add_u32 s3, s3, 0x%x' % WS_F1)
    flag_store(a, 's3', S_F1V, ' sc1', 8)
    a.label('L_f1_done')
    stamp(a, 8)
    a('s_barrier')
    stamp(a, 9)
    a('s_and_b32 s48, s%d, 1' % S_W)
    a('s_bfe_u32 s49, s%d, 0x10001' % S_W)
    a('s_lshr_b32 s50, s%d, 2' % S_W)
    a('v_lshrrev_b32 v8, 5, v1')
    a('v_bfe_u32 v9, v1, 4, 1')
    a('v_bfe_u32 v10, v1, 2, 2')
    a('v_and_b32 v11, 3, v1')
    a('v_lshrrev_b32 v12, 1, v11')
    a('v_lshl_add_u32 v12, v9, 1, v12')
    a('v_lshrrev_b32 v13, 1, v10')
    a('v_lshlrev_b32 v13, 2, v13')
    a('v_xor_b32 v12, v12, v13')
    a('v_lshlrev_b32 v12, 4, v12')
    a('v_and_b32 v11, 1, v11')
    a('v_lshl_add_u32 v12, v11, 3, v12')
    a('v_lshl_add_u32 v13, v8, 3, v10')
    a('v_lshl_add_u32 v13, v13, 7, v12')
    a('s_lshl_b32 s3, s50, 15')
    a('s_lshl_b32 s43, s48, 6')
    a('s_add_u32 s3, s3, %d' % L_WQ)
    a('v_xor_b32 v13, s43, v13')
    a('v_add_u32 v13, s3, v13')
    a('v_lshl_add_u32 v14, v8, 2, v10')
    a('v_lshl_add_u32 v14, v14, 7, v12')
    a('s_lshl_b32 s3, s%d, 11' % S_W)
    a('s_add_u32 s3, s3, %d' % L_TB)
    a('v_add_u32 v14, s3, v14')
    a('v_xor_b32 v15, 64, v14')
    for nt in range(2):
        a('ds_read_b64_tr_b16 %s, v%d' % (vr(192 + 4 * nt, 2), 14 + nt))
        a('ds_read_b64_tr_b16 %s, v%d offset:1024' % (vr(194 + 4 * nt, 2), 14 + nt))
    a('v_and_b32 v16, 31, v1')
    a('v_and_b32 v17, 15, v1')
    a('v_xor_b32 v17, v17, v8')
    a('v_lshlrev_b32 v17, 4, v17')
    a('v_lshl_add_u32 v17, v16, 10, v17')
    a('s_lshl_b32 s3, s49, 15')
    a('s_lshl_b32 s43, s50, 9')
    a('s_add_u32 s3, s3, s43')
    a('s_add_u32 s3, s3, %d' % L_X)
    a('v_add_u32 v24, s3, v17')
    for q in range(1, 8):
        a('v_xor_b32 v%d, %d, v24' % (24 + q, 32 * q))
    QA, QB, QD = 64, 128, 32
    def qload(s):
        a('ds_read_b64_tr_b16 %s, v13 offset:%d' % (vr(QA + 4 * s, 2), 2048 * s))
        a('ds_read_b64_tr_b16 %s, v13 offset:%d' % (vr(QA + 4 * s + 2, 2), 2048 * s + 512))
        a('ds_read_b128 %s, v%d offset:%d' % (vr(QB + 4 * s, 4), 24 + s % 8, (s // 8) * 256))
    PF = 4
    a('s_waitcnt lgkmcnt(0)')
    for s in range(PF): qload(s)
    a('buffer_store_dwordx4 %s, v2, %s, s58 offen sc1' % (vr(192, 4), srd(S_WS)))
    a('s_add_u32 s58, s58, s59')
    a('buffer_store_dwordx4 %s, v2, %s, s58 offen sc1' % (vr(196, 4), srd(S_WS)))
    for s in range(16):
        if s + PF < 16: qload(s + PF)
        rem = min(16, s + PF + 1) - (s + 1)
        a('s_waitcnt lgkmcnt(%d)' % (3 * rem))
        a('v_mfma_f32_32x32x16_bf16 %s, %s, %s, %s' % (vr(QD, 16), vr(QA + 4 * s, 4), vr(QB + 4 * s, 4), '0' if s == 0 else vr(QD, 16)))
    stamp(a, 10)
    a('s_lshl_b32 s3, s%d, 11' % S_W)
    a('v_add_u32 v8, s3, v2')
    a('s_xor_b32 s3, s3, %d' % (4 << 11))
    a('v_add_u32 v9, s3, v2')
    a('s_cmp_eq_u32 s50, 0')
    a('s_cbranch_scc0 L_q_kh1')
    a('s_nop 7')
    a('ds_write_b128 v8, %s' % vr(QD + 8, 4))
    a('ds_write_b128 v8, %s offset:1024' % vr(QD + 12, 4))
    a('s_branch L_q_x')
    a.label('L_q_kh1')
    a.fence(12)
    a('ds_write_b128 v8, %s' % vr(QD, 4))
    a('ds_write_b128 v8, %s offset:1024' % vr(QD + 4, 4))
    for k in range(8):
        a('v_mov_b32 v%d, v%d' % (QD + k, QD + 8 + k))
    a.label('L_q_x')
    a.fence(4)
    a('s_cmp_lg_u32 s%d, 7' % S_W)
    a('s_cbranch_scc1 L_f1p_done')
    poll256(a, WS_F1, 56)
    a.label('L_f1p_done')
    a('s_waitcnt lgkmcnt(0)')
    stamp(a, 11)
    a('s_barrier')
    stamp(a, 12)


R_Q, R_S0, R_S1, R_O, R_P0, R_P1 = 4, 8, 24, 40, 56, 60
R_V0, R_V1, R_K = 64, 72, 80
R_KAD, R_VA0, R_VA1, R_ROW, R_XRES = 88, 3, 89, 90, 92
R_WO, R_W1 = 192, 96


def prefetch_list(a):
    L = []
    def wo_addr():
        a('s_lshr_b32 s51, s%d, 1' % S_W)
        a('s_lshl_b32 s51, s51, 3')
        a('s_lshl_b32 s52, s%d, 6' % S_J)
        a('s_add_u32 s51, s51, s52')
        a('s_lshl_b32 s51, s51, 10')
        a('s_add_u32 s51, s51, 0x%x' % WS_WO)
        a('s_add_u32 s52, s51, %d' % (32 * 1024))
    def wo(nt, s):
        def f():
            if nt == 0 and s == 0: wo_addr()
            if s == 4: a('s_add_u32 s%d, s%d, 4096' % (51 + nt, 51 + nt))
            a('buffer_load_dwordx4 %s, v2, %s, s%d offen offset:%d sc1' % (vr(R_WO + 32 * nt + 4 * s, 4), srd(S_WS), 51 + nt, (s % 4) * 1024))
        return f
    for s in range(8):
        for nt in range(2): L.append(wo(nt, s))
    def xres():
        a('s_and_b32 s3, s%d, 1' % S_W)
        a('s_lshl_b32 s43, s%d, 1' % S_RB)
        a('s_add_u32 s3, s3, s43')
        a('s_lshl_b32 s3, s3, 15')
        a('s_lshl_b32 s43, s%d, 7' % S_J)
        a('s_add_u32 s3, s3, s43')
        a('s_lshr_b32 s43, s%d, 1' % S_W)
        a('s_lshl_b32 s43, s43, 5')
        a('s_add_u32 s53, s3, s43')
        a('buffer_load_dwordx4 %s, v%d, %s, s53 offen' % (vr(R_XRES, 4), R_ROW, srd(S_X)))
    L.append(xres)
    def w1_addr():
        a('s_mul_i32 s54, s%d, 7' % S_J)
        a('s_add_u32 s54, s54, s%d' % S_W)
        a('s_lshl_b32 s54, s54, 15')
        a('s_add_u32 s54, s54, 0x%x' % WS_W1)
        w2_base(a, 's55')
        a('s_add_u32 s56, s55, %d' % (8 * 1024))
        a('s_cmp_eq_u32 s%d, 7' % S_W)
        a('s_cselect_b32 s57, s56, s54')
        a('s_cselect_b32 s58, %d, 0' % ((112 - 14) * 1024))
    def w1(i):
        def f():
            if i == 0: w1_addr()
            if i < 6:
                if i == 4: a('s_add_u32 s57, s57, 4096')
                off = (i % 4) * 1024
            else:
                if i == 6:
                    a('s_add_u32 s57, s57, 2048'); a('s_add_u32 s57, s57, s58')
                elif (i - 6) % 4 == 0:
                    a('s_add_u32 s57, s57, 4096')
                off = ((i - 6) % 4) * 1024
            a('buffer_load_dwordx4 %s, v2, %s, s57 offen offset:%d sc1' % (vr(R_W1 + 4 * i, 4), srd(S_WS), off))
        return f
    for i in range(24): L.append(w1(i))
    return L


def w2_base(a, dst):
    a('s_mul_i32 %s, s%d, %d' % (dst, S_W, 2 * 112))
    a('s_mul_i32 s43, s%d, 14' % S_J)
    a('s_add_u32 %s, %s, s43' % (dst, dst))
    a('s_lshl_b32 %s, %s, 10' % (dst, dst))
    a('s_add_u32 %s, %s, 0x%x' % (dst, dst, WS_W2))


def w2_slot_reg(q):
    return 224 + 4 * q if q < 8 else 96 + 4 * (q - 8)


def attn_tile(a, u, extra=()):
    c, n = u % 2, (u + 1) % 2
    S = [R_S0, R_S1]
    K = lambda b: R_K + 4 * b
    V0 = lambda b: R_V0 + 4 * b
    V1 = lambda b: R_V1 + 4 * b
    ex = list(extra)
    def E(k): a('v_exp_f32 v%d, v%d' % (S[c] + k, S[c] + k))
    def X():
        if ex: ex.pop(0)()
    a('s_waitcnt lgkmcnt(0)')
    E(0)
    a('ds_read_b128 %s, v%d offset:%d' % (vr(K(c), 4), R_KAD, (u + 2) * TS_))
    E(1)
    a('ds_read_b128 %s, v%d offset:%d' % (vr(V0(n), 4), R_VA0, (u + 1) * TS_))
    E(2)
    a('ds_read_b128 %s, v%d offset:%d' % (vr(V1(c), 4), R_VA1, u * TS_))
    E(3)
    a('v_mfma_f32_32x32x16_bf16 %s, %s, %s, 0' % (vr(S[n], 16), vr(K(n), 4), vr(R_Q, 4)))
    E(4); X(); E(5); X(); E(6); X(); E(7)
    for k in range(4): a('v_cvt_pk_bf16_f32 v%d, v%d, v%d' % (R_P0 + k, S[c] + 2 * k, S[c] + 2 * k + 1))
    a('v_mfma_f32_32x32x16_bf16 %s, %s, %s, %s' % (vr(R_O, 16), vr(V1(n), 4), vr(R_P1, 4), vr(R_O, 16)))
    E(8); X(); E(9); X(); E(10); X(); E(11)
    a('v_mfma_f32_32x32x16_bf16 %s, %s, %s, %s' % (vr(R_O, 16), vr(V0(c), 4), vr(R_P0, 4), vr(R_O, 16)))
    for k in range(12, 16): E(k)
    for k in range(4): a('v_cvt_pk_bf16_f32 v%d, v%d, v%d' % (R_P1 + k, S[c] + 8 + 2 * k, S[c] + 9 + 2 * k))
    while ex: ex.pop(0)()


def attn_advance(a):
    for r in (R_KAD, R_VA0, R_VA1):
        a('v_add_u32 v%d, 0x%x, v%d' % (r, 8 * TS_, r))


def attention_fast(a):
    a('ds_read_b128 %s, v%d' % (vr(R_K, 4), R_KAD))
    a('ds_read_b128 %s, v%d offset:%d' % (vr(R_K + 4, 4), R_KAD, TS_))
    a('ds_read_b128 %s, v%d' % (vr(R_V0, 4), R_VA0))
    for k in range(16): a('v_mov_b32 v%d, 0' % (R_O + k))
    for k in range(4): a('v_mov_b32 v%d, 0' % (R_P1 + k))
    for k in range(4): a('v_mov_b32 v%d, 0' % (R_V1 + 4 + k))
    a('s_waitcnt lgkmcnt(2)')
    a('v_mfma_f32_32x32x16_bf16 %s, %s, %s, 0' % (vr(R_S0, 16), vr(R_K, 4), vr(R_Q, 4)))
    a.fence(12)
    for u in range(8): attn_tile(a, u)
    attn_advance(a)
    stamp(a, 15)
    a('s_waitcnt vmcnt(0)')
    a('s_barrier')
    stamp(a, 16)
    a('s_mov_b32 s62, 2')
    a('s_mov_b32 s3, 0x%x' % WS_F2)
    a.raw('.p2align 6')
    a.label('L_attn_a')
    a('buffer_load_dwordx4 %s, v2, %s, s3 offen sc1' % (vr(R_WO, 4), srd(S_WS)))
    for u in range(8): attn_tile(a, u)
    attn_advance(a)
    a('s_sub_u32 s62, s62, 1')
    a('s_cmp_lg_u32 s62, 0')
    a('s_cbranch_scc1 L_attn_a')
    poll256(a, WS_F2, R_WO, first_loaded=True)
    L = prefetch_list(a)
    per = [L[(len(L) * u) // 8:(len(L) * (u + 1)) // 8] for u in range(8)]
    a.fence(2)
    for u in range(8): attn_tile(a, u, per[u])
    attn_advance(a)
    a('s_mov_b32 s62, 4')
    a.raw('.p2align 6')
    a.label('L_attn_b')
    for u in range(8): attn_tile(a, u)
    attn_advance(a)
    a('s_sub_u32 s62, s62, 1')
    a('s_cmp_lg_u32 s62, 0')
    a('s_cbranch_scc1 L_attn_b')
    a('s_waitcnt lgkmcnt(0)')
    a('v_mfma_f32_32x32x16_bf16 %s, %s, %s, %s' % (vr(R_O, 16), vr(R_V1 + 4, 4), vr(R_P1, 4), vr(R_O, 16)))


def attention_slow(a):
    Q, O, P = R_Q, R_O, R_P0
    S = R_S0; K = R_K; V = R_V0
    M, MN, AL, T = R_S1, R_S1 + 1, R_S1 + 2, R_S1 + 3
    a('s_waitcnt vmcnt(0)')
    a('s_barrier')
    for k in range(16): a('v_mov_b32 v%d, 0' % (O + k))
    a('v_mov_b32 v%d, 0xff7fffff' % M)
    a('s_mov_b32 s62, 64')
    a.fence(4)
    a.label('L_attn_slow')
    a('ds_read_b128 %s, v%d' % (vr(K, 4), R_KAD))
    a('ds_read_b128 %s, v%d' % (vr(V, 4), R_VA0))
    a('ds_read_b128 %s, v%d' % (vr(V + 4, 4), R_VA1))
    for r in (R_KAD, R_VA0, R_VA1):
        a('v_add_u32 v%d, 0x%x, v%d' % (r, TS_, r))
    a('s_waitcnt lgkmcnt(0)')
    a('v_mfma_f32_32x32x16_bf16 %s, %s, %s, 0' % (vr(S, 16), vr(K, 4), vr(Q, 4)))
    a('v_max_f32 v%d, v%d, v%d' % (MN, S, S + 1))
    for k in range(2, 16, 2):
        a('v_max3_f32 v%d, v%d, v%d, v%d' % (MN, MN, S + k, S + k + 1))
    a('v_mov_b32 v%d, v%d' % (T, MN))
    a('v_permlane32_swap_b32 v%d, v%d' % (MN, T))
    a('v_max3_f32 v%d, v%d, v%d, v%d' % (MN, MN, T, M))
    a('v_sub_f32 v%d, v%d, v%d' % (AL, M, MN))
    a('v_exp_f32 v%d, v%d' % (AL, AL))
    a('v_mov_b32 v%d, v%d' % (M, MN))
    for k in range(16):
        a('v_sub_f32 v%d, v%d, v%d' % (S + k, S + k, MN))
    for k in range(16):
        a('v_exp_f32 v%d, v%d' % (S + k, S + k))
    for k in range(16):
        a('v_mul_f32 v%d, v%d, v%d' % (O + k, O + k, AL))
    for k in range(8):
        a('v_cvt_pk_bf16_f32 v%d, v%d, v%d' % (P + k, S + 2 * k, S + 2 * k + 1))
    a('v_mfma_f32_32x32x16_bf16 %s, %s, %s, %s' % (vr(O, 16), vr(V, 4), vr(P, 4), vr(O, 16)))
    a('v_mfma_f32_32x32x16_bf16 %s, %s, %s, %s' % (vr(O, 16), vr(V + 4, 4), vr(P + 4, 4), vr(O, 16)))
    a('s_sub_u32 s62, s62, 1')
    a('s_cmp_lg_u32 s62, 0')
    a('s_nop 7'); a('s_nop 7')
    a('s_cbranch_scc1 L_attn_slow')
    poll256(a, WS_F2, R_WO)
    for f in prefetch_list(a): f()


def phase2(a, force_slow=False):
    QD = 32
    a('ds_read_b128 %s, v9' % vr(48, 4))
    a('ds_read_b128 %s, v9 offset:1024' % vr(52, 4))
    a('v_and_b32 v8, 7, v1')
    a('v_lshlrev_b32 v8, 2, v8')
    a('s_lshl_b32 s3, s%d, 5' % S_RB)
    a('s_add_u32 s3, s3, 0x%x' % WS_F1)
    a('buffer_load_dword v12, v8, %s, s3 offen sc1' % srd(S_WS))
    a('v_lshlrev_b32 v8, 3, v1')
    a('s_mov_b32 s3, 0x%x' % WS_KMAX)
    a('buffer_load_dwordx2 v[10:11], v8, %s, s3 offen sc1' % srd(S_WS))
    a('s_lshl_b32 s3, s%d, 11' % S_W)
    a('s_mul_i32 s43, s%d, %d' % (S_W, TS_))
    a('s_add_u32 s43, s43, %d' % KVB)
    for i in range(8):
        a('s_mov_b32 m0, s43')
        a('s_add_u32 s43, s43, %d' % (8 * TS_))
        a('buffer_load_dwordx4 v2, %s, s3 offen sc1 lds' % srd(S_WS))
        a('buffer_load_dwordx4 v2, %s, s3 offen offset:1024 sc1 lds' % srd(S_WS))
        if i < 7: a('s_add_u32 s3, s3, 16384')
    a('v_mov_b32 v16, 0x3f803f80')
    for k in range(1, 4): a('v_mov_b32 v%d, v16' % (16 + k))
    a('s_movk_i32 s3, %d' % TS_)
    a('v_mul_lo_u32 v20, v1, s3')
    a('v_add_u32 v20, %d, v20' % (KVB + 2048))
    a('ds_write_b128 v20, v[16:19]')
    a('v_lshrrev_b32 v8, 5, v1')
    a('v_and_b32 v9, 15, v1')
    a('v_lshl_add_u32 v8, v8, 4, v9')
    a('v_lshlrev_b32 v8, 4, v8')
    a('v_add_u32 v8, %d, v8' % (KVB + 1024))
    a('v_add_u32 v9, 512, v8')
    a('v_and_b32 v13, 16, v1')
    a('v_cmp_eq_u32 vcc, 0, v13')
    a('v_mov_b32 v13, %d' % (KVB + 2048))
    a('v_cndmask_b32 v%d, v13, v8, vcc' % R_VA0)
    a('v_cndmask_b32 v%d, v13, v9, vcc' % R_VA1)
    a('v_add_u32 v%d, %d, v2' % (R_KAD, KVB))
    a('v_and_b32 v13, 31, v1')
    a('v_lshrrev_b32 v14, 5, v1')
    a('v_lshlrev_b32 v13, 10, v13')
    a('v_lshl_add_u32 v%d, v14, 4, v13' % R_ROW)
    a('s_mov_b32 s3, 0x%x' % f2u(0.25 * LOG2E))
    a('s_waitcnt lgkmcnt(1)')
    for k in range(8):
        a('v_add_f32 v%d, v%d, v%d' % (QD + k, QD + k, 48 + k))
    for k in range(8):
        a('v_mul_f32 v%d, s3, v%d' % (QD + k, QD + k))
    for k in range(4):
        a('v_cvt_pk_bf16_f32 v%d, v%d, v%d' % (R_Q + k, QD + 2 * k, QD + 2 * k + 1))
    a('v_dot2_f32_bf16 v14, v%d, v%d, 0' % (R_Q, R_Q))
    for k in range(1, 4): a('v_dot2_f32_bf16 v14, v%d, v%d, v14' % (R_Q + k, R_Q + k))
    a('s_waitcnt vmcnt(16)')
    stamp(a, 13)
    a('v_cmp_ne_u32 vcc, s%d, v12' % S_F1V)
    a('s_cmp_eq_u64 vcc, 0')
    a('s_cselect_b32 s%d, 1, 0' % S_FAST)
    a('v_max_f32 v10, v10, v11')
    a('v_mov_b32 v11, v10')
    a('v_permlane32_swap_b32 v10, v11')
    a('v_max_f32 v10, v10, v11')
    a('v_mov_b32 v11, v10')
    a('v_permlane16_swap_b32 v10, v11')
    a('v_max_f32 v10, v10, v11')
    for sh in (8, 4, 2, 1):
        a('v_max_f32_dpp v10, v10, v10 row_ror:%d row_mask:0xf bank_mask:0xf' % sh)
    a('v_mov_b32 v13, v14')
    a('v_permlane32_swap_b32 v14, v13')
    a('v_add_f32 v14, v14, v13')
    a('v_mul_f32 v14, v14, v10')
    a('s_mov_b32 s3, 0x%x' % f2u(-1.0 if force_slow else LIMIT2))
    a('v_cmp_nle_f32 vcc, v14, s3')
    a('s_waitcnt vmcnt(12) lgkmcnt(0)')
    stamp(a, 14)
    a('s_barrier')
    a('s_cmp_lg_u32 s%d, 0' % S_W)
    a('s_cbranch_scc1 L_f2_done')
    a('s_lshl_b32 s3, s2, 2')
    a('s_add_u32 s3, s3, 0x%x' % WS_F2)
    flag_store(a, 's3', S_TAG, ' sc1', 8)
    a.label('L_f2_done')
    a('s_cbranch_vccnz L_attn_fb')
    attention_fast(a)
    a('s_branch L_attn_fin')
    a.label('L_attn_fb')
    a.fence(4)
    attention_slow(a)
    a.label('L_attn_fin')
    a.fence(12)
    stamp(a, 17)
    O = R_O
    a('v_rcp_f32 v8, v%d' % (O + 8))
    for k in range(8): a('v_mul_f32 v%d, v%d, v8' % (O + k, O + k))
    for k in range(4): a('v_cvt_pk_bf16_f32 v%d, v%d, v%d' % (O + k, O + 2 * k, O + 2 * k + 1))
    G.q_frag_off(a, WS_O, 's48', 's49', 's50', 's3')
    both(a, lambda m: a('buffer_store_dwordx4 %s, v2, %s, s3 offen%s' % (vr(O, 4), srd(S_WS), m)))
    a('s_lshl_b32 s3, s%d, 1' % S_RB)
    a('s_add_u32 s3, s3, s49')
    a('s_lshl_b32 s3, s3, 3')
    a('s_add_u32 s3, s3, s%d' % S_J)
    a('s_lshl_b32 s3, s3, 1')
    a('s_add_u32 s3, s3, s50')
    a('s_lshl_b32 s3, s3, 1')
    a('s_add_u32 s3, s3, s48')
    a('s_lshl_b32 s3, s3, 2')
    a('s_add_u32 s3, s3, 0x%x' % WS_F3)
    a('s_waitcnt vmcnt(0)')
    both(a, lambda m: flag_store(a, 's3', S_TAG, m, 8))
    stamp(a, 18)


def colsum(a, ks_list, regf, first):
    for ks in ks_list:
        for k in range(4):
            c = 80 + k
            a('v_dot2_f32_bf16 v%d, v%d, s44, %s' % (c, regf(ks) + k, '0' if (first and ks == ks_list[0]) else 'v%d' % c))


def w1reg(ks):
    return R_W1 + 4 * ks if ks < 24 else 192 + 4 * (ks - 24)


def phase3(a):
    A, B = R_WO, 8
    D = [40, 64]
    a('s_and_b32 s48, s%d, 1' % S_W)
    a('s_lshr_b32 s49, s%d, 1' % S_W)
    a('s_mov_b32 s44, 0x3f803f80')
    a('s_cmp_eq_u32 s%d, 7' % S_W)
    a('s_cbranch_scc1 L_cs_skip')
    colsum(a, list(range(24)), w1reg, True)
    a.label('L_cs_skip')
    a('s_lshl_b32 s3, s%d, 1' % S_RB)
    a('s_add_u32 s3, s3, s48')
    a('s_lshl_b32 s50, s3, 5')
    a('s_lshl_b32 s3, s49, 3')
    a('s_add_u32 s3, s3, s50')
    a('s_lshl_b32 s18, s3, 10')
    a('s_add_u32 s18, s18, 0x%x' % WS_O)
    a('s_lshl_b32 s3, s3, 2')
    a('s_add_u32 s3, s3, 0x%x' % WS_F3)
    poll8(a, 's3', 72)
    stamp(a, 19)
    for s in range(8):
        if s == 4: a('s_add_u32 s18, s18, 4096')
        a('buffer_load_dwordx4 %s, v2, %s, s18 offen offset:%d sc1' % (vr(B + 4 * s, 4), srd(S_WS), (s % 4) * 1024))
    for s in range(8):
        a('s_waitcnt vmcnt(%d)' % (7 - s))
        for nt in range(2):
            a('v_mfma_f32_32x32x16_bf16 %s, %s, %s, %s' % (vr(D[nt], 16), vr(A + 32 * nt + 4 * s, 4), vr(B + 4 * s, 4),
                                                          '0' if s == 0 else vr(D[nt], 16)))
    stamp(a, 20)
    a('s_barrier')
    a('s_lshl_b32 s3, s48, 15')
    a('s_lshl_b32 s43, s49, 11')
    a('s_add_u32 s3, s3, s43')
    a('v_add_u32 v84, s3, v2')
    a.fence(8)
    for q in range(4):
        r = D[q // 2] + 8 * (q % 2)
        a('s_cmp_eq_u32 s49, %d' % q)
        a('s_cbranch_scc1 L_o_skip%d' % q)
        a('ds_write_b128 v84, %s offset:%d' % (vr(r, 4), q * 8192))
        a('ds_write_b128 v84, %s offset:%d' % (vr(r + 4, 4), q * 8192 + 1024))
        a('s_branch L_o_nxt%d' % q)
        a.label('L_o_skip%d' % q)
        for k in range(8): a('v_mov_b32 v%d, v%d' % (56 + k, r + k))
        a.label('L_o_nxt%d' % q)
    a('s_waitcnt lgkmcnt(0)')
    a('s_barrier')
    a('s_lshl_b32 s3, s48, 15')
    a('s_lshl_b32 s43, s49, 13')
    a('s_add_u32 s3, s3, s43')
    for d in range(1, 4):
        a('s_add_u32 s43, s49, %d' % d)
        a('s_and_b32 s43, s43, 3')
        a('s_lshl_b32 s43, s43, 11')
        a('s_add_u32 s43, s43, s3')
        a('v_add_u32 v%d, s43, v2' % (83 + d))
        a('ds_read_b128 %s, v%d' % (vr(8 + 8 * (d - 1), 4), 83 + d))
        a('ds_read_b128 %s, v%d offset:1024' % (vr(12 + 8 * (d - 1), 4), 83 + d))
    X = R_XRES
    a('v_permlane32_swap_b32 v%d, v%d' % (X, X + 2))
    a('v_permlane32_swap_b32 v%d, v%d' % (X + 1, X + 3))
    for k in range(4):
        a('v_lshlrev_b32 v%d, 16, v%d' % (32 + 2 * k, X + k))
        a('v_and_b32 v%d, 0xffff0000, v%d' % (33 + 2 * k, X + k))
    a('s_waitcnt lgkmcnt(0)')
    for k in range(8):
        a('v_add_f32 v%d, v%d, v%d' % (56 + k, 56 + k, 8 + k))
        a('v_add_f32 v%d, v%d, v%d' % (16 + k, 16 + k, 24 + k))
    for k in range(8):
        a('v_add_f32 v%d, v%d, v%d' % (56 + k, 56 + k, 16 + k))
    for k in range(8):
        a('v_add_f32 v%d, v%d, v%d' % (56 + k, 56 + k, 32 + k))
    for k in range(4):
        a('v_cvt_pk_bf16_f32 v%d, v%d, v%d' % (4 + k, 56 + 2 * k, 57 + 2 * k))
    a('s_lshl_b32 s3, s%d, 2' % S_J)
    a('s_add_u32 s3, s3, s49')
    a('s_add_u32 s3, s3, s50')
    a('s_lshl_b32 s3, s3, 10')
    a('s_add_u32 s3, s3, 0x%x' % WS_H)
    both(a, lambda m: a('buffer_store_dwordx4 v[4:7], v2, %s, s3 offen%s' % (srd(S_WS), m)))
    a('s_lshl_b32 s3, s%d, 3' % S_RB)
    a('s_add_u32 s3, s3, s%d' % S_J)
    a('s_lshl_b32 s3, s3, 3')
    a('s_add_u32 s3, s3, s%d' % S_W)
    a('s_lshl_b32 s3, s3, 2')
    a('s_add_u32 s3, s3, 0x%x' % WS_F4)
    a('s_waitcnt vmcnt(0)')
    both(a, lambda m: flag_store(a, 's3', S_TAG, m, 72))
    stamp(a, 21)


L_H, L_ACT, L_ST, L_CS = 65536, 131072, 159744, 160256


def phase45(a):
    D1 = 32
    BB = 8
    a('s_lshl_b32 s3, s%d, 3' % S_RB)
    a('s_add_u32 s3, s3, s%d' % S_W)
    a('s_lshl_b32 s3, s3, 5')
    a('s_add_u32 s3, s3, 0x%x' % WS_F4)
    poll8(a, 's3', 72)
    stamp(a, 22)
    a('s_lshl_b32 s43, s%d, 16' % S_RB)
    a('s_lshl_b32 s3, s%d, 12' % S_W)
    a('s_add_u32 s43, s43, s3')
    a('s_add_u32 s43, s43, 0x%x' % WS_H)
    a('s_add_u32 s3, s3, %d' % L_H)
    for mt in range(2):
        a('s_mov_b32 m0, s3')
        a('s_nop 0')
        for k in range(4):
            a('buffer_load_dwordx4 v2, %s, s43 offen offset:%d sc1 lds' % (srd(S_WS), k * 1024))
        if mt == 0:
            a('s_add_u32 s3, s3, 32768'); a('s_add_u32 s43, s43, 32768')
    w2_base(a, 's55')
    a('s_add_u32 s56, s55, %d' % (112 * 1024))
    a('s_cmp_eq_u32 s%d, 7' % S_W)
    a('s_cbranch_scc1 L_g1_stats')
    a('s_add_u32 s54, s54, %d' % (24 * 1024))
    for ks in range(24, 32):
        if ks == 28: a('s_add_u32 s54, s54, 4096')
        a('buffer_load_dwordx4 %s, v2, %s, s54 offen offset:%d sc1' % (vr(w1reg(ks), 4), srd(S_WS), (ks % 4) * 1024))
    a('s_mul_i32 s48, s%d, 7' % S_J)
    a('s_add_u32 s48, s48, s%d' % S_W)
    a('v_lshrrev_b32 v3, 5, v1')
    a('v_lshlrev_b32 v3, 3, v3')
    a('s_lshl_b32 s50, s48, 6')
    for q in range(4):
        a('buffer_load_dwordx2 %s, v3, %s, s50 offen offset:%d' % (vr(64 + 2 * q, 2), srd(S_B1), 16 * q))
    def w2load(q):
        nt, s = q // 14, q % 14
        base = 's55' if nt == 0 else 's56'
        hi = (s // 4) * 4096
        if hi:
            a('s_add_u32 s57, %s, %d' % (base, hi)); base = 's57'
        a('buffer_load_dwordx4 %s, v2, %s, %s offen offset:%d sc1' % (vr(w2_slot_reg(q), 4), srd(S_WS), base, (s % 4) * 1024))
    for q in range(8): w2load(q)
    a('s_waitcnt vmcnt(20)')
    stamp(a, 23)
    a('s_barrier')
    seq = [(ks, mt) for ks in range(32) for mt in range(2)]
    NB = 6
    def bload(i):
        ks, mt = seq[i]
        a('ds_read_b128 %s, v92 offset:%d' % (vr(BB + 4 * (i % NB), 4), (mt * 32 + ks) * 1024))
    a('v_add_u32 v92, %d, v2' % L_H)
    PF = 5
    for i in range(PF): bload(i)
    nw2 = 0
    for i, (ks, mt) in enumerate(seq):
        if i + PF < len(seq): bload(i + PF)
        rem = min(len(seq), i + PF + 1) - (i + 1)
        if ks == 24 and mt == 0:
            a('s_waitcnt vmcnt(%d) lgkmcnt(%d)' % (12 + nw2, rem))
        else:
            a('s_waitcnt lgkmcnt(%d)' % rem)
        a('v_mfma_f32_32x32x16_bf16 %s, %s, %s, %s' % (vr(D1 + 16 * mt, 16), vr(w1reg(ks), 4), vr(BB + 4 * (i % NB), 4),
                                                      '0' if ks == 0 else vr(D1 + 16 * mt, 16)))
        if mt == 1 and 1 <= ks <= 20:
            w2load(8 + ks - 1); nw2 += 1
        if mt == 1 and ks >= 25:
            colsum(a, [ks - 1], w1reg, False)
    colsum(a, [31], w1reg, False)
    a('v_add_f32 v80, v80, v81')
    a('v_add_f32 v82, v82, v83')
    a('v_add_f32 v80, v80, v82')
    a('v_mov_b32 v81, v80')
    a('v_permlane32_swap_b32 v80, v81')
    a('v_add_f32 v80, v80, v81')
    a('s_lshl_b32 s3, s%d, 7' % S_W)
    a('s_add_u32 s3, s3, %d' % L_CS)
    a('v_and_b32 v93, 31, v1')
    a('v_lshlrev_b32 v93, 2, v93')
    a('v_add_u32 v93, s3, v93')
    a('ds_write_b32 v93, v80')
    a('v_lshrrev_b32 v93, 5, v1')
    a('v_lshlrev_b32 v93, 4, v93')
    a('v_add_u32 v93, s3, v93')
    a('s_waitcnt lgkmcnt(0)')
    for q in range(4):
        a('ds_read_b128 %s, v93 offset:%d' % (vr(72 + 4 * q, 4), 32 * q))
    a('s_branch L_g1_epi')
    a.label('L_g1_stats')
    a.fence(4)
    for q in range(8): w2load(q)
    a('s_waitcnt vmcnt(8)')
    a('s_barrier')
    a('v_add_u32 v92, %d, v2' % L_H)
    for mt in range(2):
        SA, QA = 64 + 8 * mt, 68 + 8 * mt
        for ks0 in range(0, 32, 4):
            for u in range(4):
                a('ds_read_b128 %s, v92 offset:%d' % (vr(BB + 4 * u, 4), (mt * 32 + ks0 + u) * 1024))
            for u in range(4):
                a('s_waitcnt lgkmcnt(%d)' % (3 - u))
                for k in range(4):
                    first = (ks0 == 0 and u == 0)
                    a('v_dot2_f32_bf16 v%d, v%d, s44, %s' % (SA + k, BB + 4 * u + k, '0' if first else 'v%d' % (SA + k)))
                    a('v_dot2_f32_bf16 v%d, v%d, v%d, %s' % (QA + k, BB + 4 * u + k, BB + 4 * u + k, '0' if first else 'v%d' % (QA + k)))
        for base in (SA, QA):
            a('v_add_f32 v%d, v%d, v%d' % (base, base, base + 1))
            a('v_add_f32 v%d, v%d, v%d' % (base + 2, base + 2, base + 3))
            a('v_add_f32 v%d, v%d, v%d' % (base, base, base + 2))
    for (x, y) in ((64, 72), (68, 76)):
        a('v_permlane32_swap_b32 v%d, v%d' % (x, y))
        a('v_add_f32 v%d, v%d, v%d' % (x, x, y))
    a('s_mov_b32 s45, 0x%x' % f2u(1.0 / 512))
    a('s_mov_b32 s46, 0x%x' % f2u(1e-5))
    a('v_mul_f32 v64, s45, v64')
    a('v_mul_f32 v65, v64, v64')
    a('v_fma_f32 v68, v68, s45, -v65')
    a('v_add_f32 v68, s46, v68')
    a('v_rsq_f32 v68, v68')
    a('s_mov_b32 s45, 0x%x' % f2u(LOG2E))
    a('v_mul_f32 v68, s45, v68')
    a('v_mul_f32_e64 v69, -v64, v68')
    a('v_lshlrev_b32 v93, 3, v1')
    a('v_add_u32 v93, %d, v93' % L_ST)
    a('ds_write_b64 v93, v[68:69]')
    a.label('L_g1_epi')
    a.fence(12)
    stamp(a, 24)
    a('s_waitcnt lgkmcnt(0)')
    a('s_barrier')
    a('s_cmp_eq_u32 s%d, 7' % S_W)
    a('s_cbranch_scc1 L_g1_done')
    a('v_and_b32 v88, 31, v1')
    a('v_lshlrev_b32 v88, 3, v88')
    a('v_add_u32 v88, %d, v88' % L_ST)
    a('ds_read_b64 v[90:91], v88 offset:256')
    a('ds_read_b64 v[88:89], v88')
    a('s_waitcnt vmcnt(28)')
    for q in range(4):
        for e in range(2):
            a('v_lshlrev_b32 v%d, 16, v%d' % (8 + 4 * q + 2 * e, 64 + 2 * q + e))
            a('v_and_b32 v%d, 0xffff0000, v%d' % (8 + 4 * q + 2 * e + 1, 64 + 2 * q + e))
    a('s_mov_b32 s58, 0x%x' % f2u(LOG2E))
    a('s_mov_b32 s59, s58')
    for k in range(8):
        a('v_pk_mul_f32 v[%d:%d], v[%d:%d], s[58:59]' % (8 + 2 * k, 9 + 2 * k, 8 + 2 * k, 9 + 2 * k))
    a('s_lshl_b32 s3, s%d, 11' % S_W)
    a('s_add_u32 s3, s3, %d' % L_ACT)
    a('v_add_u32 v92, s3, v2')
    a('s_mov_b32 s60, 0.5'); a('s_mov_b32 s61, 0.5')
    a('s_waitcnt lgkmcnt(0)')
    P2 = lambda r: 'v[%d:%d]' % (r, r + 1)
    for mt in range(2):
        RS = 88 + 2 * mt
        for g in range(0, 16, 8):
            d = D1 + 16 * mt + g
            T, U = 24, 64
            for k in range(4):
                a('v_pk_fma_f32 %s, %s, %s, %s op_sel:[0,1,0] op_sel_hi:[1,1,1]' % (P2(T + 2 * k), P2(72 + g + 2 * k), P2(RS), P2(8 + g + 2 * k)))
            for k in range(4):
                a('v_pk_fma_f32 %s, %s, %s, %s op_sel:[0,0,0] op_sel_hi:[1,0,1]' % (P2(d + 2 * k), P2(d + 2 * k), P2(RS), P2(T + 2 * k)))
            for k in range(8): a('v_exp_f32 v%d, v%d' % (T + k, d + k))
            for k in range(4):
                a('v_pk_fma_f32 %s, %s, s[60:61], 1.0 op_sel_hi:[1,1,0]' % (P2(U + 2 * k), P2(T + 2 * k)))
            for k in range(4):
                a('v_pk_fma_f32 %s, %s, %s, 1.0 op_sel_hi:[1,1,0]' % (P2(U + 2 * k), P2(T + 2 * k), P2(U + 2 * k)))
            for k in range(8): a('v_rcp_f32 v%d, v%d' % (U + k, U + k))
            for k in range(4):
                a('v_pk_fma_f32 %s, %s, %s, %s neg_lo:[1,0,0] neg_hi:[1,0,0]' % (P2(d + 2 * k), P2(d + 2 * k), P2(U + 2 * k), P2(d + 2 * k)))
            for k in range(4):
                a('v_cvt_pk_bf16_f32 v%d, v%d, v%d' % (T + k, d + 2 * k, d + 2 * k + 1))
            a('ds_write_b128 v92, %s offset:%d' % (vr(T, 4), mt * 14 * 1024 + (g // 8) * 1024))
    a.label('L_g1_done')
    a.fence(4)
    stamp(a, 25)
    a('s_waitcnt vmcnt(0) lgkmcnt(0)')
    a('s_barrier')
    stamp(a, 26)
    D2, B2 = 8, 72
    seq = [(s, mt) for s in range(14) for mt in range(2)]
    def bload2(i):
        s, mt = seq[i]
        a('ds_read_b128 %s, v3 offset:%d' % (vr(B2 + 4 * (i % NB), 4), (mt * 14 + s) * 1024))
    a('v_add_u32 v3, %d, v2' % L_ACT)
    for i in range(PF): bload2(i)
    for i, (s, mt) in enumerate(seq):
        if i + PF < len(seq): bload2(i + PF)
        rem = min(len(seq), i + PF + 1) - (i + 1)
        a('s_waitcnt lgkmcnt(%d)' % rem)
        for nt in range(2):
            acc = D2 + 16 * (2 * nt + mt)
            a('v_mfma_f32_32x32x16_bf16 %s, %s, %s, %s' % (vr(acc, 16), vr(w2_slot_reg(nt * 14 + s), 4), vr(B2 + 4 * (i % NB), 4),
                                                          '0' if s == 0 else vr(acc, 16)))
    stamp(a, 27)
    a('s_lshl_b32 s3, s%d, 3' % S_RB)
    a('s_add_u32 s3, s3, s%d' % S_W)
    a('s_lshl_b32 s3, s3, 3')
    a('s_add_u32 s3, s3, s%d' % S_J)
    a('s_lshl_b32 s18, s3, 2')
    a('s_add_u32 s18, s18, 0x%x' % WS_F5)
    a('s_lshl_b32 s3, s3, 13')
    a('s_add_u32 s3, s3, 0x%x' % WS_P)
    a('s_add_u32 s43, s3, 4096')
    a.fence(8)
    for nt in range(2):
        for mt in range(2):
            acc = D2 + 16 * (2 * nt + mt)
            for k in range(8):
                a('v_cvt_pk_bf16_f32 v%d, v%d, v%d' % (acc + k, acc + 2 * k, acc + 2 * k + 1))
    def pst(m):
        for nt in range(2):
            for mt in range(2):
                acc = D2 + 16 * (2 * nt + mt)
                for hf in range(2):
                    a('buffer_store_dwordx4 %s, v2, %s, %s offen offset:%d%s' % (vr(acc + 4 * hf, 4), srd(S_WS), 's3' if nt == 0 else 's43',
                                                                              (mt * 2 + hf) * 1024, m))
    both(a, pst)
    a('s_waitcnt vmcnt(0)')
    both(a, lambda m: flag_store(a, 's18', S_TAG, m, 72))
    stamp(a, 28)


def phase6(a):
    a('s_lshl_b32 s3, s%d, 3' % S_RB)
    a('s_add_u32 s3, s3, s%d' % S_J)
    a('s_lshl_b32 s18, s3, 16')
    a('s_lshl_b32 s3, s3, 5')
    a('s_add_u32 s3, s3, 0x%x' % WS_F5)
    a('s_lshr_b32 s48, s%d, 2' % S_W)
    a('s_lshl_b32 s48, s48, 2')
    a('s_and_b32 s49, s%d, 1' % S_W)
    a('s_lshl_b32 s49, s49, 1')
    a('s_bfe_u32 s50, s%d, 0x10001' % S_W)
    a('s_add_u32 s48, s48, s49')
    a('s_add_u32 s48, s48, s50')
    a('s_lshl_b32 s48, s48, 10')
    a('s_add_u32 s18, s18, s48')
    a('s_add_u32 s18, s18, 0x%x' % WS_P)
    poll8(a, 's3', 72)
    stamp(a, 29)
    for src in range(8):
        a('buffer_load_dwordx4 %s, v2, %s, s18 offen sc1' % (vr(16 + 4 * src, 4), srd(S_WS)))
        if src < 7: a('s_add_u32 s18, s18, 8192')
    for k in range(4):
        a('v_lshlrev_b32 v%d, 16, v%d' % (64 + 2 * k, 4 + k))
        a('v_and_b32 v%d, 0xffff0000, v%d' % (65 + 2 * k, 4 + k))
    for src in range(8):
        a('s_waitcnt vmcnt(%d)' % (7 - src))
        t = 48 if src == 0 else 56
        for k in range(4):
            r = 16 + 4 * src + k
            a('v_lshlrev_b32 v%d, 16, v%d' % (t + 2 * k, r))
            a('v_and_b32 v%d, 0xffff0000, v%d' % (t + 1 + 2 * k, r))
        if src:
            for k in range(4): a('v_pk_add_f32 v[%d:%d], v[%d:%d], v[%d:%d]' % (48 + 2 * k, 49 + 2 * k, 48 + 2 * k, 49 + 2 * k, 56 + 2 * k, 57 + 2 * k))
    a('s_mov_b32 s3, 0x%x' % f2u(1.0 / LOG2E))
    for k in range(8): a('v_fma_f32 v%d, v%d, s3, v%d' % (48 + k, 48 + k, 64 + k))
    for k in range(4): a('v_cvt_pk_bf16_f32 v%d, v%d, v%d' % (8 + k, 48 + 2 * k, 49 + 2 * k))
    a('v_permlane32_swap_b32 v8, v10')
    a('v_permlane32_swap_b32 v9, v11')
    a('v_and_b32 v13, 31, v1')
    a('v_lshrrev_b32 v14, 5, v1')
    a('v_lshlrev_b32 v13, 10, v13')
    a('v_lshl_add_u32 v13, v14, 4, v13')
    a('buffer_store_dwordx4 v[8:11], v13, %s, s53 offen' % srd(S_OUT))
    a('s_cmp_lg_u32 s2, 0')
    a('s_cbranch_scc1 L_ep_done')
    a('s_cmp_lg_u32 s%d, 0' % S_W)
    a('s_cbranch_scc1 L_ep_done')
    a('s_mov_b32 s3, 0x%x' % WS_EPOCH)
    flag_store(a, 's3', S_E1, ' sc1', 72)
    a.label('L_ep_done')


def gen_fused(force_slow=False):
    n = NAME + '_kernel'
    text = HEADER + '; @launch grid=(256,1,1) block=(512,1,1) lds=163840\n'
    text += '.amdgcn_target "amdgcn-amd-amdhsa--gfx950"\n.text\n'
    a = Asm()
    end = 'L_end'
    setup(a, end)
    if STAMPS: a('v_mov_b32 v%d, 0' % STAMP_V)
    stamp(a, 0)
    phase1(a)
    phase2(a, force_slow)
    phase3(a)
    phase45(a)
    phase6(a)
    if STAMPS:
        a('s_waitcnt vmcnt(0)')
        stamp(a, 31)
        stamp_flush(a)
    a('s_waitcnt vmcnt(0)')
    a.label(end)
    a('s_endpgm')
    text += G.kernel_wrap(n, a.text())
    text += '.section .rodata,"a"\n.p2align 6\n' + G.desc(n)
    return text


if __name__ == '__main__':
    out = sys.argv[1] if len(sys.argv) > 1 else 'cdna_kernels/%s.s' % NAME
    for t in sys.argv[2:]:
        if '=' in t:
            k, v = t.split('='); OPT[k] = int(v)
        else:
            OPT[t] = 1
    STAMPS = 'stamps' in OPT
    t = gen_fused(force_slow='slow' in OPT)
    open(out, 'w').write(t)
    print('wrote', out, len(t))
```

```python
import sys, os
sys.path.insert(0, os.path.dirname(__file__))
from asmlib import Asm
import gen as G
from gen import (NAME, f2u, srd, vr, mk_srd, ln_stats, ln_apply, LOG2E, LIMIT2,
                 S_X, S_WQ, S_WKV, S_B1, S_OUT, S_WS, S_J, S_RB, S_W,
                 WS_KMAX, WS_WO, WS_W1, WS_W2, WS_O, WS_H, WS_P, WS_STAMP, WS_SIZE, HEADER)

WS_F1 = 0x30000
WS_F2 = 0x30400
WS_F3 = 0x31000
WS_F4 = 0x33000
WS_F5 = 0x35000
WS_EPOCH = 0x37000
S_TAG, S_FAST, S_E1, S_F1V = 100, 101, 16, 17
OPT = {}
STAMPS = False
STAMP_V = 0
SPIN = 1 << 17
_uid = [0]


def uid(p):
    _uid[0] += 1
    return '%s_%d' % (p, _uid[0])


def stamp(a, idx):
    if not STAMPS: return
    a('s_waitcnt lgkmcnt(0)')
    a('s_memtime s[96:97]')
    a('s_memrealtime s[98:99]')
    a('s_waitcnt lgkmcnt(0)')
    a('v_writelane_b32 v%d, s96, %d' % (STAMP_V, idx))
    a('v_writelane_b32 v%d, s98, %d' % (STAMP_V, idx + 32))


def stamp_flush_dbg(a):
    sel = [(0, 1), (0, 0), (12, 0), (16, 0), (17, 0), (21, 0), (23, 0), (24, 0), (26, 0), (27, 0), (28, 0), (29, 0), (31, 0), (31, 1), (4, 0), (9, 0)]
    for i, (idx, neg) in enumerate(sel):
        a('v_readlane_b32 s3, v%d, %d' % (STAMP_V, idx + 32))
        if neg: a('s_not_b32 s3, s3')
        a('s_nop 3')
        a('v_writelane_b32 v4, s3, %d' % i)
    a('v_lshlrev_b32 v3, 2, v1')
    a('s_mov_b64 exec, 0xffff')
    a('global_atomic_umax v3, v4, s[84:85]')
    a('s_mov_b64 exec, -1')


def stamp_flush(a):
    if not STAMPS: return
    if OPT.get('dbg'):
        stamp_flush_dbg(a); return
    a('s_lshl_b32 s3, s2, 11')
    a('s_lshl_b32 s43, s%d, 8' % S_W)
    a('s_add_u32 s3, s3, s43')
    a('s_add_u32 s3, s3, 0x%x' % WS_STAMP)
    a('v_lshlrev_b32 v3, 2, v1')
    a('buffer_store_dword v%d, v3, %s, s3 offen' % (STAMP_V, srd(S_WS)))


def both(a, fn):
    if OPT.get('nofast'):
        fn(' sc1'); return
    ls, ld = uid('L_sl'), uid('L_dn')
    a('s_cmp_eq_u32 s%d, 0' % S_FAST)
    a('s_cbranch_scc1 %s' % ls)
    fn('')
    a('s_branch %s' % ld)
    a.label(ls)
    fn(' sc1')
    a.label(ld)


def flag_store(a, soff, val, mod, vt):
    a('v_mov_b32 v%d, s%d' % (vt, val))
    a('s_mov_b64 exec, 1')
    a('buffer_store_dword v%d, off, %s, %s%s' % (vt, srd(S_WS), soff, mod))
    a('s_mov_b64 exec, -1')


def poll8(a, soff, vt, sleep=True):
    l, d = uid('L_poll'), uid('L_pd')
    a('v_and_b32 v%d, 7, v1' % (vt + 1))
    a('v_lshlrev_b32 v%d, 2, v%d' % (vt + 1, vt + 1))
    a('s_mov_b32 s43, %d' % SPIN)
    a.label(l)
    a('buffer_load_dword v%d, v%d, %s, %s offen sc1' % (vt, vt + 1, srd(S_WS), soff))
    a('s_waitcnt vmcnt(0)')
    a('v_cmp_ne_u32 vcc, s%d, v%d' % (S_TAG, vt))
    a('s_cbranch_vccz %s' % d)
    a('s_sub_u32 s43, s43, 1')
    a('s_cmp_lg_u32 s43, 0')
    a('s_cbranch_scc1 %s' % l)
    a.label(d)


def check256(a, vt):
    for k in range(4):
        a('v_xor_b32 v%d, s%d, v%d' % (vt + k, S_TAG, vt + k))
    a('v_or3_b32 v%d, v%d, v%d, v%d' % (vt, vt, vt + 1, vt + 2))
    a('v_or_b32 v%d, v%d, v%d' % (vt, vt, vt + 3))
    a('v_cmp_le_u32 vcc, 16, v%d' % vt)


def poll256(a, base, vt, first_loaded=False):
    l, d, c = uid('L_poll'), uid('L_pd'), uid('L_pc')
    a('s_mov_b32 s43, %d' % SPIN)
    a('s_mov_b32 s3, 0x%x' % base)
    if first_loaded:
        a('s_branch %s' % c)
    a.label(l)
    a('buffer_load_dwordx4 %s, v2, %s, s3 offen sc1' % (vr(vt, 4), srd(S_WS)))
    a.label(c)
    a('s_waitcnt vmcnt(0)')
    check256(a, vt)
    a('s_cbranch_vccz %s' % d)
    a('s_sub_u32 s43, s43, 1')
    a('s_cmp_lg_u32 s43, 0')
    a('s_cbranch_scc1 %s' % l)
    a.label(d)


def setup(a, endlabel):
    a('s_cmp_ge_u32 s2, 256')
    a('s_cbranch_scc1 %s' % endlabel)
    a('s_load_dwordx16 s[64:79], s[0:1], 0')
    a('s_load_dwordx8 s[80:87], s[0:1], 64')
    a('v_lshrrev_b32 v2, 6, v0')
    a('v_and_b32 v1, 63, v0')
    a('v_readfirstlane_b32 s%d, v2' % S_W)
    a('v_lshlrev_b32 v2, 4, v1')
    a('s_lshr_b32 s%d, s2, 3' % S_J)
    a('s_and_b32 s%d, s%d, 7' % (S_J, S_J))
    a('s_and_b32 s%d, s2, 7' % S_RB)
    a('s_lshl_b32 s%d, s%d, 2' % (S_RB, S_RB))
    a('s_lshr_b32 s3, s2, 6')
    a('s_add_u32 s%d, s%d, s3' % (S_RB, S_RB))
    a('s_getreg_b32 s%d, hwreg(HW_REG_XCC_ID, 0, 4)' % S_F1V)
    a('s_waitcnt lgkmcnt(0)')
    a('s_load_dword s%d, s[86:87], 0x%x' % (S_E1, WS_EPOCH))
    mk_srd(a, S_X, 64, 2048 * 512 * 2)
    a('s_bitcmp1_b32 s%d, 0' % S_J)
    a('s_cselect_b32 s%d, s70, s68' % S_WKV)
    a('s_cselect_b32 s%d, s71, s69' % (S_WKV + 1))
    a('s_mov_b32 s%d, 0x%x' % (S_WKV + 2, 512 * 16 * 2))
    a('s_mov_b32 s%d, 0x20000' % (S_WKV + 3))
    mk_srd(a, S_WQ, 66, 512 * 512 * 2)
    mk_srd(a, S_WS, 86, WS_SIZE)
    mk_srd(a, S_B1, 78, 1792 * 2)
    mk_srd(a, S_OUT, 82, 2048 * 512 * 2)


L_WKV, L_TB, L_X, L_WQ = 0, 16384, 32768, 98304
KVB, TS_ = 16384, 2064


def phase1(a):
    XR = 32
    TS, TQ, TT = 8, 16, 24
    a('s_mov_b32 s44, 0x3f803f80')
    a('s_mov_b32 s45, 0x%x' % f2u(1.0 / 512))
    a('s_mov_b32 s46, 0x%x' % f2u(1e-5))
    a('s_lshr_b32 s47, s%d, 1' % S_J)
    a('s_lshl_b32 s47, s47, 4')
    a('s_lshl_b32 s88, s%d, 1' % S_W)
    a('s_add_u32 s88, s88, s47')
    a('s_add_u32 s89, s88, 1')
    a('s_lshl_b32 s48, s%d, 16' % S_RB)
    def xload(i):
        a('s_lshl_b32 s43, s%d, 10' % (88 + i))
        a('s_add_u32 s43, s43, s48')
        a('buffer_load_dwordx4 %s, v2, %s, s43 offen' % (vr(XR + 4 * i, 4), srd(S_X)))
    xload(0); xload(1)
    a('s_lshl_b32 s43, s%d, 11' % S_W)
    a('s_mov_b32 m0, s43')
    a('s_nop 0')
    a('buffer_load_dwordx4 v2, %s, s43 offen lds' % srd(S_WKV))
    a('buffer_load_dwordx4 v2, %s, s43 offen offset:1024 lds' % srd(S_WKV))
    a('s_mul_i32 s3, s%d, 6' % S_W)
    for i in range(6):
        a('s_add_u32 s%d, s3, %d' % (90 + i, i))
        a('s_add_u32 s43, s%d, 16' % (90 + i))
        a('s_cmp_lt_u32 s%d, s47' % (90 + i))
        a('s_cselect_b32 s%d, s%d, s43' % (90 + i, 90 + i))
    a('v_lshrrev_b32 v3, 3, v1')
    a('v_and_b32 v4, 7, v1')
    a('v_lshlrev_b32 v5, 1, v3')
    a('v_and_b32 v5, 4, v5')
    a('v_xor_b32 v4, v4, v5')
    a('v_lshlrev_b32 v4, 4, v4')
    a('v_lshl_add_u32 v5, v3, 10, v4')
    if not OPT.get('nobar0'):
        a('s_barrier')
    for i in range(2, 8): xload(i)
    a('s_lshl_b32 s49, s%d, 16' % S_W)
    a('s_lshl_b32 s43, s%d, 7' % S_J)
    a('s_add_u32 s49, s49, s43')
    a('s_lshl_b32 s50, s%d, 13' % S_W)
    a('s_add_u32 s50, s50, %d' % L_WQ)
    for i in range(8):
        a('s_mov_b32 m0, s50')
        a('s_add_u32 s50, s50, 1024')
        a('buffer_load_dwordx4 v5, %s, s49 offen lds' % srd(S_WQ))
        if i < 7: a('s_add_u32 s49, s49, 8192')
    a('s_cmp_lt_u32 s2, 112')
    a('s_cbranch_scc1 L_tb_w1')
    a('s_cmp_lt_u32 s2, 224')
    a('s_cbranch_scc1 L_tb_w2')
    a('s_sub_u32 s3, s2, 224')
    a('s_mov_b32 s52, s72'); a('s_mov_b32 s53, s73'); a('s_mov_b32 s54, 0x%x' % (512 * 512 * 2))
    a('s_mov_b32 s56, 1024')
    a('s_and_b32 s60, s3, 3'); a('s_lshr_b32 s61, s3, 2')
    a('s_mov_b32 s59, %d' % (32 * 1024))
    a('s_mov_b32 s62, 0x%x' % WS_WO)
    a('s_branch L_tb_go')
    a.label('L_tb_w1')
    a('s_mov_b32 s52, s76'); a('s_mov_b32 s53, s77'); a('s_mov_b32 s54, 0x%x' % (512 * 1792 * 2))
    a('s_mov_b32 s56, 3584')
    a('s_and_b32 s60, s2, 3'); a('s_lshr_b32 s61, s2, 2')
    a('s_mov_b32 s59, %d' % (32 * 1024))
    a('s_mov_b32 s62, 0x%x' % WS_W1)
    a('s_branch L_tb_go')
    a.label('L_tb_w2')
    a('s_sub_u32 s3, s2, 112')
    a('s_mov_b32 s52, s80'); a('s_mov_b32 s53, s81'); a('s_mov_b32 s54, 0x%x' % (1792 * 512 * 2))
    a('s_mov_b32 s56, 1024')
    a('s_lshr_b32 s60, s3, 3'); a('s_and_b32 s61, s3, 7')
    a('s_mov_b32 s59, %d' % (112 * 1024))
    a('s_mov_b32 s62, 0x%x' % WS_W2)
    a.label('L_tb_go')
    a('s_mov_b32 s55, 0x20000')
    a('s_lshl_b32 s3, s60, 7')
    a('s_lshl_b32 s43, s%d, 4' % S_W)
    a('s_add_u32 s3, s3, s43')
    a('s_mul_i32 s57, s3, s56')
    a('s_lshl_b32 s3, s61, 7')
    a('s_add_u32 s57, s57, s3')
    a('s_lshl_b32 s3, s61, 1')
    a('s_mul_i32 s58, s3, s59')
    a('s_add_u32 s58, s58, s62')
    a('s_lshl_b32 s3, s60, 3')
    a('s_add_u32 s3, s3, s%d' % S_W)
    a('s_lshl_b32 s3, s3, 10')
    a('s_add_u32 s58, s58, s3')
    a('v_mul_lo_u32 v6, v3, s56')
    a('v_add_u32 v6, v6, v4')
    a('s_lshl_b32 s3, s%d, 11' % S_W)
    a('s_add_u32 s3, s3, %d' % L_TB)
    a('s_mov_b32 m0, s3')
    a('s_lshl_b32 s43, s56, 3')
    a('buffer_load_dwordx4 v6, s[52:55], s57 offen lds')
    a('s_add_u32 s3, s3, 1024')
    a('s_add_u32 s57, s57, s43')
    a('s_mov_b32 m0, s3')
    a('s_nop 0')
    a('buffer_load_dwordx4 v6, s[52:55], s57 offen lds')
    stamp(a, 1)
    a('s_waitcnt vmcnt(18) lgkmcnt(0)')
    a('s_mul_i32 s%d, s%d, 0x9E3779B1' % (S_TAG, S_E1))
    a('s_add_u32 s%d, s%d, 0x7F4A7C15' % (S_TAG, S_TAG))
    a('s_and_b32 s%d, s%d, 0xFFFFFFF0' % (S_TAG, S_TAG))
    a('s_or_b32 s%d, s%d, s%d' % (S_F1V, S_F1V, S_TAG))
    a('s_add_u32 s%d, s%d, 1' % (S_E1, S_E1))
    stamp(a, 2)
    SB = 72
    ln_stats(a, [XR, XR + 4], TS, TQ, SB)
    def xstore(i):
        a('s_lshl_b32 s3, s%d, 10' % (88 + i))
        a('s_and_b32 s43, s%d, 15' % (88 + i))
        a('s_lshl_b32 s43, s43, 4')
        a('s_add_u32 s3, s3, s43')
        a('s_add_u32 s3, s3, %d' % L_X)
        a('v_xor_b32 v7, s3, v2')
        a('ds_write_b128 v7, %s' % vr(XR + 4 * i, 4))
    for i in range(2):
        ln_apply(a, XR + 4 * i, SB + 2 * i, TT)
        xstore(i)
    a('s_waitcnt vmcnt(16) lgkmcnt(0)')
    stamp(a, 3)
    a('s_barrier')
    stamp(a, 4)
    a('s_cmp_lg_u32 s%d, 0' % S_W)
    a('s_cbranch_scc1 L_kv_done')
    KW, KX = 64, 128
    a('v_lshrrev_b32 v8, 4, v1')
    a('v_and_b32 v9, 15, v1')
    a('v_lshlrev_b32 v10, 8, v8')
    a('v_lshl_add_u32 v10, v9, 3, v10')
    a('v_xor_b32 v11, v8, v9')
    a('v_lshlrev_b32 v11, 4, v11')
    a('v_add_u32 v12, s47, v9')
    a('v_lshlrev_b32 v12, 10, v12')
    a('v_add_u32 v12, %d, v12' % L_X)
    a('v_add_u32 v12, v12, v11')
    a('v_xor_b32 v13, 64, v12')
    a('v_xor_b32 v14, 0x80, v12')
    a('v_xor_b32 v15, 0xc0, v12')
    def kvload(ks):
        a('ds_read_b64_tr_b16 %s, v10 offset:%d' % (vr(KW + 4 * ks, 2), 1024 * ks))
        a('ds_read_b64_tr_b16 %s, v10 offset:%d' % (vr(KW + 4 * ks + 2, 2), 1024 * ks + 128))
        a('ds_read_b128 %s, v%d offset:%d' % (vr(KX + 4 * ks, 4), 12 + ks % 4, (ks // 4) * 256))
    for ks in range(4): kvload(ks)
    a('s_bitcmp1_b32 s%d, 0' % S_J)
    a('s_cbranch_scc1 L_kv_v')
    for var in (0, 1):
        if var: a.label('L_kv_v'); a.fence(4)
        for ks in range(16):
            if ks + 4 < 16: kvload(ks + 4)
            a('s_waitcnt lgkmcnt(%d)' % (3 * (min(16, ks + 5) - (ks + 1))))
            acc = 16 + 4 * (ks % 2)
            A, B = (KW + 4 * ks, KX + 4 * ks) if var == 0 else (KX + 4 * ks, KW + 4 * ks)
            a('v_mfma_f32_16x16x32_bf16 %s, %s, %s, %s' % (vr(acc, 4), vr(A, 4), vr(B, 4), '0' if ks < 2 else vr(acc, 4)))
        for k in range(4):
            a('v_add_f32 v%d, v%d, v%d' % (16 + k, 16 + k, 20 + k))
        a('v_cvt_pk_bf16_f32 v16, v16, v17')
        a('v_cvt_pk_bf16_f32 v17, v18, v19')
        a('v_and_b32 v18, 1, v8')
        a('v_lshlrev_b32 v18, %d, v18' % (9 if var == 0 else 8))
        a('v_lshl_add_u32 v18, v9, 4, v18')
        a('v_lshrrev_b32 v19, 1, v8')
        a('v_lshl_add_u32 v18, v19, 3, v18')
        a('s_lshl_b32 s3, s%d, 1' % S_RB)
        a('s_lshr_b32 s43, s47, 5')
        a('s_add_u32 s3, s3, s43')
        a('s_lshl_b32 s3, s3, 11')
        a('s_and_b32 s43, s47, 16')
        if var == 0:
            a('s_lshl_b32 s43, s43, 4')
        else:
            a('s_lshl_b32 s43, s43, 5')
            a('s_add_u32 s43, s43, 1024')
        a('s_add_u32 s3, s3, s43')
        a('buffer_store_dwordx2 v[16:17], v18, %s, s3 offen sc1' % srd(S_WS))
        if var == 0:
            a('v_dot2_f32_bf16 v20, v16, v16, 0')
            a('v_dot2_f32_bf16 v20, v17, v17, v20')
            a('v_mov_b32 v21, v20')
            a('v_permlane32_swap_b32 v20, v21')
            a('v_add_f32 v20, v20, v21')
            a('v_mov_b32 v21, v20')
            a('v_permlane16_swap_b32 v20, v21')
            a('v_add_f32 v20, v20, v21')
            for sh in (8, 4, 2, 1):
                a('v_max_f32_dpp v20, v20, v20 row_ror:%d row_mask:0xf bank_mask:0xf' % sh)
            a('s_lshl_b32 s3, s%d, 2' % S_RB)
            a('s_lshr_b32 s43, s%d, 1' % S_J)
            a('s_add_u32 s3, s3, s43')
            a('s_lshl_b32 s3, s3, 2')
            a('s_add_u32 s3, s3, 0x%x' % WS_KMAX)
            a('s_mov_b64 exec, 1')
            a('buffer_store_dword v20, off, %s, s3 sc1' % srd(S_WS))
            a('s_mov_b64 exec, -1')
            a('s_branch L_kv_done')
    a.label('L_kv_done')
    a.fence(4)
    stamp(a, 5)
    a('s_waitcnt vmcnt(10)')
    stamp(a, 6)
    rows = [XR + 4 * i for i in range(2, 8)]
    ln_stats(a, rows, TS, TQ, SB)
    for i in range(2, 8):
        ln_apply(a, XR + 4 * i, SB + 2 * (i - 2), TT)
        xstore(i)
    stamp(a, 7)
    a('s_waitcnt vmcnt(0) lgkmcnt(0)')
    a('s_cmp_lg_u32 s%d, 0' % S_W)
    a('s_cbranch_scc1 L_f1_done')
    a('s_lshl_b32 s3, s%d, 3' % S_RB)
    a('s_add_u32 s3, s3, s%d' % S_J)
    a('s_lshl_b32 s3, s3, 2')
    a('s_add_u32 s3, s3, 0x%x' % WS_F1)
    flag_store(a, 's3', S_F1V, ' sc1', 8)
    a.label('L_f1_done')
    stamp(a, 8)
    a('s_barrier')
    stamp(a, 9)
    a('s_and_b32 s48, s%d, 1' % S_W)
    a('s_bfe_u32 s49, s%d, 0x10001' % S_W)
    a('s_lshr_b32 s50, s%d, 2' % S_W)
    a('v_lshrrev_b32 v8, 5, v1')
    a('v_bfe_u32 v9, v1, 4, 1')
    a('v_bfe_u32 v10, v1, 2, 2')
    a('v_and_b32 v11, 3, v1')
    a('v_lshrrev_b32 v12, 1, v11')
    a('v_lshl_add_u32 v12, v9, 1, v12')
    a('v_lshrrev_b32 v13, 1, v10')
    a('v_lshlrev_b32 v13, 2, v13')
    a('v_xor_b32 v12, v12, v13')
    a('v_lshlrev_b32 v12, 4, v12')
    a('v_and_b32 v11, 1, v11')
    a('v_lshl_add_u32 v12, v11, 3, v12')
    a('v_lshl_add_u32 v13, v8, 3, v10')
    a('v_lshl_add_u32 v13, v13, 7, v12')
    a('s_lshl_b32 s3, s50, 15')
    a('s_lshl_b32 s43, s48, 6')
    a('s_add_u32 s3, s3, %d' % L_WQ)
    a('v_xor_b32 v13, s43, v13')
    a('v_add_u32 v13, s3, v13')
    a('v_lshl_add_u32 v14, v8, 2, v10')
    a('v_lshl_add_u32 v14, v14, 7, v12')
    a('s_lshl_b32 s3, s%d, 11' % S_W)
    a('s_add_u32 s3, s3, %d' % L_TB)
    a('v_add_u32 v14, s3, v14')
    a('v_xor_b32 v15, 64, v14')
    for nt in range(2):
        a('ds_read_b64_tr_b16 %s, v%d' % (vr(192 + 4 * nt, 2), 14 + nt))
        a('ds_read_b64_tr_b16 %s, v%d offset:1024' % (vr(194 + 4 * nt, 2), 14 + nt))
    a('v_and_b32 v16, 31, v1')
    a('v_and_b32 v17, 15, v1')
    a('v_xor_b32 v17, v17, v8')
    a('v_lshlrev_b32 v17, 4, v17')
    a('v_lshl_add_u32 v17, v16, 10, v17')
    a('s_lshl_b32 s3, s49, 15')
    a('s_lshl_b32 s43, s50, 9')
    a('s_add_u32 s3, s3, s43')
    a('s_add_u32 s3, s3, %d' % L_X)
    a('v_add_u32 v24, s3, v17')
    for q in range(1, 8):
        a('v_xor_b32 v%d, %d, v24' % (24 + q, 32 * q))
    QA, QB, QD = 64, 128, 32
    def qload(s):
        a('ds_read_b64_tr_b16 %s, v13 offset:%d' % (vr(QA + 4 * s, 2), 2048 * s))
        a('ds_read_b64_tr_b16 %s, v13 offset:%d' % (vr(QA + 4 * s + 2, 2), 2048 * s + 512))
        a('ds_read_b128 %s, v%d offset:%d' % (vr(QB + 4 * s, 4), 24 + s % 8, (s // 8) * 256))
    PF = 4
    a('s_waitcnt lgkmcnt(0)')
    for s in range(PF): qload(s)
    a('buffer_store_dwordx4 %s, v2, %s, s58 offen sc1' % (vr(192, 4), srd(S_WS)))
    a('s_add_u32 s58, s58, s59')
    a('buffer_store_dwordx4 %s, v2, %s, s58 offen sc1' % (vr(196, 4), srd(S_WS)))
    for s in range(16):
        if s + PF < 16: qload(s + PF)
        rem = min(16, s + PF + 1) - (s + 1)
        a('s_waitcnt lgkmcnt(%d)' % (3 * rem))
        a('v_mfma_f32_32x32x16_bf16 %s, %s, %s, %s' % (vr(QD, 16), vr(QA + 4 * s, 4), vr(QB + 4 * s, 4), '0' if s == 0 else vr(QD, 16)))
    stamp(a, 10)
    a('s_lshl_b32 s3, s%d, 11' % S_W)
    a('v_add_u32 v8, s3, v2')
    a('s_xor_b32 s3, s3, %d' % (4 << 11))
    a('v_add_u32 v9, s3, v2')
    a('s_cmp_eq_u32 s50, 0')
    a('s_cbranch_scc0 L_q_kh1')
    a('s_nop 7')
    a('ds_write_b128 v8, %s' % vr(QD + 8, 4))
    a('ds_write_b128 v8, %s offset:1024' % vr(QD + 12, 4))
    a('s_branch L_q_x')
    a.label('L_q_kh1')
    a.fence(12)
    a('ds_write_b128 v8, %s' % vr(QD, 4))
    a('ds_write_b128 v8, %s offset:1024' % vr(QD + 4, 4))
    for k in range(8):
        a('v_mov_b32 v%d, v%d' % (QD + k, QD + 8 + k))
    a.label('L_q_x')
    a.fence(4)
    a('s_cmp_lg_u32 s%d, 7' % S_W)
    a('s_cbranch_scc1 L_f1p_done')
    poll256(a, WS_F1, 56)
    a.label('L_f1p_done')
    a('s_waitcnt lgkmcnt(0)')
    stamp(a, 11)
    a('s_barrier')
    stamp(a, 12)


R_Q, R_S0, R_S1, R_O, R_P0, R_P1 = 4, 8, 24, 40, 56, 60
R_V0, R_V1, R_K = 64, 72, 80
R_KAD, R_VA0, R_VA1, R_ROW, R_XRES = 88, 3, 89, 90, 92
R_WO, R_W1 = 192, 96


def prefetch_list(a):
    L = []
    def wo_addr():
        a('s_lshr_b32 s51, s%d, 1' % S_W)
        a('s_lshl_b32 s51, s51, 3')
        a('s_lshl_b32 s52, s%d, 6' % S_J)
        a('s_add_u32 s51, s51, s52')
        a('s_lshl_b32 s51, s51, 10')
        a('s_add_u32 s51, s51, 0x%x' % WS_WO)
        a('s_add_u32 s52, s51, %d' % (32 * 1024))
    def wo(nt, s):
        def f():
            if nt == 0 and s == 0: wo_addr()
            if s == 4: a('s_add_u32 s%d, s%d, 4096' % (51 + nt, 51 + nt))
            a('buffer_load_dwordx4 %s, v2, %s, s%d offen offset:%d sc1' % (vr(R_WO + 32 * nt + 4 * s, 4), srd(S_WS), 51 + nt, (s % 4) * 1024))
        return f
    for s in range(8):
        for nt in range(2): L.append(wo(nt, s))
    def xres():
        a('s_and_b32 s3, s%d, 1' % S_W)
        a('s_lshl_b32 s43, s%d, 1' % S_RB)
        a('s_add_u32 s3, s3, s43')
        a('s_lshl_b32 s3, s3, 15')
        a('s_lshl_b32 s43, s%d, 7' % S_J)
        a('s_add_u32 s3, s3, s43')
        a('s_lshr_b32 s43, s%d, 1' % S_W)
        a('s_lshl_b32 s43, s43, 5')
        a('s_add_u32 s53, s3, s43')
        a('buffer_load_dwordx4 %s, v%d, %s, s53 offen' % (vr(R_XRES, 4), R_ROW, srd(S_X)))
    L.append(xres)
    def w1_addr():
        a('s_mul_i32 s54, s%d, 7' % S_J)
        a('s_add_u32 s54, s54, s%d' % S_W)
        a('s_lshl_b32 s54, s54, 15')
        a('s_add_u32 s54, s54, 0x%x' % WS_W1)
        w2_base(a, 's55')
        a('s_add_u32 s56, s55, %d' % (8 * 1024))
        a('s_cmp_eq_u32 s%d, 7' % S_W)
        a('s_cselect_b32 s57, s56, s54')
        a('s_cselect_b32 s58, %d, 0' % ((112 - 14) * 1024))
    def w1(i):
        def f():
            if i == 0: w1_addr()
            if i < 6:
                if i == 4: a('s_add_u32 s57, s57, 4096')
                off = (i % 4) * 1024
            else:
                if i == 6:
                    a('s_add_u32 s57, s57, 2048'); a('s_add_u32 s57, s57, s58')
                elif (i - 6) % 4 == 0:
                    a('s_add_u32 s57, s57, 4096')
                off = ((i - 6) % 4) * 1024
            a('buffer_load_dwordx4 %s, v2, %s, s57 offen offset:%d sc1' % (vr(R_W1 + 4 * i, 4), srd(S_WS), off))
        return f
    for i in range(24): L.append(w1(i))
    return L


def w2_base(a, dst):
    a('s_mul_i32 %s, s%d, %d' % (dst, S_W, 2 * 112))
    a('s_mul_i32 s43, s%d, 14' % S_J)
    a('s_add_u32 %s, %s, s43' % (dst, dst))
    a('s_lshl_b32 %s, %s, 10' % (dst, dst))
    a('s_add_u32 %s, %s, 0x%x' % (dst, dst, WS_W2))


def w2_slot_reg(q):
    return 224 + 4 * q if q < 8 else 96 + 4 * (q - 8)


def attn_tile(a, u, extra=()):
    c, n = u % 2, (u + 1) % 2
    S = [R_S0, R_S1]
    K = lambda b: R_K + 4 * b
    V0 = lambda b: R_V0 + 4 * b
    V1 = lambda b: R_V1 + 4 * b
    ex = list(extra)
    def E(k): a('v_exp_f32 v%d, v%d' % (S[c] + k, S[c] + k))
    def X():
        if ex: ex.pop(0)()
    a('s_waitcnt lgkmcnt(0)')
    E(0)
    a('ds_read_b128 %s, v%d offset:%d' % (vr(K(c), 4), R_KAD, (u + 2) * TS_))
    E(1)
    a('ds_read_b128 %s, v%d offset:%d' % (vr(V0(n), 4), R_VA0, (u + 1) * TS_))
    E(2)
    a('ds_read_b128 %s, v%d offset:%d' % (vr(V1(c), 4), R_VA1, u * TS_))
    E(3)
    a('v_mfma_f32_32x32x16_bf16 %s, %s, %s, 0' % (vr(S[n], 16), vr(K(n), 4), vr(R_Q, 4)))
    E(4); X(); E(5); X(); E(6); X(); E(7)
    for k in range(4): a('v_cvt_pk_bf16_f32 v%d, v%d, v%d' % (R_P0 + k, S[c] + 2 * k, S[c] + 2 * k + 1))
    a('v_mfma_f32_32x32x16_bf16 %s, %s, %s, %s' % (vr(R_O, 16), vr(V1(n), 4), vr(R_P1, 4), vr(R_O, 16)))
    E(8); X(); E(9); X(); E(10); X(); E(11)
    a('v_mfma_f32_32x32x16_bf16 %s, %s, %s, %s' % (vr(R_O, 16), vr(V0(c), 4), vr(R_P0, 4), vr(R_O, 16)))
    for k in range(12, 16): E(k)
    for k in range(4): a('v_cvt_pk_bf16_f32 v%d, v%d, v%d' % (R_P1 + k, S[c] + 8 + 2 * k, S[c] + 9 + 2 * k))
    while ex: ex.pop(0)()


def attn_advance(a):
    for r in (R_KAD, R_VA0, R_VA1):
        a('v_add_u32 v%d, 0x%x, v%d' % (r, 8 * TS_, r))


def attention_fast(a):
    a('ds_read_b128 %s, v%d' % (vr(R_K, 4), R_KAD))
    a('ds_read_b128 %s, v%d offset:%d' % (vr(R_K + 4, 4), R_KAD, TS_))
    a('ds_read_b128 %s, v%d' % (vr(R_V0, 4), R_VA0))
    for k in range(16): a('v_mov_b32 v%d, 0' % (R_O + k))
    for k in range(4): a('v_mov_b32 v%d, 0' % (R_P1 + k))
    for k in range(4): a('v_mov_b32 v%d, 0' % (R_V1 + 4 + k))
    a('s_waitcnt lgkmcnt(2)')
    a('v_mfma_f32_32x32x16_bf16 %s, %s, %s, 0' % (vr(R_S0, 16), vr(R_K, 4), vr(R_Q, 4)))
    a.fence(12)
    for u in range(8): attn_tile(a, u)
    attn_advance(a)
    stamp(a, 15)
    a('s_waitcnt vmcnt(0)')
    a('s_barrier')
    stamp(a, 16)
    a('s_mov_b32 s62, 2')
    a('s_mov_b32 s3, 0x%x' % WS_F2)
    a.raw('.p2align 6')
    a.label('L_attn_a')
    a('buffer_load_dwordx4 %s, v2, %s, s3 offen sc1' % (vr(R_WO, 4), srd(S_WS)))
    for u in range(8): attn_tile(a, u)
    attn_advance(a)
    a('s_sub_u32 s62, s62, 1')
    a('s_cmp_lg_u32 s62, 0')
    a('s_cbranch_scc1 L_attn_a')
    poll256(a, WS_F2, R_WO, first_loaded=True)
    L = prefetch_list(a)
    per = [L[(len(L) * u) // 8:(len(L) * (u + 1)) // 8] for u in range(8)]
    a.fence(2)
    for u in range(8): attn_tile(a, u, per[u])
    attn_advance(a)
    a('s_mov_b32 s62, 4')
    a.raw('.p2align 6')
    a.label('L_attn_b')
    for u in range(8): attn_tile(a, u)
    attn_advance(a)
    a('s_sub_u32 s62, s62, 1')
    a('s_cmp_lg_u32 s62, 0')
    a('s_cbranch_scc1 L_attn_b')
    a('s_waitcnt lgkmcnt(0)')
    a('v_mfma_f32_32x32x16_bf16 %s, %s, %s, %s' % (vr(R_O, 16), vr(R_V1 + 4, 4), vr(R_P1, 4), vr(R_O, 16)))


def attention_slow(a):
    Q, O, P = R_Q, R_O, R_P0
    S = R_S0; K = R_K; V = R_V0
    M, MN, AL, T = R_S1, R_S1 + 1, R_S1 + 2, R_S1 + 3
    a('s_waitcnt vmcnt(0)')
    a('s_barrier')
    for k in range(16): a('v_mov_b32 v%d, 0' % (O + k))
    a('v_mov_b32 v%d, 0xff7fffff' % M)
    a('s_mov_b32 s62, 64')
    a.fence(4)
    a.label('L_attn_slow')
    a('ds_read_b128 %s, v%d' % (vr(K, 4), R_KAD))
    a('ds_read_b128 %s, v%d' % (vr(V, 4), R_VA0))
    a('ds_read_b128 %s, v%d' % (vr(V + 4, 4), R_VA1))
    for r in (R_KAD, R_VA0, R_VA1):
        a('v_add_u32 v%d, 0x%x, v%d' % (r, TS_, r))
    a('s_waitcnt lgkmcnt(0)')
    a('v_mfma_f32_32x32x16_bf16 %s, %s, %s, 0' % (vr(S, 16), vr(K, 4), vr(Q, 4)))
    a('v_max_f32 v%d, v%d, v%d' % (MN, S, S + 1))
    for k in range(2, 16, 2):
        a('v_max3_f32 v%d, v%d, v%d, v%d' % (MN, MN, S + k, S + k + 1))
    a('v_mov_b32 v%d, v%d' % (T, MN))
    a('v_permlane32_swap_b32 v%d, v%d' % (MN, T))
    a('v_max3_f32 v%d, v%d, v%d, v%d' % (MN, MN, T, M))
    a('v_sub_f32 v%d, v%d, v%d' % (AL, M, MN))
    a('v_exp_f32 v%d, v%d' % (AL, AL))
    a('v_mov_b32 v%d, v%d' % (M, MN))
    for k in range(16):
        a('v_sub_f32 v%d, v%d, v%d' % (S + k, S + k, MN))
    for k in range(16):
        a('v_exp_f32 v%d, v%d' % (S + k, S + k))
    for k in range(16):
        a('v_mul_f32 v%d, v%d, v%d' % (O + k, O + k, AL))
    for k in range(8):
        a('v_cvt_pk_bf16_f32 v%d, v%d, v%d' % (P + k, S + 2 * k, S + 2 * k + 1))
    a('v_mfma_f32_32x32x16_bf16 %s, %s, %s, %s' % (vr(O, 16), vr(V, 4), vr(P, 4), vr(O, 16)))
    a('v_mfma_f32_32x32x16_bf16 %s, %s, %s, %s' % (vr(O, 16), vr(V + 4, 4), vr(P + 4, 4), vr(O, 16)))
    a('s_sub_u32 s62, s62, 1')
    a('s_cmp_lg_u32 s62, 0')
    a('s_nop 7'); a('s_nop 7')
    a('s_cbranch_scc1 L_attn_slow')
    poll256(a, WS_F2, R_WO)
    for f in prefetch_list(a): f()


def phase2(a, force_slow=False):
    QD = 32
    a('ds_read_b128 %s, v9' % vr(48, 4))
    a('ds_read_b128 %s, v9 offset:1024' % vr(52, 4))
    a('v_and_b32 v8, 7, v1')
    a('v_lshlrev_b32 v8, 2, v8')
    a('s_lshl_b32 s3, s%d, 5' % S_RB)
    a('s_add_u32 s3, s3, 0x%x' % WS_F1)
    a('buffer_load_dword v12, v8, %s, s3 offen sc1' % srd(S_WS))
    a('v_lshlrev_b32 v8, 3, v1')
    a('s_mov_b32 s3, 0x%x' % WS_KMAX)
    a('buffer_load_dwordx2 v[10:11], v8, %s, s3 offen sc1' % srd(S_WS))
    a('s_lshl_b32 s3, s%d, 11' % S_W)
    a('s_mul_i32 s43, s%d, %d' % (S_W, TS_))
    a('s_add_u32 s43, s43, %d' % KVB)
    for i in range(8):
        a('s_mov_b32 m0, s43')
        a('s_add_u32 s43, s43, %d' % (8 * TS_))
        a('buffer_load_dwordx4 v2, %s, s3 offen sc1 lds' % srd(S_WS))
        a('buffer_load_dwordx4 v2, %s, s3 offen offset:1024 sc1 lds' % srd(S_WS))
        if i < 7: a('s_add_u32 s3, s3, 16384')
    a('v_mov_b32 v16, 0x3f803f80')
    for k in range(1, 4): a('v_mov_b32 v%d, v16' % (16 + k))
    a('s_movk_i32 s3, %d' % TS_)
    a('v_mul_lo_u32 v20, v1, s3')
    a('v_add_u32 v20, %d, v20' % (KVB + 2048))
    a('ds_write_b128 v20, v[16:19]')
    a('v_lshrrev_b32 v8, 5, v1')
    a('v_and_b32 v9, 15, v1')
    a('v_lshl_add_u32 v8, v8, 4, v9')
    a('v_lshlrev_b32 v8, 4, v8')
    a('v_add_u32 v8, %d, v8' % (KVB + 1024))
    a('v_add_u32 v9, 512, v8')
    a('v_and_b32 v13, 16, v1')
    a('v_cmp_eq_u32 vcc, 0, v13')
    a('v_mov_b32 v13, %d' % (KVB + 2048))
    a('v_cndmask_b32 v%d, v13, v8, vcc' % R_VA0)
    a('v_cndmask_b32 v%d, v13, v9, vcc' % R_VA1)
    a('v_add_u32 v%d, %d, v2' % (R_KAD, KVB))
    a('v_and_b32 v13, 31, v1')
    a('v_lshrrev_b32 v14, 5, v1')
    a('v_lshlrev_b32 v13, 10, v13')
    a('v_lshl_add_u32 v%d, v14, 4, v13' % R_ROW)
    a('s_mov_b32 s3, 0x%x' % f2u(0.25 * LOG2E))
    a('s_waitcnt lgkmcnt(1)')
    for k in range(8):
        a('v_add_f32 v%d, v%d, v%d' % (QD + k, QD + k, 48 + k))
    for k in range(8):
        a('v_mul_f32 v%d, s3, v%d' % (QD + k, QD + k))
    for k in range(4):
        a('v_cvt_pk_bf16_f32 v%d, v%d, v%d' % (R_Q + k, QD + 2 * k, QD + 2 * k + 1))
    a('v_dot2_f32_bf16 v14, v%d, v%d, 0' % (R_Q, R_Q))
    for k in range(1, 4): a('v_dot2_f32_bf16 v14, v%d, v%d, v14' % (R_Q + k, R_Q + k))
    a('s_waitcnt vmcnt(16)')
    stamp(a, 13)
    a('v_cmp_ne_u32 vcc, s%d, v12' % S_F1V)
    a('s_cmp_eq_u64 vcc, 0')
    a('s_cselect_b32 s%d, 1, 0' % S_FAST)
    a('v_max_f32 v10, v10, v11')
    a('v_mov_b32 v11, v10')
    a('v_permlane32_swap_b32 v10, v11')
    a('v_max_f32 v10, v10, v11')
    a('v_mov_b32 v11, v10')
    a('v_permlane16_swap_b32 v10, v11')
    a('v_max_f32 v10, v10, v11')
    for sh in (8, 4, 2, 1):
        a('v_max_f32_dpp v10, v10, v10 row_ror:%d row_mask:0xf bank_mask:0xf' % sh)
    a('v_mov_b32 v13, v14')
    a('v_permlane32_swap_b32 v14, v13')
    a('v_add_f32 v14, v14, v13')
    a('v_mul_f32 v14, v14, v10')
    a('s_mov_b32 s3, 0x%x' % f2u(-1.0 if force_slow else LIMIT2))
    a('v_cmp_nle_f32 vcc, v14, s3')
    a('s_waitcnt vmcnt(12) lgkmcnt(0)')
    stamp(a, 14)
    a('s_barrier')
    a('s_cmp_lg_u32 s%d, 0' % S_W)
    a('s_cbranch_scc1 L_f2_done')
    a('s_lshl_b32 s3, s2, 2')
    a('s_add_u32 s3, s3, 0x%x' % WS_F2)
    flag_store(a, 's3', S_TAG, ' sc1', 8)
    a.label('L_f2_done')
    a('s_cbranch_vccnz L_attn_fb')
    attention_fast(a)
    a('s_branch L_attn_fin')
    a.label('L_attn_fb')
    a.fence(4)
    attention_slow(a)
    a.label('L_attn_fin')
    a.fence(12)
    stamp(a, 17)
    O = R_O
    a('v_rcp_f32 v8, v%d' % (O + 8))
    for k in range(8): a('v_mul_f32 v%d, v%d, v8' % (O + k, O + k))
    for k in range(4): a('v_cvt_pk_bf16_f32 v%d, v%d, v%d' % (O + k, O + 2 * k, O + 2 * k + 1))
    G.q_frag_off(a, WS_O, 's48', 's49', 's50', 's3')
    both(a, lambda m: a('buffer_store_dwordx4 %s, v2, %s, s3 offen%s' % (vr(O, 4), srd(S_WS), m)))
    a('s_lshl_b32 s3, s%d, 1' % S_RB)
    a('s_add_u32 s3, s3, s49')
    a('s_lshl_b32 s3, s3, 3')
    a('s_add_u32 s3, s3, s%d' % S_J)
    a('s_lshl_b32 s3, s3, 1')
    a('s_add_u32 s3, s3, s50')
    a('s_lshl_b32 s3, s3, 1')
    a('s_add_u32 s3, s3, s48')
    a('s_lshl_b32 s3, s3, 2')
    a('s_add_u32 s3, s3, 0x%x' % WS_F3)
    a('s_waitcnt vmcnt(0)')
    both(a, lambda m: flag_store(a, 's3', S_TAG, m, 8))
    stamp(a, 18)


def colsum(a, ks_list, regf, first):
    for ks in ks_list:
        for k in range(4):
            c = 80 + k
            a('v_dot2_f32_bf16 v%d, v%d, s44, %s' % (c, regf(ks) + k, '0' if (first and ks == ks_list[0]) else 'v%d' % c))


def w1reg(ks):
    return R_W1 + 4 * ks if ks < 24 else 192 + 4 * (ks - 24)


def phase3(a):
    A, B = R_WO, 8
    D = [40, 64]
    a('s_and_b32 s48, s%d, 1' % S_W)
    a('s_lshr_b32 s49, s%d, 1' % S_W)
    a('s_mov_b32 s44, 0x3f803f80')
    a('s_cmp_eq_u32 s%d, 7' % S_W)
    a('s_cbranch_scc1 L_cs_skip')
    colsum(a, list(range(24)), w1reg, True)
    a.label('L_cs_skip')
    a('s_lshl_b32 s3, s%d, 1' % S_RB)
    a('s_add_u32 s3, s3, s48')
    a('s_lshl_b32 s50, s3, 5')
    a('s_lshl_b32 s3, s49, 3')
    a('s_add_u32 s3, s3, s50')
    a('s_lshl_b32 s18, s3, 10')
    a('s_add_u32 s18, s18, 0x%x' % WS_O)
    a('s_lshl_b32 s3, s3, 2')
    a('s_add_u32 s3, s3, 0x%x' % WS_F3)
    poll8(a, 's3', 72)
    stamp(a, 19)
    for s in range(8):
        if s == 4: a('s_add_u32 s18, s18, 4096')
        a('buffer_load_dwordx4 %s, v2, %s, s18 offen offset:%d sc1' % (vr(B + 4 * s, 4), srd(S_WS), (s % 4) * 1024))
    for s in range(8):
        a('s_waitcnt vmcnt(%d)' % (7 - s))
        for nt in range(2):
            a('v_mfma_f32_32x32x16_bf16 %s, %s, %s, %s' % (vr(D[nt], 16), vr(A + 32 * nt + 4 * s, 4), vr(B + 4 * s, 4),
                                                          '0' if s == 0 else vr(D[nt], 16)))
    stamp(a, 20)
    a('s_barrier')
    a('s_lshl_b32 s3, s48, 15')
    a('s_lshl_b32 s43, s49, 11')
    a('s_add_u32 s3, s3, s43')
    a('v_add_u32 v84, s3, v2')
    a.fence(8)
    for q in range(4):
        r = D[q // 2] + 8 * (q % 2)
        a('s_cmp_eq_u32 s49, %d' % q)
        a('s_cbranch_scc1 L_o_skip%d' % q)
        a('ds_write_b128 v84, %s offset:%d' % (vr(r, 4), q * 8192))
        a('ds_write_b128 v84, %s offset:%d' % (vr(r + 4, 4), q * 8192 + 1024))
        a('s_branch L_o_nxt%d' % q)
        a.label('L_o_skip%d' % q)
        for k in range(8): a('v_mov_b32 v%d, v%d' % (56 + k, r + k))
        a.label('L_o_nxt%d' % q)
    a('s_waitcnt lgkmcnt(0)')
    a('s_barrier')
    a('s_lshl_b32 s3, s48, 15')
    a('s_lshl_b32 s43, s49, 13')
    a('s_add_u32 s3, s3, s43')
    for d in range(1, 4):
        a('s_add_u32 s43, s49, %d' % d)
        a('s_and_b32 s43, s43, 3')
        a('s_lshl_b32 s43, s43, 11')
        a('s_add_u32 s43, s43, s3')
        a('v_add_u32 v%d, s43, v2' % (83 + d))
        a('ds_read_b128 %s, v%d' % (vr(8 + 8 * (d - 1), 4), 83 + d))
        a('ds_read_b128 %s, v%d offset:1024' % (vr(12 + 8 * (d - 1), 4), 83 + d))
    X = R_XRES
    a('v_permlane32_swap_b32 v%d, v%d' % (X, X + 2))
    a('v_permlane32_swap_b32 v%d, v%d' % (X + 1, X + 3))
    for k in range(4):
        a('v_lshlrev_b32 v%d, 16, v%d' % (32 + 2 * k, X + k))
        a('v_and_b32 v%d, 0xffff0000, v%d' % (33 + 2 * k, X + k))
    a('s_waitcnt lgkmcnt(0)')
    for k in range(8):
        a('v_add_f32 v%d, v%d, v%d' % (56 + k, 56 + k, 8 + k))
        a('v_add_f32 v%d, v%d, v%d' % (16 + k, 16 + k, 24 + k))
    for k in range(8):
        a('v_add_f32 v%d, v%d, v%d' % (56 + k, 56 + k, 16 + k))
    for k in range(8):
        a('v_add_f32 v%d, v%d, v%d' % (56 + k, 56 + k, 32 + k))
    for k in range(4):
        a('v_cvt_pk_bf16_f32 v%d, v%d, v%d' % (4 + k, 56 + 2 * k, 57 + 2 * k))
    a('s_lshl_b32 s3, s%d, 2' % S_J)
    a('s_add_u32 s3, s3, s49')
    a('s_add_u32 s3, s3, s50')
    a('s_lshl_b32 s3, s3, 10')
    a('s_add_u32 s3, s3, 0x%x' % WS_H)
    both(a, lambda m: a('buffer_store_dwordx4 v[4:7], v2, %s, s3 offen%s' % (srd(S_WS), m)))
    a('s_lshl_b32 s3, s%d, 3' % S_RB)
    a('s_add_u32 s3, s3, s%d' % S_J)
    a('s_lshl_b32 s3, s3, 3')
    a('s_add_u32 s3, s3, s%d' % S_W)
    a('s_lshl_b32 s3, s3, 2')
    a('s_add_u32 s3, s3, 0x%x' % WS_F4)
    a('s_waitcnt vmcnt(0)')
    both(a, lambda m: flag_store(a, 's3', S_TAG, m, 72))
    stamp(a, 21)


L_H, L_ACT, L_ST, L_CS = 65536, 131072, 159744, 160256


def phase45(a):
    D1 = 32
    BB = 8
    a('s_lshl_b32 s3, s%d, 3' % S_RB)
    a('s_add_u32 s3, s3, s%d' % S_W)
    a('s_lshl_b32 s3, s3, 5')
    a('s_add_u32 s3, s3, 0x%x' % WS_F4)
    poll8(a, 's3', 72)
    stamp(a, 22)
    a('s_lshl_b32 s43, s%d, 16' % S_RB)
    a('s_lshl_b32 s3, s%d, 12' % S_W)
    a('s_add_u32 s43, s43, s3')
    a('s_add_u32 s43, s43, 0x%x' % WS_H)
    a('s_add_u32 s3, s3, %d' % L_H)
    for mt in range(2):
        a('s_mov_b32 m0, s3')
        a('s_nop 0')
        for k in range(4):
            a('buffer_load_dwordx4 v2, %s, s43 offen offset:%d sc1 lds' % (srd(S_WS), k * 1024))
        if mt == 0:
            a('s_add_u32 s3, s3, 32768'); a('s_add_u32 s43, s43, 32768')
    w2_base(a, 's55')
    a('s_add_u32 s56, s55, %d' % (112 * 1024))
    a('s_cmp_eq_u32 s%d, 7' % S_W)
    a('s_cbranch_scc1 L_g1_stats')
    a('s_add_u32 s54, s54, %d' % (24 * 1024))
    for ks in range(24, 32):
        if ks == 28: a('s_add_u32 s54, s54, 4096')
        a('buffer_load_dwordx4 %s, v2, %s, s54 offen offset:%d sc1' % (vr(w1reg(ks), 4), srd(S_WS), (ks % 4) * 1024))
    a('s_mul_i32 s48, s%d, 7' % S_J)
    a('s_add_u32 s48, s48, s%d' % S_W)
    a('v_lshrrev_b32 v3, 5, v1')
    a('v_lshlrev_b32 v3, 3, v3')
    a('s_lshl_b32 s50, s48, 6')
    for q in range(4):
        a('buffer_load_dwordx2 %s, v3, %s, s50 offen offset:%d' % (vr(64 + 2 * q, 2), srd(S_B1), 16 * q))
    def w2load(q):
        nt, s = q // 14, q % 14
        base = 's55' if nt == 0 else 's56'
        hi = (s // 4) * 4096
        if hi:
            a('s_add_u32 s57, %s, %d' % (base, hi)); base = 's57'
        a('buffer_load_dwordx4 %s, v2, %s, %s offen offset:%d sc1' % (vr(w2_slot_reg(q), 4), srd(S_WS), base, (s % 4) * 1024))
    for q in range(8): w2load(q)
    a('s_waitcnt vmcnt(20)')
    stamp(a, 23)
    a('s_barrier')
    seq = [(ks, mt) for ks in range(32) for mt in range(2)]
    NB = 6
    def bload(i):
        ks, mt = seq[i]
        a('ds_read_b128 %s, v92 offset:%d' % (vr(BB + 4 * (i % NB), 4), (mt * 32 + ks) * 1024))
    a('v_add_u32 v92, %d, v2' % L_H)
    PF = 5
    for i in range(PF): bload(i)
    nw2 = 0
    for i, (ks, mt) in enumerate(seq):
        if i + PF < len(seq): bload(i + PF)
        rem = min(len(seq), i + PF + 1) - (i + 1)
        if ks == 24 and mt == 0:
            a('s_waitcnt vmcnt(%d) lgkmcnt(%d)' % (12 + nw2, rem))
        else:
            a('s_waitcnt lgkmcnt(%d)' % rem)
        a('v_mfma_f32_32x32x16_bf16 %s, %s, %s, %s' % (vr(D1 + 16 * mt, 16), vr(w1reg(ks), 4), vr(BB + 4 * (i % NB), 4),
                                                      '0' if ks == 0 else vr(D1 + 16 * mt, 16)))
        if mt == 1 and 1 <= ks <= 20:
            w2load(8 + ks - 1); nw2 += 1
        if mt == 1 and ks >= 25:
            colsum(a, [ks - 1], w1reg, False)
    colsum(a, [31], w1reg, False)
    a('v_add_f32 v80, v80, v81')
    a('v_add_f32 v82, v82, v83')
    a('v_add_f32 v80, v80, v82')
    a('v_mov_b32 v81, v80')
    a('v_permlane32_swap_b32 v80, v81')
    a('v_add_f32 v80, v80, v81')
    a('s_lshl_b32 s3, s%d, 7' % S_W)
    a('s_add_u32 s3, s3, %d' % L_CS)
    a('v_and_b32 v93, 31, v1')
    a('v_lshlrev_b32 v93, 2, v93')
    a('v_add_u32 v93, s3, v93')
    a('ds_write_b32 v93, v80')
    a('v_lshrrev_b32 v93, 5, v1')
    a('v_lshlrev_b32 v93, 4, v93')
    a('v_add_u32 v93, s3, v93')
    a('s_waitcnt lgkmcnt(0)')
    for q in range(4):
        a('ds_read_b128 %s, v93 offset:%d' % (vr(72 + 4 * q, 4), 32 * q))
    a('s_branch L_g1_epi')
    a.label('L_g1_stats')
    a.fence(4)
    for q in range(8): w2load(q)
    a('s_waitcnt vmcnt(8)')
    a('s_barrier')
    a('v_add_u32 v92, %d, v2' % L_H)
    for mt in range(2):
        SA, QA = 64 + 8 * mt, 68 + 8 * mt
        for ks0 in range(0, 32, 4):
            for u in range(4):
                a('ds_read_b128 %s, v92 offset:%d' % (vr(BB + 4 * u, 4), (mt * 32 + ks0 + u) * 1024))
            for u in range(4):
                a('s_waitcnt lgkmcnt(%d)' % (3 - u))
                for k in range(4):
                    first = (ks0 == 0 and u == 0)
                    a('v_dot2_f32_bf16 v%d, v%d, s44, %s' % (SA + k, BB + 4 * u + k, '0' if first else 'v%d' % (SA + k)))
                    a('v_dot2_f32_bf16 v%d, v%d, v%d, %s' % (QA + k, BB + 4 * u + k, BB + 4 * u + k, '0' if first else 'v%d' % (QA + k)))
        for base in (SA, QA):
            a('v_add_f32 v%d, v%d, v%d' % (base, base, base + 1))
            a('v_add_f32 v%d, v%d, v%d' % (base + 2, base + 2, base + 3))
            a('v_add_f32 v%d, v%d, v%d' % (base, base, base + 2))
    for (x, y) in ((64, 72), (68, 76)):
        a('v_permlane32_swap_b32 v%d, v%d' % (x, y))
        a('v_add_f32 v%d, v%d, v%d' % (x, x, y))
    a('s_mov_b32 s45, 0x%x' % f2u(1.0 / 512))
    a('s_mov_b32 s46, 0x%x' % f2u(1e-5))
    a('v_mul_f32 v64, s45, v64')
    a('v_mul_f32 v65, v64, v64')
    a('v_fma_f32 v68, v68, s45, -v65')
    a('v_add_f32 v68, s46, v68')
    a('v_rsq_f32 v68, v68')
    a('s_mov_b32 s45, 0x%x' % f2u(LOG2E))
    a('v_mul_f32 v68, s45, v68')
    a('v_mul_f32_e64 v69, -v64, v68')
    a('v_lshlrev_b32 v93, 3, v1')
    a('v_add_u32 v93, %d, v93' % L_ST)
    a('ds_write_b64 v93, v[68:69]')
    a.label('L_g1_epi')
    a.fence(12)
    stamp(a, 24)
    a('s_waitcnt lgkmcnt(0)')
    a('s_barrier')
    a('s_cmp_eq_u32 s%d, 7' % S_W)
    a('s_cbranch_scc1 L_g1_done')
    a('v_and_b32 v88, 31, v1')
    a('v_lshlrev_b32 v88, 3, v88')
    a('v_add_u32 v88, %d, v88' % L_ST)
    a('ds_read_b64 v[90:91], v88 offset:256')
    a('ds_read_b64 v[88:89], v88')
    a('s_waitcnt vmcnt(28)')
    for q in range(4):
        for e in range(2):
            a('v_lshlrev_b32 v%d, 16, v%d' % (8 + 4 * q + 2 * e, 64 + 2 * q + e))
            a('v_and_b32 v%d, 0xffff0000, v%d' % (8 + 4 * q + 2 * e + 1, 64 + 2 * q + e))
    a('s_mov_b32 s58, 0x%x' % f2u(LOG2E))
    a('s_mov_b32 s59, s58')
    for k in range(8):
        a('v_pk_mul_f32 v[%d:%d], v[%d:%d], s[58:59]' % (8 + 2 * k, 9 + 2 * k, 8 + 2 * k, 9 + 2 * k))
    a('s_lshl_b32 s3, s%d, 11' % S_W)
    a('s_add_u32 s3, s3, %d' % L_ACT)
    a('v_add_u32 v92, s3, v2')
    a('s_mov_b32 s60, 0.5'); a('s_mov_b32 s61, 0.5')
    a('s_waitcnt lgkmcnt(0)')
    P2 = lambda r: 'v[%d:%d]' % (r, r + 1)
    for mt in range(2):
        RS = 88 + 2 * mt
        for g in range(0, 16, 8):
            d = D1 + 16 * mt + g
            T, U = 24, 64
            for k in range(4):
                a('v_pk_fma_f32 %s, %s, %s, %s op_sel:[0,1,0] op_sel_hi:[1,1,1]' % (P2(T + 2 * k), P2(72 + g + 2 * k), P2(RS), P2(8 + g + 2 * k)))
            for k in range(4):
                a('v_pk_fma_f32 %s, %s, %s, %s op_sel:[0,0,0] op_sel_hi:[1,0,1]' % (P2(d + 2 * k), P2(d + 2 * k), P2(RS), P2(T + 2 * k)))
            for k in range(8): a('v_exp_f32 v%d, v%d' % (T + k, d + k))
            for k in range(4):
                a('v_pk_fma_f32 %s, %s, s[60:61], 1.0 op_sel_hi:[1,1,0]' % (P2(U + 2 * k), P2(T + 2 * k)))
            for k in range(4):
                a('v_pk_fma_f32 %s, %s, %s, 1.0 op_sel_hi:[1,1,0]' % (P2(U + 2 * k), P2(T + 2 * k), P2(U + 2 * k)))
            for k in range(8): a('v_rcp_f32 v%d, v%d' % (U + k, U + k))
            for k in range(4):
                a('v_pk_fma_f32 %s, %s, %s, %s neg_lo:[1,0,0] neg_hi:[1,0,0]' % (P2(d + 2 * k), P2(d + 2 * k), P2(U + 2 * k), P2(d + 2 * k)))
            for k in range(4):
                a('v_cvt_pk_bf16_f32 v%d, v%d, v%d' % (T + k, d + 2 * k, d + 2 * k + 1))
            a('ds_write_b128 v92, %s offset:%d' % (vr(T, 4), mt * 14 * 1024 + (g // 8) * 1024))
    a.label('L_g1_done')
    a.fence(4)
    stamp(a, 25)
    a('s_waitcnt vmcnt(0) lgkmcnt(0)')
    a('s_barrier')
    stamp(a, 26)
    D2, B2 = 8, 72
    seq = [(s, mt) for s in range(14) for mt in range(2)]
    def bload2(i):
        s, mt = seq[i]
        a('ds_read_b128 %s, v3 offset:%d' % (vr(B2 + 4 * (i % NB), 4), (mt * 14 + s) * 1024))
    a('v_add_u32 v3, %d, v2' % L_ACT)
    for i in range(PF): bload2(i)
    for i, (s, mt) in enumerate(seq):
        if i + PF < len(seq): bload2(i + PF)
        rem = min(len(seq), i + PF + 1) - (i + 1)
        a('s_waitcnt lgkmcnt(%d)' % rem)
        for nt in range(2):
            acc = D2 + 16 * (2 * nt + mt)
            a('v_mfma_f32_32x32x16_bf16 %s, %s, %s, %s' % (vr(acc, 16), vr(w2_slot_reg(nt * 14 + s), 4), vr(B2 + 4 * (i % NB), 4),
                                                          '0' if s == 0 else vr(acc, 16)))
    stamp(a, 27)
    a('s_lshl_b32 s3, s%d, 3' % S_RB)
    a('s_add_u32 s3, s3, s%d' % S_W)
    a('s_lshl_b32 s3, s3, 3')
    a('s_add_u32 s3, s3, s%d' % S_J)
    a('s_lshl_b32 s18, s3, 2')
    a('s_add_u32 s18, s18, 0x%x' % WS_F5)
    a('s_lshl_b32 s3, s3, 13')
    a('s_add_u32 s3, s3, 0x%x' % WS_P)
    a('s_add_u32 s43, s3, 4096')
    a.fence(8)
    for nt in range(2):
        for mt in range(2):
            acc = D2 + 16 * (2 * nt + mt)
            for k in range(8):
                a('v_cvt_pk_bf16_f32 v%d, v%d, v%d' % (acc + k, acc + 2 * k, acc + 2 * k + 1))
    def pst(m):
        for nt in range(2):
            for mt in range(2):
                acc = D2 + 16 * (2 * nt + mt)
                for hf in range(2):
                    a('buffer_store_dwordx4 %s, v2, %s, %s offen offset:%d%s' % (vr(acc + 4 * hf, 4), srd(S_WS), 's3' if nt == 0 else 's43',
                                                                              (mt * 2 + hf) * 1024, m))
    both(a, pst)
    a('s_waitcnt vmcnt(0)')
    both(a, lambda m: flag_store(a, 's18', S_TAG, m, 72))
    stamp(a, 28)


def phase6(a):
    a('s_lshl_b32 s3, s%d, 3' % S_RB)
    a('s_add_u32 s3, s3, s%d' % S_J)
    a('s_lshl_b32 s18, s3, 16')
    a('s_lshl_b32 s3, s3, 5')
    a('s_add_u32 s3, s3, 0x%x' % WS_F5)
    a('s_lshr_b32 s48, s%d, 2' % S_W)
    a('s_lshl_b32 s48, s48, 2')
    a('s_and_b32 s49, s%d, 1' % S_W)
    a('s_lshl_b32 s49, s49, 1')
    a('s_bfe_u32 s50, s%d, 0x10001' % S_W)
    a('s_add_u32 s48, s48, s49')
    a('s_add_u32 s48, s48, s50')
    a('s_lshl_b32 s48, s48, 10')
    a('s_add_u32 s18, s18, s48')
    a('s_add_u32 s18, s18, 0x%x' % WS_P)
    poll8(a, 's3', 72)
    stamp(a, 29)
    for src in range(8):
        a('buffer_load_dwordx4 %s, v2, %s, s18 offen sc1' % (vr(16 + 4 * src, 4), srd(S_WS)))
        if src < 7: a('s_add_u32 s18, s18, 8192')
    for k in range(4):
        a('v_lshlrev_b32 v%d, 16, v%d' % (64 + 2 * k, 4 + k))
        a('v_and_b32 v%d, 0xffff0000, v%d' % (65 + 2 * k, 4 + k))
    for src in range(8):
        a('s_waitcnt vmcnt(%d)' % (7 - src))
        t = 48 if src == 0 else 56
        for k in range(4):
            r = 16 + 4 * src + k
            a('v_lshlrev_b32 v%d, 16, v%d' % (t + 2 * k, r))
            a('v_and_b32 v%d, 0xffff0000, v%d' % (t + 1 + 2 * k, r))
        if src:
            for k in range(4): a('v_pk_add_f32 v[%d:%d], v[%d:%d], v[%d:%d]' % (48 + 2 * k, 49 + 2 * k, 48 + 2 * k, 49 + 2 * k, 56 + 2 * k, 57 + 2 * k))
    a('s_mov_b32 s3, 0x%x' % f2u(1.0 / LOG2E))
    for k in range(8): a('v_fma_f32 v%d, v%d, s3, v%d' % (48 + k, 48 + k, 64 + k))
    for k in range(4): a('v_cvt_pk_bf16_f32 v%d, v%d, v%d' % (8 + k, 48 + 2 * k, 49 + 2 * k))
    a('v_permlane32_swap_b32 v8, v10')
    a('v_permlane32_swap_b32 v9, v11')
    a('v_and_b32 v13, 31, v1')
    a('v_lshrrev_b32 v14, 5, v1')
    a('v_lshlrev_b32 v13, 10, v13')
    a('v_lshl_add_u32 v13, v14, 4, v13')
    a('buffer_store_dwordx4 v[8:11], v13, %s, s53 offen' % srd(S_OUT))
    a('s_cmp_lg_u32 s2, 0')
    a('s_cbranch_scc1 L_ep_done')
    a('s_cmp_lg_u32 s%d, 0' % S_W)
    a('s_cbranch_scc1 L_ep_done')
    a('s_mov_b32 s3, 0x%x' % WS_EPOCH)
    flag_store(a, 's3', S_E1, ' sc1', 72)
    a.label('L_ep_done')


def gen_fused(force_slow=False):
    n = NAME + '_kernel'
    text = HEADER + '; @launch grid=(256,1,1) block=(512,1,1) lds=163840\n'
    text += '.amdgcn_target "amdgcn-amd-amdhsa--gfx950"\n.text\n'
    a = Asm()
    end = 'L_end'
    setup(a, end)
    if STAMPS: a('v_mov_b32 v%d, 0' % STAMP_V)
    stamp(a, 0)
    phase1(a)
    phase2(a, force_slow)
    phase3(a)
    phase45(a)
    phase6(a)
    if STAMPS:
        a('s_waitcnt vmcnt(0)')
        stamp(a, 31)
        stamp_flush(a)
    a('s_waitcnt vmcnt(0)')
    a.label(end)
    a('s_endpgm')
    text += G.kernel_wrap(n, a.text())
    text += '.section .rodata,"a"\n.p2align 6\n' + G.desc(n)
    return text


if __name__ == '__main__':
    out = sys.argv[1] if len(sys.argv) > 1 else 'cdna_kernels/%s.s' % NAME
    for t in sys.argv[2:]:
        if '=' in t:
            k, v = t.split('='); OPT[k] = int(v)
        else:
            OPT[t] = 1
    STAMPS = 'stamps' in OPT
    t = gen_fused(force_slow='slow' in OPT)
    open(out, 'w').write(t)
    print('wrote', out, len(t))
```

```python
import sys, os
sys.path.insert(0, os.path.dirname(__file__))
from asmlib import Asm
import gen as G
from gen import (NAME, f2u, srd, vr, mk_srd, ln_stats, ln_apply, LOG2E, LIMIT2,
                 S_X, S_WQ, S_WKV, S_B1, S_OUT, S_WS, S_J, S_RB, S_W,
                 WS_KMAX, WS_WO, WS_W1, WS_W2, WS_O, WS_H, WS_P, WS_STAMP, WS_SIZE, HEADER)

WS_F1 = 0x30000
WS_F2 = 0x30400
WS_F3 = 0x31000
WS_F4 = 0x33000
WS_F5 = 0x35000
WS_EPOCH = 0x37000
S_TAG, S_FAST, S_E1, S_F1V = 100, 101, 16, 17
OPT = {}
STAMPS = False
STAMP_V = 0
SPIN = 1 << 17
_uid = [0]


def uid(p):
    _uid[0] += 1
    return '%s_%d' % (p, _uid[0])


def stamp(a, idx):
    if not STAMPS: return
    a('s_waitcnt lgkmcnt(0)')
    a('s_memtime s[96:97]')
    a('s_memrealtime s[98:99]')
    a('s_waitcnt lgkmcnt(0)')
    a('v_writelane_b32 v%d, s96, %d' % (STAMP_V, idx))
    a('v_writelane_b32 v%d, s98, %d' % (STAMP_V, idx + 32))


def stamp_flush_dbg(a):
    sel = [(0, 1), (0, 0), (12, 0), (16, 0), (17, 0), (21, 0), (23, 0), (24, 0), (26, 0), (27, 0), (28, 0), (29, 0), (31, 0), (31, 1), (4, 0), (9, 0)]
    for i, (idx, neg) in enumerate(sel):
        a('v_readlane_b32 s3, v%d, %d' % (STAMP_V, idx + 32))
        if neg: a('s_not_b32 s3, s3')
        a('s_nop 3')
        a('v_writelane_b32 v4, s3, %d' % i)
    a('v_lshlrev_b32 v3, 2, v1')
    a('s_mov_b64 exec, 0xffff')
    a('global_atomic_umax v3, v4, s[84:85]')
    a('s_mov_b64 exec, -1')


def stamp_flush(a):
    if not STAMPS: return
    if OPT.get('dbg'):
        stamp_flush_dbg(a); return
    a('s_lshl_b32 s3, s2, 11')
    a('s_lshl_b32 s43, s%d, 8' % S_W)
    a('s_add_u32 s3, s3, s43')
    a('s_add_u32 s3, s3, 0x%x' % WS_STAMP)
    a('v_lshlrev_b32 v3, 2, v1')
    a('buffer_store_dword v%d, v3, %s, s3 offen' % (STAMP_V, srd(S_WS)))


def both(a, fn):
    if OPT.get('nofast'):
        fn(' sc1'); return
    ls, ld = uid('L_sl'), uid('L_dn')
    a('s_cmp_eq_u32 s%d, 0' % S_FAST)
    a('s_cbranch_scc1 %s' % ls)
    fn('')
    a('s_branch %s' % ld)
    a.label(ls)
    fn(' sc1')
    a.label(ld)


def flag_store(a, soff, val, mod, vt):
    a('v_mov_b32 v%d, s%d' % (vt, val))
    a('s_mov_b64 exec, 1')
    a('buffer_store_dword v%d, off, %s, %s%s' % (vt, srd(S_WS), soff, mod))
    a('s_mov_b64 exec, -1')


def poll8(a, soff, vt, sleep=True):
    l, d = uid('L_poll'), uid('L_pd')
    a('v_and_b32 v%d, 7, v1' % (vt + 1))
    a('v_lshlrev_b32 v%d, 2, v%d' % (vt + 1, vt + 1))
    a('s_mov_b32 s43, %d' % SPIN)
    a.label(l)
    a('buffer_load_dword v%d, v%d, %s, %s offen sc1' % (vt, vt + 1, srd(S_WS), soff))
    a('s_waitcnt vmcnt(0)')
    a('v_cmp_ne_u32 vcc, s%d, v%d' % (S_TAG, vt))
    a('s_cbranch_vccz %s' % d)
    a('s_sub_u32 s43, s43, 1')
    a('s_cmp_lg_u32 s43, 0')
    a('s_cbranch_scc1 %s' % l)
    a.label(d)


def check256(a, vt):
    for k in range(4):
        a('v_xor_b32 v%d, s%d, v%d' % (vt + k, S_TAG, vt + k))
    a('v_or3_b32 v%d, v%d, v%d, v%d' % (vt, vt, vt + 1, vt + 2))
    a('v_or_b32 v%d, v%d, v%d' % (vt, vt, vt + 3))
    a('v_cmp_le_u32 vcc, 16, v%d' % vt)


def poll256(a, base, vt, first_loaded=False):
    l, d, c = uid('L_poll'), uid('L_pd'), uid('L_pc')
    a('s_mov_b32 s43, %d' % SPIN)
    a('s_mov_b32 s3, 0x%x' % base)
    if first_loaded:
        a('s_branch %s' % c)
    a.label(l)
    a('buffer_load_dwordx4 %s, v2, %s, s3 offen sc1' % (vr(vt, 4), srd(S_WS)))
    a.label(c)
    a('s_waitcnt vmcnt(0)')
    check256(a, vt)
    a('s_cbranch_vccz %s' % d)
    a('s_sub_u32 s43, s43, 1')
    a('s_cmp_lg_u32 s43, 0')
    a('s_cbranch_scc1 %s' % l)
    a.label(d)


def setup(a, endlabel):
    a('s_cmp_ge_u32 s2, 256')
    a('s_cbranch_scc1 %s' % endlabel)
    a('s_load_dwordx16 s[64:79], s[0:1], 0')
    a('s_load_dwordx8 s[80:87], s[0:1], 64')
    a('v_lshrrev_b32 v2, 6, v0')
    a('v_and_b32 v1, 63, v0')
    a('v_readfirstlane_b32 s%d, v2' % S_W)
    a('v_lshlrev_b32 v2, 4, v1')
    a('s_lshr_b32 s%d, s2, 3' % S_J)
    a('s_and_b32 s%d, s%d, 7' % (S_J, S_J))
    a('s_and_b32 s%d, s2, 7' % S_RB)
    a('s_lshl_b32 s%d, s%d, 2' % (S_RB, S_RB))
    a('s_lshr_b32 s3, s2, 6')
    a('s_add_u32 s%d, s%d, s3' % (S_RB, S_RB))
    a('s_getreg_b32 s%d, hwreg(HW_REG_XCC_ID, 0, 4)' % S_F1V)
    a('s_waitcnt lgkmcnt(0)')
    a('s_load_dword s%d, s[86:87], 0x%x' % (S_E1, WS_EPOCH))
    mk_srd(a, S_X, 64, 2048 * 512 * 2)
    a('s_bitcmp1_b32 s%d, 0' % S_J)
    a('s_cselect_b32 s%d, s70, s68' % S_WKV)
    a('s_cselect_b32 s%d, s71, s69' % (S_WKV + 1))
    a('s_mov_b32 s%d, 0x%x' % (S_WKV + 2, 512 * 16 * 2))
    a('s_mov_b32 s%d, 0x20000' % (S_WKV + 3))
    mk_srd(a, S_WQ, 66, 512 * 512 * 2)
    mk_srd(a, S_WS, 86, WS_SIZE)
    mk_srd(a, S_B1, 78, 1792 * 2)
    mk_srd(a, S_OUT, 82, 2048 * 512 * 2)


L_WKV, L_TB, L_X, L_WQ = 0, 16384, 32768, 98304
KVB, TS_ = 16384, 2064


def phase1(a):
    XR = 32
    TS, TQ, TT = 8, 16, 24
    a('s_mov_b32 s44, 0x3f803f80')
    a('s_mov_b32 s45, 0x%x' % f2u(1.0 / 512))
    a('s_mov_b32 s46, 0x%x' % f2u(1e-5))
    a('s_lshr_b32 s47, s%d, 1' % S_J)
    a('s_lshl_b32 s47, s47, 4')
    a('s_lshl_b32 s88, s%d, 1' % S_W)
    a('s_add_u32 s88, s88, s47')
    a('s_add_u32 s89, s88, 1')
    a('s_lshl_b32 s48, s%d, 16' % S_RB)
    def xload(i):
        a('s_lshl_b32 s43, s%d, 10' % (88 + i))
        a('s_add_u32 s43, s43, s48')
        a('buffer_load_dwordx4 %s, v2, %s, s43 offen' % (vr(XR + 4 * i, 4), srd(S_X)))
    xload(0); xload(1)
    a('s_lshl_b32 s43, s%d, 11' % S_W)
    a('s_mov_b32 m0, s43')
    a('s_nop 0')
    a('buffer_load_dwordx4 v2, %s, s43 offen lds' % srd(S_WKV))
    a('buffer_load_dwordx4 v2, %s, s43 offen offset:1024 lds' % srd(S_WKV))
    a('s_mul_i32 s3, s%d, 6' % S_W)
    for i in range(6):
        a('s_add_u32 s%d, s3, %d' % (90 + i, i))
        a('s_add_u32 s43, s%d, 16' % (90 + i))
        a('s_cmp_lt_u32 s%d, s47' % (90 + i))
        a('s_cselect_b32 s%d, s%d, s43' % (90 + i, 90 + i))
    a('v_lshrrev_b32 v3, 3, v1')
    a('v_and_b32 v4, 7, v1')
    a('v_lshlrev_b32 v5, 1, v3')
    a('v_and_b32 v5, 4, v5')
    a('v_xor_b32 v4, v4, v5')
    a('v_lshlrev_b32 v4, 4, v4')
    a('v_lshl_add_u32 v5, v3, 10, v4')
    if not OPT.get('nobar0'):
        a('s_barrier')
    for i in range(2, 8): xload(i)
    a('s_lshl_b32 s49, s%d, 16' % S_W)
    a('s_lshl_b32 s43, s%d, 7' % S_J)
    a('s_add_u32 s49, s49, s43')
    a('s_lshl_b32 s50, s%d, 13' % S_W)
    a('s_add_u32 s50, s50, %d' % L_WQ)
    for i in range(8):
        a('s_mov_b32 m0, s50')
        a('s_add_u32 s50, s50, 1024')
        a('buffer_load_dwordx4 v5, %s, s49 offen lds' % srd(S_WQ))
        if i < 7: a('s_add_u32 s49, s49, 8192')
    a('s_cmp_lt_u32 s2, 112')
    a('s_cbranch_scc1 L_tb_w1')
    a('s_cmp_lt_u32 s2, 224')
    a('s_cbranch_scc1 L_tb_w2')
    a('s_sub_u32 s3, s2, 224')
    a('s_mov_b32 s52, s72'); a('s_mov_b32 s53, s73'); a('s_mov_b32 s54, 0x%x' % (512 * 512 * 2))
    a('s_mov_b32 s56, 1024')
    a('s_and_b32 s60, s3, 3'); a('s_lshr_b32 s61, s3, 2')
    a('s_mov_b32 s59, %d' % (32 * 1024))
    a('s_mov_b32 s62, 0x%x' % WS_WO)
    a('s_branch L_tb_go')
    a.label('L_tb_w1')
    a('s_mov_b32 s52, s76'); a('s_mov_b32 s53, s77'); a('s_mov_b32 s54, 0x%x' % (512 * 1792 * 2))
    a('s_mov_b32 s56, 3584')
    a('s_and_b32 s60, s2, 3'); a('s_lshr_b32 s61, s2, 2')
    a('s_mov_b32 s59, %d' % (32 * 1024))
    a('s_mov_b32 s62, 0x%x' % WS_W1)
    a('s_branch L_tb_go')
    a.label('L_tb_w2')
    a('s_sub_u32 s3, s2, 112')
    a('s_mov_b32 s52, s80'); a('s_mov_b32 s53, s81'); a('s_mov_b32 s54, 0x%x' % (1792 * 512 * 2))
    a('s_mov_b32 s56, 1024')
    a('s_lshr_b32 s60, s3, 3'); a('s_and_b32 s61, s3, 7')
    a('s_mov_b32 s59, %d' % (112 * 1024))
    a('s_mov_b32 s62, 0x%x' % WS_W2)
    a.label('L_tb_go')
    a('s_mov_b32 s55, 0x20000')
    a('s_lshl_b32 s3, s60, 7')
    a('s_lshl_b32 s43, s%d, 4' % S_W)
    a('s_add_u32 s3, s3, s43')
    a('s_mul_i32 s57, s3, s56')
    a('s_lshl_b32 s3, s61, 7')
    a('s_add_u32 s57, s57, s3')
    a('s_lshl_b32 s3, s61, 1')
    a('s_mul_i32 s58, s3, s59')
    a('s_add_u32 s58, s58, s62')
    a('s_lshl_b32 s3, s60, 3')
    a('s_add_u32 s3, s3, s%d' % S_W)
    a('s_lshl_b32 s3, s3, 10')
    a('s_add_u32 s58, s58, s3')
    a('v_mul_lo_u32 v6, v3, s56')
    a('v_add_u32 v6, v6, v4')
    a('s_lshl_b32 s3, s%d, 11' % S_W)
    a('s_add_u32 s3, s3, %d' % L_TB)
    a('s_mov_b32 m0, s3')
    a('s_lshl_b32 s43, s56, 3')
    a('buffer_load_dwordx4 v6, s[52:55], s57 offen lds')
    a('s_add_u32 s3, s3, 1024')
    a('s_add_u32 s57, s57, s43')
    a('s_mov_b32 m0, s3')
    a('s_nop 0')
    a('buffer_load_dwordx4 v6, s[52:55], s57 offen lds')
    stamp(a, 1)
    a('s_waitcnt vmcnt(18) lgkmcnt(0)')
    a('s_mul_i32 s%d, s%d, 0x9E3779B1' % (S_TAG, S_E1))
    a('s_add_u32 s%d, s%d, 0x7F4A7C15' % (S_TAG, S_TAG))
    a('s_and_b32 s%d, s%d, 0xFFFFFFF0' % (S_TAG, S_TAG))
    a('s_or_b32 s%d, s%d, s%d' % (S_F1V, S_F1V, S_TAG))
    a('s_add_u32 s%d, s%d, 1' % (S_E1, S_E1))
    stamp(a, 2)
    SB = 72
    ln_stats(a, [XR, XR + 4], TS, TQ, SB)
    def xstore(i):
        a('s_lshl_b32 s3, s%d, 10' % (88 + i))
        a('s_and_b32 s43, s%d, 15' % (88 + i))
        a('s_lshl_b32 s43, s43, 4')
        a('s_add_u32 s3, s3, s43')
        a('s_add_u32 s3, s3, %d' % L_X)
        a('v_xor_b32 v7, s3, v2')
        a('ds_write_b128 v7, %s' % vr(XR + 4 * i, 4))
    for i in range(2):
        ln_apply(a, XR + 4 * i, SB + 2 * i, TT)
        xstore(i)
    a('s_waitcnt vmcnt(16) lgkmcnt(0)')
    stamp(a, 3)
    a('s_barrier')
    stamp(a, 4)
    a('s_cmp_lg_u32 s%d, 0' % S_W)
    a('s_cbranch_scc1 L_kv_done')
    KW, KX = 64, 128
    a('v_lshrrev_b32 v8, 4, v1')
    a('v_and_b32 v9, 15, v1')
    a('v_lshlrev_b32 v10, 8, v8')
    a('v_lshl_add_u32 v10, v9, 3, v10')
    a('v_xor_b32 v11, v8, v9')
    a('v_lshlrev_b32 v11, 4, v11')
    a('v_add_u32 v12, s47, v9')
    a('v_lshlrev_b32 v12, 10, v12')
    a('v_add_u32 v12, %d, v12' % L_X)
    a('v_add_u32 v12, v12, v11')
    a('v_xor_b32 v13, 64, v12')
    a('v_xor_b32 v14, 0x80, v12')
    a('v_xor_b32 v15, 0xc0, v12')
    def kvload(ks):
        a('ds_read_b64_tr_b16 %s, v10 offset:%d' % (vr(KW + 4 * ks, 2), 1024 * ks))
        a('ds_read_b64_tr_b16 %s, v10 offset:%d' % (vr(KW + 4 * ks + 2, 2), 1024 * ks + 128))
        a('ds_read_b128 %s, v%d offset:%d' % (vr(KX + 4 * ks, 4), 12 + ks % 4, (ks // 4) * 256))
    for ks in range(4): kvload(ks)
    a('s_bitcmp1_b32 s%d, 0' % S_J)
    a('s_cbranch_scc1 L_kv_v')
    for var in (0, 1):
        if var: a.label('L_kv_v'); a.fence(4)
        for ks in range(16):
            if ks + 4 < 16: kvload(ks + 4)
            a('s_waitcnt lgkmcnt(%d)' % (3 * (min(16, ks + 5) - (ks + 1))))
            acc = 16 + 4 * (ks % 2)
            A, B = (KW + 4 * ks, KX + 4 * ks) if var == 0 else (KX + 4 * ks, KW + 4 * ks)
            a('v_mfma_f32_16x16x32_bf16 %s, %s, %s, %s' % (vr(acc, 4), vr(A, 4), vr(B, 4), '0' if ks < 2 else vr(acc, 4)))
        for k in range(4):
            a('v_add_f32 v%d, v%d, v%d' % (16 + k, 16 + k, 20 + k))
        a('v_cvt_pk_bf16_f32 v16, v16, v17')
        a('v_cvt_pk_bf16_f32 v17, v18, v19')
        a('v_and_b32 v18, 1, v8')
        a('v_lshlrev_b32 v18, %d, v18' % (9 if var == 0 else 8))
        a('v_lshl_add_u32 v18, v9, 4, v18')
        a('v_lshrrev_b32 v19, 1, v8')
        a('v_lshl_add_u32 v18, v19, 3, v18')
        a('s_lshl_b32 s3, s%d, 1' % S_RB)
        a('s_lshr_b32 s43, s47, 5')
        a('s_add_u32 s3, s3, s43')
        a('s_lshl_b32 s3, s3, 11')
        a('s_and_b32 s43, s47, 16')
        if var == 0:
            a('s_lshl_b32 s43, s43, 4')
        else:
            a('s_lshl_b32 s43, s43, 5')
            a('s_add_u32 s43, s43, 1024')
        a('s_add_u32 s3, s3, s43')
        a('buffer_store_dwordx2 v[16:17], v18, %s, s3 offen sc1' % srd(S_WS))
        if var == 0:
            a('v_dot2_f32_bf16 v20, v16, v16, 0')
            a('v_dot2_f32_bf16 v20, v17, v17, v20')
            a('v_mov_b32 v21, v20')
            a('v_permlane32_swap_b32 v20, v21')
            a('v_add_f32 v20, v20, v21')
            a('v_mov_b32 v21, v20')
            a('v_permlane16_swap_b32 v20, v21')
            a('v_add_f32 v20, v20, v21')
            for sh in (8, 4, 2, 1):
                a('v_max_f32_dpp v20, v20, v20 row_ror:%d row_mask:0xf bank_mask:0xf' % sh)
            a('s_lshl_b32 s3, s%d, 2' % S_RB)
            a('s_lshr_b32 s43, s%d, 1' % S_J)
            a('s_add_u32 s3, s3, s43')
            a('s_lshl_b32 s3, s3, 2')
            a('s_add_u32 s3, s3, 0x%x' % WS_KMAX)
            a('s_mov_b64 exec, 1')
            a('buffer_store_dword v20, off, %s, s3 sc1' % srd(S_WS))
            a('s_mov_b64 exec, -1')
            a('s_branch L_kv_done')
    a.label('L_kv_done')
    a.fence(4)
    stamp(a, 5)
    a('s_waitcnt vmcnt(10)')
    stamp(a, 6)
    rows = [XR + 4 * i for i in range(2, 8)]
    ln_stats(a, rows, TS, TQ, SB)
    for i in range(2, 8):
        ln_apply(a, XR + 4 * i, SB + 2 * (i - 2), TT)
        xstore(i)
    stamp(a, 7)
    a('s_waitcnt vmcnt(0) lgkmcnt(0)')
    a('s_cmp_lg_u32 s%d, 0' % S_W)
    a('s_cbranch_scc1 L_f1_done')
    a('s_lshl_b32 s3, s%d, 3' % S_RB)
    a('s_add_u32 s3, s3, s%d' % S_J)
    a('s_lshl_b32 s3, s3, 2')
    a('s_add_u32 s3, s3, 0x%x' % WS_F1)
    flag_store(a, 's3', S_F1V, ' sc1', 8)
    a.label('L_f1_done')
    stamp(a, 8)
    a('s_barrier')
    stamp(a, 9)
    a('s_and_b32 s48, s%d, 1' % S_W)
    a('s_bfe_u32 s49, s%d, 0x10001' % S_W)
    a('s_lshr_b32 s50, s%d, 2' % S_W)
    a('v_lshrrev_b32 v8, 5, v1')
    a('v_bfe_u32 v9, v1, 4, 1')
    a('v_bfe_u32 v10, v1, 2, 2')
    a('v_and_b32 v11, 3, v1')
    a('v_lshrrev_b32 v12, 1, v11')
    a('v_lshl_add_u32 v12, v9, 1, v12')
    a('v_lshrrev_b32 v13, 1, v10')
    a('v_lshlrev_b32 v13, 2, v13')
    a('v_xor_b32 v12, v12, v13')
    a('v_lshlrev_b32 v12, 4, v12')
    a('v_and_b32 v11, 1, v11')
    a('v_lshl_add_u32 v12, v11, 3, v12')
    a('v_lshl_add_u32 v13, v8, 3, v10')
    a('v_lshl_add_u32 v13, v13, 7, v12')
    a('s_lshl_b32 s3, s50, 15')
    a('s_lshl_b32 s43, s48, 6')
    a('s_add_u32 s3, s3, %d' % L_WQ)
    a('v_xor_b32 v13, s43, v13')
    a('v_add_u32 v13, s3, v13')
    a('v_lshl_add_u32 v14, v8, 2, v10')
    a('v_lshl_add_u32 v14, v14, 7, v12')
    a('s_lshl_b32 s3, s%d, 11' % S_W)
    a('s_add_u32 s3, s3, %d' % L_TB)
    a('v_add_u32 v14, s3, v14')
    a('v_xor_b32 v15, 64, v14')
    for nt in range(2):
        a('ds_read_b64_tr_b16 %s, v%d' % (vr(192 + 4 * nt, 2), 14 + nt))
        a('ds_read_b64_tr_b16 %s, v%d offset:1024' % (vr(194 + 4 * nt, 2), 14 + nt))
    a('v_and_b32 v16, 31, v1')
    a('v_and_b32 v17, 15, v1')
    a('v_xor_b32 v17, v17, v8')
    a('v_lshlrev_b32 v17, 4, v17')
    a('v_lshl_add_u32 v17, v16, 10, v17')
    a('s_lshl_b32 s3, s49, 15')
    a('s_lshl_b32 s43, s50, 9')
    a('s_add_u32 s3, s3, s43')
    a('s_add_u32 s3, s3, %d' % L_X)
    a('v_add_u32 v24, s3, v17')
    for q in range(1, 8):
        a('v_xor_b32 v%d, %d, v24' % (24 + q, 32 * q))
    QA, QB, QD = 64, 128, 32
    def qload(s):
        a('ds_read_b64_tr_b16 %s, v13 offset:%d' % (vr(QA + 4 * s, 2), 2048 * s))
        a('ds_read_b64_tr_b16 %s, v13 offset:%d' % (vr(QA + 4 * s + 2, 2), 2048 * s + 512))
        a('ds_read_b128 %s, v%d offset:%d' % (vr(QB + 4 * s, 4), 24 + s % 8, (s // 8) * 256))
    PF = 4
    a('s_waitcnt lgkmcnt(0)')
    for s in range(PF): qload(s)
    a('buffer_store_dwordx4 %s, v2, %s, s58 offen sc1' % (vr(192, 4), srd(S_WS)))
    a('s_add_u32 s58, s58, s59')
    a('buffer_store_dwordx4 %s, v2, %s, s58 offen sc1' % (vr(196, 4), srd(S_WS)))
    for s in range(16):
        if s + PF < 16: qload(s + PF)
        rem = min(16, s + PF + 1) - (s + 1)
        a('s_waitcnt lgkmcnt(%d)' % (3 * rem))
        a('v_mfma_f32_32x32x16_bf16 %s, %s, %s, %s' % (vr(QD, 16), vr(QA + 4 * s, 4), vr(QB + 4 * s, 4), '0' if s == 0 else vr(QD, 16)))
    stamp(a, 10)
    a('s_lshl_b32 s3, s%d, 11' % S_W)
    a('v_add_u32 v8, s3, v2')
    a('s_xor_b32 s3, s3, %d' % (4 << 11))
    a('v_add_u32 v9, s3, v2')
    a('s_cmp_eq_u32 s50, 0')
    a('s_cbranch_scc0 L_q_kh1')
    a('s_nop 7')
    a('ds_write_b128 v8, %s' % vr(QD + 8, 4))
    a('ds_write_b128 v8, %s offset:1024' % vr(QD + 12, 4))
    a('s_branch L_q_x')
    a.label('L_q_kh1')
    a.fence(12)
    a('ds_write_b128 v8, %s' % vr(QD, 4))
    a('ds_write_b128 v8, %s offset:1024' % vr(QD + 4, 4))
    for k in range(8):
        a('v_mov_b32 v%d, v%d' % (QD + k, QD + 8 + k))
    a.label('L_q_x')
    a.fence(4)
    a('s_cmp_lg_u32 s%d, 7' % S_W)
    a('s_cbranch_scc1 L_f1p_done')
    poll256(a, WS_F1, 56)
    a.label('L_f1p_done')
    a('s_waitcnt lgkmcnt(0)')
    stamp(a, 11)
    a('s_barrier')
    stamp(a, 12)


R_Q, R_S0, R_S1, R_O, R_P0, R_P1 = 4, 8, 24, 40, 56, 60
R_V0, R_V1, R_K = 64, 72, 80
R_KAD, R_VA0, R_VA1, R_ROW, R_XRES = 88, 3, 89, 90, 92
R_WO, R_W1 = 192, 96


def prefetch_list(a):
    L = []
    def wo_addr():
        a('s_lshr_b32 s51, s%d, 1' % S_W)
        a('s_lshl_b32 s51, s51, 3')
        a('s_lshl_b32 s52, s%d, 6' % S_J)
        a('s_add_u32 s51, s51, s52')
        a('s_lshl_b32 s51, s51, 10')
        a('s_add_u32 s51, s51, 0x%x' % WS_WO)
        a('s_add_u32 s52, s51, %d' % (32 * 1024))
    def wo(nt, s):
        def f():
            if nt == 0 and s == 0: wo_addr()
            if s == 4: a('s_add_u32 s%d, s%d, 4096' % (51 + nt, 51 + nt))
            a('buffer_load_dwordx4 %s, v2, %s, s%d offen offset:%d sc1' % (vr(R_WO + 32 * nt + 4 * s, 4), srd(S_WS), 51 + nt, (s % 4) * 1024))
        return f
    for s in range(8):
        for nt in range(2): L.append(wo(nt, s))
    def xres():
        a('s_and_b32 s3, s%d, 1' % S_W)
        a('s_lshl_b32 s43, s%d, 1' % S_RB)
        a('s_add_u32 s3, s3, s43')
        a('s_lshl_b32 s3, s3, 15')
        a('s_lshl_b32 s43, s%d, 7' % S_J)
        a('s_add_u32 s3, s3, s43')
        a('s_lshr_b32 s43, s%d, 1' % S_W)
        a('s_lshl_b32 s43, s43, 5')
        a('s_add_u32 s53, s3, s43')
        a('buffer_load_dwordx4 %s, v%d, %s, s53 offen' % (vr(R_XRES, 4), R_ROW, srd(S_X)))
    L.append(xres)
    def w1_addr():
        a('s_mul_i32 s54, s%d, 7' % S_J)
        a('s_add_u32 s54, s54, s%d' % S_W)
        a('s_lshl_b32 s54, s54, 15')
        a('s_add_u32 s54, s54, 0x%x' % WS_W1)
        w2_base(a, 's55')
        a('s_add_u32 s56, s55, %d' % (8 * 1024))
        a('s_cmp_eq_u32 s%d, 7' % S_W)
        a('s_cselect_b32 s57, s56, s54')
        a('s_cselect_b32 s58, %d, 0' % ((112 - 14) * 1024))
    def w1(i):
        def f():
            if i == 0: w1_addr()
            if i < 6:
                if i == 4: a('s_add_u32 s57, s57, 4096')
                off = (i % 4) * 1024
            else:
                if i == 6:
                    a('s_add_u32 s57, s57, 2048'); a('s_add_u32 s57, s57, s58')
                elif (i - 6) % 4 == 0:
                    a('s_add_u32 s57, s57, 4096')
                off = ((i - 6) % 4) * 1024
            a('buffer_load_dwordx4 %s, v2, %s, s57 offen offset:%d sc1' % (vr(R_W1 + 4 * i, 4), srd(S_WS), off))
        return f
    for i in range(24): L.append(w1(i))
    return L


def w2_base(a, dst):
    a('s_mul_i32 %s, s%d, %d' % (dst, S_W, 2 * 112))
    a('s_mul_i32 s43, s%d, 14' % S_J)
    a('s_add_u32 %s, %s, s43' % (dst, dst))
    a('s_lshl_b32 %s, %s, 10' % (dst, dst))
    a('s_add_u32 %s, %s, 0x%x' % (dst, dst, WS_W2))


def w2_slot_reg(q):
    return 224 + 4 * q if q < 8 else 96 + 4 * (q - 8)


def attn_tile(a, u, extra=()):
    c, n = u % 2, (u + 1) % 2
    S = [R_S0, R_S1]
    K = lambda b: R_K + 4 * b
    V0 = lambda b: R_V0 + 4 * b
    V1 = lambda b: R_V1 + 4 * b
    ex = list(extra)
    def E(k): a('v_exp_f32 v%d, v%d' % (S[c] + k, S[c] + k))
    def X():
        if ex: ex.pop(0)()
    a('s_waitcnt lgkmcnt(0)')
    E(0)
    a('ds_read_b128 %s, v%d offset:%d' % (vr(K(c), 4), R_KAD, (u + 2) * TS_))
    E(1)
    a('ds_read_b128 %s, v%d offset:%d' % (vr(V0(n), 4), R_VA0, (u + 1) * TS_))
    E(2)
    a('ds_read_b128 %s, v%d offset:%d' % (vr(V1(c), 4), R_VA1, u * TS_))
    E(3)
    a('v_mfma_f32_32x32x16_bf16 %s, %s, %s, 0' % (vr(S[n], 16), vr(K(n), 4), vr(R_Q, 4)))
    E(4); X(); E(5); X(); E(6); X(); E(7)
    for k in range(4): a('v_cvt_pk_bf16_f32 v%d, v%d, v%d' % (R_P0 + k, S[c] + 2 * k, S[c] + 2 * k + 1))
    a('v_mfma_f32_32x32x16_bf16 %s, %s, %s, %s' % (vr(R_O, 16), vr(V1(n), 4), vr(R_P1, 4), vr(R_O, 16)))
    E(8); X(); E(9); X(); E(10); X(); E(11)
    a('v_mfma_f32_32x32x16_bf16 %s, %s, %s, %s' % (vr(R_O, 16), vr(V0(c), 4), vr(R_P0, 4), vr(R_O, 16)))
    for k in range(12, 16): E(k)
    for k in range(4): a('v_cvt_pk_bf16_f32 v%d, v%d, v%d' % (R_P1 + k, S[c] + 8 + 2 * k, S[c] + 9 + 2 * k))
    while ex: ex.pop(0)()


def attn_advance(a):
    for r in (R_KAD, R_VA0, R_VA1):
        a('v_add_u32 v%d, 0x%x, v%d' % (r, 8 * TS_, r))


def attention_fast(a):
    a('ds_read_b128 %s, v%d' % (vr(R_K, 4), R_KAD))
    a('ds_read_b128 %s, v%d offset:%d' % (vr(R_K + 4, 4), R_KAD, TS_))
    a('ds_read_b128 %s, v%d' % (vr(R_V0, 4), R_VA0))
    for k in range(16): a('v_mov_b32 v%d, 0' % (R_O + k))
    for k in range(4): a('v_mov_b32 v%d, 0' % (R_P1 + k))
    for k in range(4): a('v_mov_b32 v%d, 0' % (R_V1 + 4 + k))
    a('s_waitcnt lgkmcnt(2)')
    a('v_mfma_f32_32x32x16_bf16 %s, %s, %s, 0' % (vr(R_S0, 16), vr(R_K, 4), vr(R_Q, 4)))
    a.fence(12)
    for u in range(8): attn_tile(a, u)
    attn_advance(a)
    stamp(a, 15)
    a('s_waitcnt vmcnt(0)')
    a('s_barrier')
    stamp(a, 16)
    a('s_mov_b32 s62, 2')
    a('s_mov_b32 s3, 0x%x' % WS_F2)
    a.raw('.p2align 6')
    a.label('L_attn_a')
    a('buffer_load_dwordx4 %s, v2, %s, s3 offen sc1' % (vr(R_WO, 4), srd(S_WS)))
    for u in range(8): attn_tile(a, u)
    attn_advance(a)
    a('s_sub_u32 s62, s62, 1')
    a('s_cmp_lg_u32 s62, 0')
    a('s_cbranch_scc1 L_attn_a')
    poll256(a, WS_F2, R_WO, first_loaded=True)
    L = prefetch_list(a)
    per = [L[(len(L) * u) // 8:(len(L) * (u + 1)) // 8] for u in range(8)]
    a.fence(2)
    for u in range(8): attn_tile(a, u, per[u])
    attn_advance(a)
    a('s_mov_b32 s62, 4')
    a.raw('.p2align 6')
    a.label('L_attn_b')
    for u in range(8): attn_tile(a, u)
    attn_advance(a)
    a('s_sub_u32 s62, s62, 1')
    a('s_cmp_lg_u32 s62, 0')
    a('s_cbranch_scc1 L_attn_b')
    a('s_waitcnt lgkmcnt(0)')
    a('v_mfma_f32_32x32x16_bf16 %s, %s, %s, %s' % (vr(R_O, 16), vr(R_V1 + 4, 4), vr(R_P1, 4), vr(R_O, 16)))


def attention_slow(a):
    Q, O, P = R_Q, R_O, R_P0
    S = R_S0; K = R_K; V = R_V0
    M, MN, AL, T = R_S1, R_S1 + 1, R_S1 + 2, R_S1 + 3
    a('s_waitcnt vmcnt(0)')
    a('s_barrier')
    for k in range(16): a('v_mov_b32 v%d, 0' % (O + k))
    a('v_mov_b32 v%d, 0xff7fffff' % M)
    a('s_mov_b32 s62, 64')
    a.fence(4)
    a.label('L_attn_slow')
    a('ds_read_b128 %s, v%d' % (vr(K, 4), R_KAD))
    a('ds_read_b128 %s, v%d' % (vr(V, 4), R_VA0))
    a('ds_read_b128 %s, v%d' % (vr(V + 4, 4), R_VA1))
    for r in (R_KAD, R_VA0, R_VA1):
        a('v_add_u32 v%d, 0x%x, v%d' % (r, TS_, r))
    a('s_waitcnt lgkmcnt(0)')
    a('v_mfma_f32_32x32x16_bf16 %s, %s, %s, 0' % (vr(S, 16), vr(K, 4), vr(Q, 4)))
    a('v_max_f32 v%d, v%d, v%d' % (MN, S, S + 1))
    for k in range(2, 16, 2):
        a('v_max3_f32 v%d, v%d, v%d, v%d' % (MN, MN, S + k, S + k + 1))
    a('v_mov_b32 v%d, v%d' % (T, MN))
    a('v_permlane32_swap_b32 v%d, v%d' % (MN, T))
    a('v_max3_f32 v%d, v%d, v%d, v%d' % (MN, MN, T, M))
    a('v_sub_f32 v%d, v%d, v%d' % (AL, M, MN))
    a('v_exp_f32 v%d, v%d' % (AL, AL))
    a('v_mov_b32 v%d, v%d' % (M, MN))
    for k in range(16):
        a('v_sub_f32 v%d, v%d, v%d' % (S + k, S + k, MN))
    for k in range(16):
        a('v_exp_f32 v%d, v%d' % (S + k, S + k))
    for k in range(16):
        a('v_mul_f32 v%d, v%d, v%d' % (O + k, O + k, AL))
    for k in range(8):
        a('v_cvt_pk_bf16_f32 v%d, v%d, v%d' % (P + k, S + 2 * k, S + 2 * k + 1))
    a('v_mfma_f32_32x32x16_bf16 %s, %s, %s, %s' % (vr(O, 16), vr(V, 4), vr(P, 4), vr(O, 16)))
    a('v_mfma_f32_32x32x16_bf16 %s, %s, %s, %s' % (vr(O, 16), vr(V + 4, 4), vr(P + 4, 4), vr(O, 16)))
    a('s_sub_u32 s62, s62, 1')
    a('s_cmp_lg_u32 s62, 0')
    a('s_nop 7'); a('s_nop 7')
    a('s_cbranch_scc1 L_attn_slow')
    poll256(a, WS_F2, R_WO)
    for f in prefetch_list(a): f()


def phase2(a, force_slow=False):
    QD = 32
    a('ds_read_b128 %s, v9' % vr(48, 4))
    a('ds_read_b128 %s, v9 offset:1024' % vr(52, 4))
    a('v_and_b32 v8, 7, v1')
    a('v_lshlrev_b32 v8, 2, v8')
    a('s_lshl_b32 s3, s%d, 5' % S_RB)
    a('s_add_u32 s3, s3, 0x%x' % WS_F1)
    a('buffer_load_dword v12, v8, %s, s3 offen sc1' % srd(S_WS))
    a('v_lshlrev_b32 v8, 3, v1')
    a('s_mov_b32 s3, 0x%x' % WS_KMAX)
    a('buffer_load_dwordx2 v[10:11], v8, %s, s3 offen sc1' % srd(S_WS))
    a('s_lshl_b32 s3, s%d, 11' % S_W)
    a('s_mul_i32 s43, s%d, %d' % (S_W, TS_))
    a('s_add_u32 s43, s43, %d' % KVB)
    for i in range(8):
        a('s_mov_b32 m0, s43')
        a('s_add_u32 s43, s43, %d' % (8 * TS_))
        a('buffer_load_dwordx4 v2, %s, s3 offen sc1 lds' % srd(S_WS))
        a('buffer_load_dwordx4 v2, %s, s3 offen offset:1024 sc1 lds' % srd(S_WS))
        if i < 7: a('s_add_u32 s3, s3, 16384')
    a('v_mov_b32 v16, 0x3f803f80')
    for k in range(1, 4): a('v_mov_b32 v%d, v16' % (16 + k))
    a('s_movk_i32 s3, %d' % TS_)
    a('v_mul_lo_u32 v20, v1, s3')
    a('v_add_u32 v20, %d, v20' % (KVB + 2048))
    a('ds_write_b128 v20, v[16:19]')
    a('v_lshrrev_b32 v8, 5, v1')
    a('v_and_b32 v9, 15, v1')
    a('v_lshl_add_u32 v8, v8, 4, v9')
    a('v_lshlrev_b32 v8, 4, v8')
    a('v_add_u32 v8, %d, v8' % (KVB + 1024))
    a('v_add_u32 v9, 512, v8')
    a('v_and_b32 v13, 16, v1')
    a('v_cmp_eq_u32 vcc, 0, v13')
    a('v_mov_b32 v13, %d' % (KVB + 2048))
    a('v_cndmask_b32 v%d, v13, v8, vcc' % R_VA0)
    a('v_cndmask_b32 v%d, v13, v9, vcc' % R_VA1)
    a('v_add_u32 v%d, %d, v2' % (R_KAD, KVB))
    a('v_and_b32 v13, 31, v1')
    a('v_lshrrev_b32 v14, 5, v1')
    a('v_lshlrev_b32 v13, 10, v13')
    a('v_lshl_add_u32 v%d, v14, 4, v13' % R_ROW)
    a('s_mov_b32 s3, 0x%x' % f2u(0.25 * LOG2E))
    a('s_waitcnt lgkmcnt(1)')
    for k in range(8):
        a('v_add_f32 v%d, v%d, v%d' % (QD + k, QD + k, 48 + k))
    for k in range(8):
        a('v_mul_f32 v%d, s3, v%d' % (QD + k, QD + k))
    for k in range(4):
        a('v_cvt_pk_bf16_f32 v%d, v%d, v%d' % (R_Q + k, QD + 2 * k, QD + 2 * k + 1))
    a('v_dot2_f32_bf16 v14, v%d, v%d, 0' % (R_Q, R_Q))
    for k in range(1, 4): a('v_dot2_f32_bf16 v14, v%d, v%d, v14' % (R_Q + k, R_Q + k))
    a('s_waitcnt vmcnt(16)')
    stamp(a, 13)
    a('v_cmp_ne_u32 vcc, s%d, v12' % S_F1V)
    a('s_cmp_eq_u64 vcc, 0')
    a('s_cselect_b32 s%d, 1, 0' % S_FAST)
    a('v_max_f32 v10, v10, v11')
    a('v_mov_b32 v11, v10')
    a('v_permlane32_swap_b32 v10, v11')
    a('v_max_f32 v10, v10, v11')
    a('v_mov_b32 v11, v10')
    a('v_permlane16_swap_b32 v10, v11')
    a('v_max_f32 v10, v10, v11')
    for sh in (8, 4, 2, 1):
        a('v_max_f32_dpp v10, v10, v10 row_ror:%d row_mask:0xf bank_mask:0xf' % sh)
    a('v_mov_b32 v13, v14')
    a('v_permlane32_swap_b32 v14, v13')
    a('v_add_f32 v14, v14, v13')
    a('v_mul_f32 v14, v14, v10')
    a('s_mov_b32 s3, 0x%x' % f2u(-1.0 if force_slow else LIMIT2))
    a('v_cmp_nle_f32 vcc, v14, s3')
    a('s_waitcnt vmcnt(12) lgkmcnt(0)')
    stamp(a, 14)
    a('s_barrier')
    a('s_cmp_lg_u32 s%d, 0' % S_W)
    a('s_cbranch_scc1 L_f2_done')
    a('s_lshl_b32 s3, s2, 2')
    a('s_add_u32 s3, s3, 0x%x' % WS_F2)
    flag_store(a, 's3', S_TAG, ' sc1', 8)
    a.label('L_f2_done')
    a('s_cbranch_vccnz L_attn_fb')
    attention_fast(a)
    a('s_branch L_attn_fin')
    a.label('L_attn_fb')
    a.fence(4)
    attention_slow(a)
    a.label('L_attn_fin')
    a.fence(12)
    stamp(a, 17)
    O = R_O
    a('v_rcp_f32 v8, v%d' % (O + 8))
    for k in range(8): a('v_mul_f32 v%d, v%d, v8' % (O + k, O + k))
    for k in range(4): a('v_cvt_pk_bf16_f32 v%d, v%d, v%d' % (O + k, O + 2 * k, O + 2 * k + 1))
    G.q_frag_off(a, WS_O, 's48', 's49', 's50', 's3')
    both(a, lambda m: a('buffer_store_dwordx4 %s, v2, %s, s3 offen%s' % (vr(O, 4), srd(S_WS), m)))
    a('s_lshl_b32 s3, s%d, 1' % S_RB)
    a('s_add_u32 s3, s3, s49')
    a('s_lshl_b32 s3, s3, 3')
    a('s_add_u32 s3, s3, s%d' % S_J)
    a('s_lshl_b32 s3, s3, 1')
    a('s_add_u32 s3, s3, s50')
    a('s_lshl_b32 s3, s3, 1')
    a('s_add_u32 s3, s3, s48')
    a('s_lshl_b32 s3, s3, 2')
    a('s_add_u32 s3, s3, 0x%x' % WS_F3)
    a('s_waitcnt vmcnt(0)')
    both(a, lambda m: flag_store(a, 's3', S_TAG, m, 8))
    stamp(a, 18)


def colsum(a, ks_list, regf, first):
    for ks in ks_list:
        for k in range(4):
            c = 80 + k
            a('v_dot2_f32_bf16 v%d, v%d, s44, %s' % (c, regf(ks) + k, '0' if (first and ks == ks_list[0]) else 'v%d' % c))


def w1reg(ks):
    return R_W1 + 4 * ks if ks < 24 else 192 + 4 * (ks - 24)


def phase3(a):
    A, B = R_WO, 8
    D = [40, 64]
    a('s_and_b32 s48, s%d, 1' % S_W)
    a('s_lshr_b32 s49, s%d, 1' % S_W)
    a('s_mov_b32 s44, 0x3f803f80')
    a('s_cmp_eq_u32 s%d, 7' % S_W)
    a('s_cbranch_scc1 L_cs_skip')
    colsum(a, list(range(24)), w1reg, True)
    a.label('L_cs_skip')
    a('s_lshl_b32 s3, s%d, 1' % S_RB)
    a('s_add_u32 s3, s3, s48')
    a('s_lshl_b32 s50, s3, 5')
    a('s_lshl_b32 s3, s49, 3')
    a('s_add_u32 s3, s3, s50')
    a('s_lshl_b32 s18, s3, 10')
    a('s_add_u32 s18, s18, 0x%x' % WS_O)
    a('s_lshl_b32 s3, s3, 2')
    a('s_add_u32 s3, s3, 0x%x' % WS_F3)
    poll8(a, 's3', 72)
    stamp(a, 19)
    for s in range(8):
        if s == 4: a('s_add_u32 s18, s18, 4096')
        a('buffer_load_dwordx4 %s, v2, %s, s18 offen offset:%d sc1' % (vr(B + 4 * s, 4), srd(S_WS), (s % 4) * 1024))
    for s in range(8):
        a('s_waitcnt vmcnt(%d)' % (7 - s))
        for nt in range(2):
            a('v_mfma_f32_32x32x16_bf16 %s, %s, %s, %s' % (vr(D[nt], 16), vr(A + 32 * nt + 4 * s, 4), vr(B + 4 * s, 4),
                                                          '0' if s == 0 else vr(D[nt], 16)))
    stamp(a, 20)
    a('s_barrier')
    a('s_lshl_b32 s3, s48, 15')
    a('s_lshl_b32 s43, s49, 11')
    a('s_add_u32 s3, s3, s43')
    a('v_add_u32 v84, s3, v2')
    a.fence(8)
    for q in range(4):
        r = D[q // 2] + 8 * (q % 2)
        a('s_cmp_eq_u32 s49, %d' % q)
        a('s_cbranch_scc1 L_o_skip%d' % q)
        a('ds_write_b128 v84, %s offset:%d' % (vr(r, 4), q * 8192))
        a('ds_write_b128 v84, %s offset:%d' % (vr(r + 4, 4), q * 8192 + 1024))
        a('s_branch L_o_nxt%d' % q)
        a.label('L_o_skip%d' % q)
        for k in range(8): a('v_mov_b32 v%d, v%d' % (56 + k, r + k))
        a.label('L_o_nxt%d' % q)
    a('s_waitcnt lgkmcnt(0)')
    a('s_barrier')
    a('s_lshl_b32 s3, s48, 15')
    a('s_lshl_b32 s43, s49, 13')
    a('s_add_u32 s3, s3, s43')
    for d in range(1, 4):
        a('s_add_u32 s43, s49, %d' % d)
        a('s_and_b32 s43, s43, 3')
        a('s_lshl_b32 s43, s43, 11')
        a('s_add_u32 s43, s43, s3')
        a('v_add_u32 v%d, s43, v2' % (83 + d))
        a('ds_read_b128 %s, v%d' % (vr(8 + 8 * (d - 1), 4), 83 + d))
        a('ds_read_b128 %s, v%d offset:1024' % (vr(12 + 8 * (d - 1), 4), 83 + d))
    X = R_XRES
    a('v_permlane32_swap_b32 v%d, v%d' % (X, X + 2))
    a('v_permlane32_swap_b32 v%d, v%d' % (X + 1, X + 3))
    for k in range(4):
        a('v_lshlrev_b32 v%d, 16, v%d' % (32 + 2 * k, X + k))
        a('v_and_b32 v%d, 0xffff0000, v%d' % (33 + 2 * k, X + k))
    a('s_waitcnt lgkmcnt(0)')
    for k in range(8):
        a('v_add_f32 v%d, v%d, v%d' % (56 + k, 56 + k, 8 + k))
        a('v_add_f32 v%d, v%d, v%d' % (16 + k, 16 + k, 24 + k))
    for k in range(8):
        a('v_add_f32 v%d, v%d, v%d' % (56 + k, 56 + k, 16 + k))
    for k in range(8):
        a('v_add_f32 v%d, v%d, v%d' % (56 + k, 56 + k, 32 + k))
    for k in range(4):
        a('v_cvt_pk_bf16_f32 v%d, v%d, v%d' % (4 + k, 56 + 2 * k, 57 + 2 * k))
    a('s_lshl_b32 s3, s%d, 2' % S_J)
    a('s_add_u32 s3, s3, s49')
    a('s_add_u32 s3, s3, s50')
    a('s_lshl_b32 s3, s3, 10')
    a('s_add_u32 s3, s3, 0x%x' % WS_H)
    both(a, lambda m: a('buffer_store_dwordx4 v[4:7], v2, %s, s3 offen%s' % (srd(S_WS), m)))
    a('s_lshl_b32 s3, s%d, 3' % S_RB)
    a('s_add_u32 s3, s3, s%d' % S_J)
    a('s_lshl_b32 s3, s3, 3')
    a('s_add_u32 s3, s3, s%d' % S_W)
    a('s_lshl_b32 s3, s3, 2')
    a('s_add_u32 s3, s3, 0x%x' % WS_F4)
    a('s_waitcnt vmcnt(0)')
    both(a, lambda m: flag_store(a, 's3', S_TAG, m, 72))
    stamp(a, 21)


L_H, L_ACT, L_ST, L_CS = 65536, 131072, 159744, 160256


def phase45(a):
    D1 = 32
    BB = 8
    a('s_lshl_b32 s3, s%d, 3' % S_RB)
    a('s_add_u32 s3, s3, s%d' % S_W)
    a('s_lshl_b32 s3, s3, 5')
    a('s_add_u32 s3, s3, 0x%x' % WS_F4)
    poll8(a, 's3', 72)
    stamp(a, 22)
    a('s_lshl_b32 s43, s%d, 16' % S_RB)
    a('s_lshl_b32 s3, s%d, 12' % S_W)
    a('s_add_u32 s43, s43, s3')
    a('s_add_u32 s43, s43, 0x%x' % WS_H)
    a('s_add_u32 s3, s3, %d' % L_H)
    for mt in range(2):
        a('s_mov_b32 m0, s3')
        a('s_nop 0')
        for k in range(4):
            a('buffer_load_dwordx4 v2, %s, s43 offen offset:%d sc1 lds' % (srd(S_WS), k * 1024))
        if mt == 0:
            a('s_add_u32 s3, s3, 32768'); a('s_add_u32 s43, s43, 32768')
    w2_base(a, 's55')
    a('s_add_u32 s56, s55, %d' % (112 * 1024))
    a('s_cmp_eq_u32 s%d, 7' % S_W)
    a('s_cbranch_scc1 L_g1_stats')
    a('s_add_u32 s54, s54, %d' % (24 * 1024))
    for ks in range(24, 32):
        if ks == 28: a('s_add_u32 s54, s54, 4096')
        a('buffer_load_dwordx4 %s, v2, %s, s54 offen offset:%d sc1' % (vr(w1reg(ks), 4), srd(S_WS), (ks % 4) * 1024))
    a('s_mul_i32 s48, s%d, 7' % S_J)
    a('s_add_u32 s48, s48, s%d' % S_W)
    a('v_lshrrev_b32 v3, 5, v1')
    a('v_lshlrev_b32 v3, 3, v3')
    a('s_lshl_b32 s50, s48, 6')
    for q in range(4):
        a('buffer_load_dwordx2 %s, v3, %s, s50 offen offset:%d' % (vr(64 + 2 * q, 2), srd(S_B1), 16 * q))
    def w2load(q):
        nt, s = q // 14, q % 14
        base = 's55' if nt == 0 else 's56'
        hi = (s // 4) * 4096
        if hi:
            a('s_add_u32 s57, %s, %d' % (base, hi)); base = 's57'
        a('buffer_load_dwordx4 %s, v2, %s, %s offen offset:%d sc1' % (vr(w2_slot_reg(q), 4), srd(S_WS), base, (s % 4) * 1024))
    for q in range(8): w2load(q)
    a('s_waitcnt vmcnt(20)')
    stamp(a, 23)
    a('s_barrier')
    seq = [(ks, mt) for ks in range(32) for mt in range(2)]
    NB = 6
    def bload(i):
        ks, mt = seq[i]
        a('ds_read_b128 %s, v92 offset:%d' % (vr(BB + 4 * (i % NB), 4), (mt * 32 + ks) * 1024))
    a('v_add_u32 v92, %d, v2' % L_H)
    PF = 5
    for i in range(PF): bload(i)
    nw2 = 0
    for i, (ks, mt) in enumerate(seq):
        if i + PF < len(seq): bload(i + PF)
        rem = min(len(seq), i + PF + 1) - (i + 1)
        if ks == 24 and mt == 0:
            a('s_waitcnt vmcnt(%d) lgkmcnt(%d)' % (12 + nw2, rem))
        else:
            a('s_waitcnt lgkmcnt(%d)' % rem)
        a('v_mfma_f32_32x32x16_bf16 %s, %s, %s, %s' % (vr(D1 + 16 * mt, 16), vr(w1reg(ks), 4), vr(BB + 4 * (i % NB), 4),
                                                      '0' if ks == 0 else vr(D1 + 16 * mt, 16)))
        if mt == 1 and 1 <= ks <= 20:
            w2load(8 + ks - 1); nw2 += 1
        if mt == 1 and ks >= 25:
            colsum(a, [ks - 1], w1reg, False)
    colsum(a, [31], w1reg, False)
    a('v_add_f32 v80, v80, v81')
    a('v_add_f32 v82, v82, v83')
    a('v_add_f32 v80, v80, v82')
    a('v_mov_b32 v81, v80')
    a('v_permlane32_swap_b32 v80, v81')
    a('v_add_f32 v80, v80, v81')
    a('s_lshl_b32 s3, s%d, 7' % S_W)
    a('s_add_u32 s3, s3, %d' % L_CS)
    a('v_and_b32 v93, 31, v1')
    a('v_lshlrev_b32 v93, 2, v93')
    a('v_add_u32 v93, s3, v93')
    a('ds_write_b32 v93, v80')
    a('v_lshrrev_b32 v93, 5, v1')
    a('v_lshlrev_b32 v93, 4, v93')
    a('v_add_u32 v93, s3, v93')
    a('s_waitcnt lgkmcnt(0)')
    for q in range(4):
        a('ds_read_b128 %s, v93 offset:%d' % (vr(72 + 4 * q, 4), 32 * q))
    a('s_branch L_g1_epi')
    a.label('L_g1_stats')
    a.fence(4)
    for q in range(8): w2load(q)
    a('s_waitcnt vmcnt(8)')
    a('s_barrier')
    a('v_add_u32 v92, %d, v2' % L_H)
    for mt in range(2):
        SA, QA = 64 + 8 * mt, 68 + 8 * mt
        for ks0 in range(0, 32, 4):
            for u in range(4):
                a('ds_read_b128 %s, v92 offset:%d' % (vr(BB + 4 * u, 4), (mt * 32 + ks0 + u) * 1024))
            for u in range(4):
                a('s_waitcnt lgkmcnt(%d)' % (3 - u))
                for k in range(4):
                    first = (ks0 == 0 and u == 0)
                    a('v_dot2_f32_bf16 v%d, v%d, s44, %s' % (SA + k, BB + 4 * u + k, '0' if first else 'v%d' % (SA + k)))
                    a('v_dot2_f32_bf16 v%d, v%d, v%d, %s' % (QA + k, BB + 4 * u + k, BB + 4 * u + k, '0' if first else 'v%d' % (QA + k)))
        for base in (SA, QA):
            a('v_add_f32 v%d, v%d, v%d' % (base, base, base + 1))
            a('v_add_f32 v%d, v%d, v%d' % (base + 2, base + 2, base + 3))
            a('v_add_f32 v%d, v%d, v%d' % (base, base, base + 2))
    for (x, y) in ((64, 72), (68, 76)):
        a('v_permlane32_swap_b32 v%d, v%d' % (x, y))
        a('v_add_f32 v%d, v%d, v%d' % (x, x, y))
    a('s_mov_b32 s45, 0x%x' % f2u(1.0 / 512))
    a('s_mov_b32 s46, 0x%x' % f2u(1e-5))
    a('v_mul_f32 v64, s45, v64')
    a('v_mul_f32 v65, v64, v64')
    a('v_fma_f32 v68, v68, s45, -v65')
    a('v_add_f32 v68, s46, v68')
    a('v_rsq_f32 v68, v68')
    a('s_mov_b32 s45, 0x%x' % f2u(LOG2E))
    a('v_mul_f32 v68, s45, v68')
    a('v_mul_f32_e64 v69, -v64, v68')
    a('v_lshlrev_b32 v93, 3, v1')
    a('v_add_u32 v93, %d, v93' % L_ST)
    a('ds_write_b64 v93, v[68:69]')
    a.label('L_g1_epi')
    a.fence(12)
    stamp(a, 24)
    a('s_waitcnt lgkmcnt(0)')
    a('s_barrier')
    a('s_cmp_eq_u32 s%d, 7' % S_W)
    a('s_cbranch_scc1 L_g1_done')
    a('v_and_b32 v88, 31, v1')
    a('v_lshlrev_b32 v88, 3, v88')
    a('v_add_u32 v88, %d, v88' % L_ST)
    a('ds_read_b64 v[90:91], v88 offset:256')
    a('ds_read_b64 v[88:89], v88')
    a('s_waitcnt vmcnt(28)')
    for q in range(4):
        for e in range(2):
            a('v_lshlrev_b32 v%d, 16, v%d' % (8 + 4 * q + 2 * e, 64 + 2 * q + e))
            a('v_and_b32 v%d, 0xffff0000, v%d' % (8 + 4 * q + 2 * e + 1, 64 + 2 * q + e))
    a('s_mov_b32 s58, 0x%x' % f2u(LOG2E))
    a('s_mov_b32 s59, s58')
    for k in range(8):
        a('v_pk_mul_f32 v[%d:%d], v[%d:%d], s[58:59]' % (8 + 2 * k, 9 + 2 * k, 8 + 2 * k, 9 + 2 * k))
    a('s_lshl_b32 s3, s%d, 11' % S_W)
    a('s_add_u32 s3, s3, %d' % L_ACT)
    a('v_add_u32 v92, s3, v2')
    a('s_mov_b32 s60, 0.5'); a('s_mov_b32 s61, 0.5')
    a('s_waitcnt lgkmcnt(0)')
    P2 = lambda r: 'v[%d:%d]' % (r, r + 1)
    for mt in range(2):
        RS = 88 + 2 * mt
        for g in range(0, 16, 8):
            d = D1 + 16 * mt + g
            T, U = 24, 64
            for k in range(4):
                a('v_pk_fma_f32 %s, %s, %s, %s op_sel:[0,1,0] op_sel_hi:[1,1,1]' % (P2(T + 2 * k), P2(72 + g + 2 * k), P2(RS), P2(8 + g + 2 * k)))
            for k in range(4):
                a('v_pk_fma_f32 %s, %s, %s, %s op_sel:[0,0,0] op_sel_hi:[1,0,1]' % (P2(d + 2 * k), P2(d + 2 * k), P2(RS), P2(T + 2 * k)))
            for k in range(8): a('v_exp_f32 v%d, v%d' % (T + k, d + k))
            for k in range(4):
                a('v_pk_fma_f32 %s, %s, s[60:61], 1.0 op_sel_hi:[1,1,0]' % (P2(U + 2 * k), P2(T + 2 * k)))
            for k in range(4):
                a('v_pk_fma_f32 %s, %s, %s, 1.0 op_sel_hi:[1,1,0]' % (P2(U + 2 * k), P2(T + 2 * k), P2(U + 2 * k)))
            for k in range(8): a('v_rcp_f32 v%d, v%d' % (U + k, U + k))
            for k in range(4):
                a('v_pk_fma_f32 %s, %s, %s, %s neg_lo:[1,0,0] neg_hi:[1,0,0]' % (P2(d + 2 * k), P2(d + 2 * k), P2(U + 2 * k), P2(d + 2 * k)))
            for k in range(4):
                a('v_cvt_pk_bf16_f32 v%d, v%d, v%d' % (T + k, d + 2 * k, d + 2 * k + 1))
            a('ds_write_b128 v92, %s offset:%d' % (vr(T, 4), mt * 14 * 1024 + (g // 8) * 1024))
    a.label('L_g1_done')
    a.fence(4)
    stamp(a, 25)
    a('s_waitcnt vmcnt(0) lgkmcnt(0)')
    a('s_barrier')
    stamp(a, 26)
    D2, B2 = 8, 72
    seq = [(s, mt) for s in range(14) for mt in range(2)]
    def bload2(i):
        s, mt = seq[i]
        a('ds_read_b128 %s, v3 offset:%d' % (vr(B2 + 4 * (i % NB), 4), (mt * 14 + s) * 1024))
    a('v_add_u32 v3, %d, v2' % L_ACT)
    for i in range(PF): bload2(i)
    for i, (s, mt) in enumerate(seq):
        if i + PF < len(seq): bload2(i + PF)
        rem = min(len(seq), i + PF + 1) - (i + 1)
        a('s_waitcnt lgkmcnt(%d)' % rem)
        for nt in range(2):
            acc = D2 + 16 * (2 * nt + mt)
            a('v_mfma_f32_32x32x16_bf16 %s, %s, %s, %s' % (vr(acc, 16), vr(w2_slot_reg(nt * 14 + s), 4), vr(B2 + 4 * (i % NB), 4),
                                                          '0' if s == 0 else vr(acc, 16)))
    stamp(a, 27)
    a('s_lshl_b32 s3, s%d, 3' % S_RB)
    a('s_add_u32 s3, s3, s%d' % S_W)
    a('s_lshl_b32 s3, s3, 3')
    a('s_add_u32 s3, s3, s%d' % S_J)
    a('s_lshl_b32 s18, s3, 2')
    a('s_add_u32 s18, s18, 0x%x' % WS_F5)
    a('s_lshl_b32 s3, s3, 13')
    a('s_add_u32 s3, s3, 0x%x' % WS_P)
    a('s_add_u32 s43, s3, 4096')
    a.fence(8)
    for nt in range(2):
        for mt in range(2):
            acc = D2 + 16 * (2 * nt + mt)
            for k in range(8):
                a('v_cvt_pk_bf16_f32 v%d, v%d, v%d' % (acc + k, acc + 2 * k, acc + 2 * k + 1))
    def pst(m):
        for nt in range(2):
            for mt in range(2):
                acc = D2 + 16 * (2 * nt + mt)
                for hf in range(2):
                    a('buffer_store_dwordx4 %s, v2, %s, %s offen offset:%d%s' % (vr(acc + 4 * hf, 4), srd(S_WS), 's3' if nt == 0 else 's43',
                                                                              (mt * 2 + hf) * 1024, m))
    if OPT.get('psc1'):
        pst(' sc1')
    elif OPT.get('pnt'):
        both(a, lambda m: pst(m + ' nt'))
    else:
        both(a, pst)
    a('s_waitcnt vmcnt(0)')
    both(a, lambda m: flag_store(a, 's18', S_TAG, m, 72))
    stamp(a, 28)


def phase6(a):
    a('s_lshl_b32 s3, s%d, 3' % S_RB)
    a('s_add_u32 s3, s3, s%d' % S_J)
    a('s_lshl_b32 s18, s3, 16')
    a('s_lshl_b32 s3, s3, 5')
    a('s_add_u32 s3, s3, 0x%x' % WS_F5)
    a('s_lshr_b32 s48, s%d, 2' % S_W)
    a('s_lshl_b32 s48, s48, 2')
    a('s_and_b32 s49, s%d, 1' % S_W)
    a('s_lshl_b32 s49, s49, 1')
    a('s_bfe_u32 s50, s%d, 0x10001' % S_W)
    a('s_add_u32 s48, s48, s49')
    a('s_add_u32 s48, s48, s50')
    a('s_lshl_b32 s48, s48, 10')
    a('s_add_u32 s18, s18, s48')
    a('s_add_u32 s18, s18, 0x%x' % WS_P)
    poll8(a, 's3', 72)
    stamp(a, 29)
    for src in range(8):
        a('buffer_load_dwordx4 %s, v2, %s, s18 offen sc1' % (vr(16 + 4 * src, 4), srd(S_WS)))
        if src < 7: a('s_add_u32 s18, s18, 8192')
    for k in range(4):
        a('v_lshlrev_b32 v%d, 16, v%d' % (64 + 2 * k, 4 + k))
        a('v_and_b32 v%d, 0xffff0000, v%d' % (65 + 2 * k, 4 + k))
    for src in range(8):
        a('s_waitcnt vmcnt(%d)' % (7 - src))
        t = 48 if src == 0 else 56
        for k in range(4):
            r = 16 + 4 * src + k
            a('v_lshlrev_b32 v%d, 16, v%d' % (t + 2 * k, r))
            a('v_and_b32 v%d, 0xffff0000, v%d' % (t + 1 + 2 * k, r))
        if src:
            for k in range(4): a('v_pk_add_f32 v[%d:%d], v[%d:%d], v[%d:%d]' % (48 + 2 * k, 49 + 2 * k, 48 + 2 * k, 49 + 2 * k, 56 + 2 * k, 57 + 2 * k))
    a('s_mov_b32 s3, 0x%x' % f2u(1.0 / LOG2E))
    for k in range(8): a('v_fma_f32 v%d, v%d, s3, v%d' % (48 + k, 48 + k, 64 + k))
    for k in range(4): a('v_cvt_pk_bf16_f32 v%d, v%d, v%d' % (8 + k, 48 + 2 * k, 49 + 2 * k))
    a('v_permlane32_swap_b32 v8, v10')
    a('v_permlane32_swap_b32 v9, v11')
    a('v_and_b32 v13, 31, v1')
    a('v_lshrrev_b32 v14, 5, v1')
    a('v_lshlrev_b32 v13, 10, v13')
    a('v_lshl_add_u32 v13, v14, 4, v13')
    a('buffer_store_dwordx4 v[8:11], v13, %s, s53 offen%s' % (srd(S_OUT), ' sc1' if OPT.get('osc1') else (' sc0 sc1' if OPT.get('osc01') else '')))
    a('s_cmp_lg_u32 s2, 0')
    a('s_cbranch_scc1 L_ep_done')
    a('s_cmp_lg_u32 s%d, 0' % S_W)
    a('s_cbranch_scc1 L_ep_done')
    a('s_mov_b32 s3, 0x%x' % WS_EPOCH)
    flag_store(a, 's3', S_E1, ' sc1', 72)
    a.label('L_ep_done')


def gen_fused(force_slow=False):
    n = NAME + '_kernel'
    text = HEADER + '; @launch grid=(256,1,1) block=(512,1,1) lds=163840\n'
    text += '.amdgcn_target "amdgcn-amd-amdhsa--gfx950"\n.text\n'
    a = Asm()
    end = 'L_end'
    setup(a, end)
    if STAMPS: a('v_mov_b32 v%d, 0' % STAMP_V)
    stamp(a, 0)
    phase1(a)
    phase2(a, force_slow)
    phase3(a)
    phase45(a)
    phase6(a)
    if STAMPS:
        a('s_waitcnt vmcnt(0)')
        stamp(a, 31)
        stamp_flush(a)
    a('s_waitcnt vmcnt(0)')
    a.label(end)
    a('s_endpgm')
    text += G.kernel_wrap(n, a.text())
    text += '.section .rodata,"a"\n.p2align 6\n' + G.desc(n)
    return text


if __name__ == '__main__':
    out = sys.argv[1] if len(sys.argv) > 1 else 'cdna_kernels/%s.s' % NAME
    for t in sys.argv[2:]:
        if '=' in t:
            k, v = t.split('='); OPT[k] = int(v)
        else:
            OPT[t] = 1
    STAMPS = 'stamps' in OPT
    t = gen_fused(force_slow='slow' in OPT)
    open(out, 'w').write(t)
    print('wrote', out, len(t))
```

```python
import sys, os
sys.path.insert(0, os.path.dirname(__file__))
from asmlib import Asm
import gen as G
from gen import (NAME, f2u, srd, vr, mk_srd, ln_stats, ln_apply, LOG2E, LIMIT2,
                 S_X, S_WQ, S_WKV, S_B1, S_OUT, S_WS, S_J, S_RB, S_W,
                 WS_KMAX, WS_WO, WS_W1, WS_W2, WS_O, WS_H, WS_P, WS_STAMP, WS_SIZE, HEADER)

WS_F1 = 0x30000
WS_F2 = 0x30400
WS_F3 = 0x31000
WS_F4 = 0x33000
WS_F5 = 0x35000
WS_EPOCH = 0x37000
S_TAG, S_FAST, S_E1, S_F1V = 100, 101, 16, 17
OPT = {}
STAMPS = False
STAMP_V = 0
SPIN = 1 << 17
_uid = [0]


def uid(p):
    _uid[0] += 1
    return '%s_%d' % (p, _uid[0])


def stamp(a, idx):
    if not STAMPS: return
    a('s_waitcnt lgkmcnt(0)')
    a('s_memtime s[96:97]')
    a('s_memrealtime s[98:99]')
    a('s_waitcnt lgkmcnt(0)')
    a('v_writelane_b32 v%d, s96, %d' % (STAMP_V, idx))
    a('v_writelane_b32 v%d, s98, %d' % (STAMP_V, idx + 32))


def stamp_flush_dbg(a):
    sel = [(0, 1), (0, 0), (12, 0), (16, 0), (17, 0), (21, 0), (23, 0), (24, 0), (26, 0), (27, 0), (28, 0), (29, 0), (31, 0), (31, 1), (4, 0), (9, 0)]
    for i, (idx, neg) in enumerate(sel):
        a('v_readlane_b32 s3, v%d, %d' % (STAMP_V, idx + 32))
        if neg: a('s_not_b32 s3, s3')
        a('s_nop 3')
        a('v_writelane_b32 v4, s3, %d' % i)
    a('v_lshlrev_b32 v3, 2, v1')
    a('s_mov_b64 exec, 0xffff')
    a('global_atomic_umax v3, v4, s[84:85]')
    a('s_mov_b64 exec, -1')


def stamp_flush(a):
    if not STAMPS: return
    if OPT.get('dbg'):
        stamp_flush_dbg(a); return
    a('s_lshl_b32 s3, s2, 11')
    a('s_lshl_b32 s43, s%d, 8' % S_W)
    a('s_add_u32 s3, s3, s43')
    a('s_add_u32 s3, s3, 0x%x' % WS_STAMP)
    a('v_lshlrev_b32 v3, 2, v1')
    a('buffer_store_dword v%d, v3, %s, s3 offen' % (STAMP_V, srd(S_WS)))


def both(a, fn):
    if OPT.get('nofast'):
        fn(' sc1'); return
    ls, ld = uid('L_sl'), uid('L_dn')
    a('s_cmp_eq_u32 s%d, 0' % S_FAST)
    a('s_cbranch_scc1 %s' % ls)
    fn('')
    a('s_branch %s' % ld)
    a.label(ls)
    fn(' sc1')
    a.label(ld)


def flag_store(a, soff, val, mod, vt):
    a('v_mov_b32 v%d, s%d' % (vt, val))
    a('s_mov_b64 exec, 1')
    a('buffer_store_dword v%d, off, %s, %s%s' % (vt, srd(S_WS), soff, mod))
    a('s_mov_b64 exec, -1')


def poll8(a, soff, vt, sleep=True):
    l, d = uid('L_poll'), uid('L_pd')
    a('v_and_b32 v%d, 7, v1' % (vt + 1))
    a('v_lshlrev_b32 v%d, 2, v%d' % (vt + 1, vt + 1))
    a('s_mov_b32 s43, %d' % SPIN)
    a.label(l)
    a('buffer_load_dword v%d, v%d, %s, %s offen sc1' % (vt, vt + 1, srd(S_WS), soff))
    a('s_waitcnt vmcnt(0)')
    a('v_cmp_ne_u32 vcc, s%d, v%d' % (S_TAG, vt))
    a('s_cbranch_vccz %s' % d)
    a('s_sub_u32 s43, s43, 1')
    a('s_cmp_lg_u32 s43, 0')
    a('s_cbranch_scc1 %s' % l)
    a.label(d)


def check256(a, vt):
    for k in range(4):
        a('v_xor_b32 v%d, s%d, v%d' % (vt + k, S_TAG, vt + k))
    a('v_or3_b32 v%d, v%d, v%d, v%d' % (vt, vt, vt + 1, vt + 2))
    a('v_or_b32 v%d, v%d, v%d' % (vt, vt, vt + 3))
    a('v_cmp_le_u32 vcc, 16, v%d' % vt)


def poll256(a, base, vt, first_loaded=False):
    l, d, c = uid('L_poll'), uid('L_pd'), uid('L_pc')
    a('s_mov_b32 s43, %d' % SPIN)
    a('s_mov_b32 s3, 0x%x' % base)
    if first_loaded:
        a('s_branch %s' % c)
    a.label(l)
    a('buffer_load_dwordx4 %s, v2, %s, s3 offen sc1' % (vr(vt, 4), srd(S_WS)))
    a.label(c)
    a('s_waitcnt vmcnt(0)')
    check256(a, vt)
    a('s_cbranch_vccz %s' % d)
    a('s_sub_u32 s43, s43, 1')
    a('s_cmp_lg_u32 s43, 0')
    a('s_cbranch_scc1 %s' % l)
    a.label(d)


def setup(a, endlabel):
    a('s_cmp_ge_u32 s2, 256')
    a('s_cbranch_scc1 %s' % endlabel)
    a('s_load_dwordx16 s[64:79], s[0:1], 0')
    a('s_load_dwordx8 s[80:87], s[0:1], 64')
    a('v_lshrrev_b32 v2, 6, v0')
    a('v_and_b32 v1, 63, v0')
    a('v_readfirstlane_b32 s%d, v2' % S_W)
    a('v_lshlrev_b32 v2, 4, v1')
    a('s_lshr_b32 s%d, s2, 3' % S_J)
    a('s_and_b32 s%d, s%d, 7' % (S_J, S_J))
    a('s_and_b32 s%d, s2, 7' % S_RB)
    a('s_lshl_b32 s%d, s%d, 2' % (S_RB, S_RB))
    a('s_lshr_b32 s3, s2, 6')
    a('s_add_u32 s%d, s%d, s3' % (S_RB, S_RB))
    a('s_getreg_b32 s%d, hwreg(HW_REG_XCC_ID, 0, 4)' % S_F1V)
    a('s_waitcnt lgkmcnt(0)')
    a('s_load_dword s%d, s[86:87], 0x%x' % (S_E1, WS_EPOCH))
    mk_srd(a, S_X, 64, 2048 * 512 * 2)
    a('s_bitcmp1_b32 s%d, 0' % S_J)
    a('s_cselect_b32 s%d, s70, s68' % S_WKV)
    a('s_cselect_b32 s%d, s71, s69' % (S_WKV + 1))
    a('s_mov_b32 s%d, 0x%x' % (S_WKV + 2, 512 * 16 * 2))
    a('s_mov_b32 s%d, 0x20000' % (S_WKV + 3))
    mk_srd(a, S_WQ, 66, 512 * 512 * 2)
    mk_srd(a, S_WS, 86, WS_SIZE)
    mk_srd(a, S_B1, 78, 1792 * 2)
    mk_srd(a, S_OUT, 82, 2048 * 512 * 2)


L_WKV, L_TB, L_X, L_WQ = 0, 16384, 32768, 98304
KVB, TS_ = 16384, 2064


def phase1(a):
    XR = 32
    TS, TQ, TT = 8, 16, 24
    a('s_mov_b32 s44, 0x3f803f80')
    a('s_mov_b32 s45, 0x%x' % f2u(1.0 / 512))
    a('s_mov_b32 s46, 0x%x' % f2u(1e-5))
    a('s_lshr_b32 s47, s%d, 1' % S_J)
    a('s_lshl_b32 s47, s47, 4')
    a('s_lshl_b32 s88, s%d, 1' % S_W)
    a('s_add_u32 s88, s88, s47')
    a('s_add_u32 s89, s88, 1')
    a('s_lshl_b32 s48, s%d, 16' % S_RB)
    def xload(i):
        a('s_lshl_b32 s43, s%d, 10' % (88 + i))
        a('s_add_u32 s43, s43, s48')
        a('buffer_load_dwordx4 %s, v2, %s, s43 offen' % (vr(XR + 4 * i, 4), srd(S_X)))
    xload(0); xload(1)
    a('s_lshl_b32 s43, s%d, 11' % S_W)
    a('s_mov_b32 m0, s43')
    a('s_nop 0')
    a('buffer_load_dwordx4 v2, %s, s43 offen lds' % srd(S_WKV))
    a('buffer_load_dwordx4 v2, %s, s43 offen offset:1024 lds' % srd(S_WKV))
    a('s_mul_i32 s3, s%d, 6' % S_W)
    for i in range(6):
        a('s_add_u32 s%d, s3, %d' % (90 + i, i))
        a('s_add_u32 s43, s%d, 16' % (90 + i))
        a('s_cmp_lt_u32 s%d, s47' % (90 + i))
        a('s_cselect_b32 s%d, s%d, s43' % (90 + i, 90 + i))
    a('v_lshrrev_b32 v3, 3, v1')
    a('v_and_b32 v4, 7, v1')
    a('v_lshlrev_b32 v5, 1, v3')
    a('v_and_b32 v5, 4, v5')
    a('v_xor_b32 v4, v4, v5')
    a('v_lshlrev_b32 v4, 4, v4')
    a('v_lshl_add_u32 v5, v3, 10, v4')
    if not OPT.get('nobar0'):
        a('s_barrier')
    for i in range(2, 8): xload(i)
    a('s_lshl_b32 s49, s%d, 16' % S_W)
    a('s_lshl_b32 s43, s%d, 7' % S_J)
    a('s_add_u32 s49, s49, s43')
    a('s_lshl_b32 s50, s%d, 13' % S_W)
    a('s_add_u32 s50, s50, %d' % L_WQ)
    for i in range(8):
        a('s_mov_b32 m0, s50')
        a('s_add_u32 s50, s50, 1024')
        a('buffer_load_dwordx4 v5, %s, s49 offen lds' % srd(S_WQ))
        if i < 7: a('s_add_u32 s49, s49, 8192')
    a('s_cmp_lt_u32 s2, 112')
    a('s_cbranch_scc1 L_tb_w1')
    a('s_cmp_lt_u32 s2, 224')
    a('s_cbranch_scc1 L_tb_w2')
    a('s_sub_u32 s3, s2, 224')
    a('s_mov_b32 s52, s72'); a('s_mov_b32 s53, s73'); a('s_mov_b32 s54, 0x%x' % (512 * 512 * 2))
    a('s_mov_b32 s56, 1024')
    a('s_and_b32 s60, s3, 3'); a('s_lshr_b32 s61, s3, 2')
    a('s_mov_b32 s59, %d' % (32 * 1024))
    a('s_mov_b32 s62, 0x%x' % WS_WO)
    a('s_branch L_tb_go')
    a.label('L_tb_w1')
    a('s_mov_b32 s52, s76'); a('s_mov_b32 s53, s77'); a('s_mov_b32 s54, 0x%x' % (512 * 1792 * 2))
    a('s_mov_b32 s56, 3584')
    a('s_and_b32 s60, s2, 3'); a('s_lshr_b32 s61, s2, 2')
    a('s_mov_b32 s59, %d' % (32 * 1024))
    a('s_mov_b32 s62, 0x%x' % WS_W1)
    a('s_branch L_tb_go')
    a.label('L_tb_w2')
    a('s_sub_u32 s3, s2, 112')
    a('s_mov_b32 s52, s80'); a('s_mov_b32 s53, s81'); a('s_mov_b32 s54, 0x%x' % (1792 * 512 * 2))
    a('s_mov_b32 s56, 1024')
    a('s_lshr_b32 s60, s3, 3'); a('s_and_b32 s61, s3, 7')
    a('s_mov_b32 s59, %d' % (112 * 1024))
    a('s_mov_b32 s62, 0x%x' % WS_W2)
    a.label('L_tb_go')
    a('s_mov_b32 s55, 0x20000')
    a('s_lshl_b32 s3, s60, 7')
    a('s_lshl_b32 s43, s%d, 4' % S_W)
    a('s_add_u32 s3, s3, s43')
    a('s_mul_i32 s57, s3, s56')
    a('s_lshl_b32 s3, s61, 7')
    a('s_add_u32 s57, s57, s3')
    a('s_lshl_b32 s3, s61, 1')
    a('s_mul_i32 s58, s3, s59')
    a('s_add_u32 s58, s58, s62')
    a('s_lshl_b32 s3, s60, 3')
    a('s_add_u32 s3, s3, s%d' % S_W)
    a('s_lshl_b32 s3, s3, 10')
    a('s_add_u32 s58, s58, s3')
    a('v_mul_lo_u32 v6, v3, s56')
    a('v_add_u32 v6, v6, v4')
    a('s_lshl_b32 s3, s%d, 11' % S_W)
    a('s_add_u32 s3, s3, %d' % L_TB)
    a('s_mov_b32 m0, s3')
    a('s_lshl_b32 s43, s56, 3')
    a('buffer_load_dwordx4 v6, s[52:55], s57 offen lds')
    a('s_add_u32 s3, s3, 1024')
    a('s_add_u32 s57, s57, s43')
    a('s_mov_b32 m0, s3')
    a('s_nop 0')
    a('buffer_load_dwordx4 v6, s[52:55], s57 offen lds')
    stamp(a, 1)
    a('s_waitcnt vmcnt(18) lgkmcnt(0)')
    a('s_mul_i32 s%d, s%d, 0x9E3779B1' % (S_TAG, S_E1))
    a('s_add_u32 s%d, s%d, 0x7F4A7C15' % (S_TAG, S_TAG))
    a('s_and_b32 s%d, s%d, 0xFFFFFFF0' % (S_TAG, S_TAG))
    a('s_or_b32 s%d, s%d, s%d' % (S_F1V, S_F1V, S_TAG))
    a('s_add_u32 s%d, s%d, 1' % (S_E1, S_E1))
    stamp(a, 2)
    SB = 72
    ln_stats(a, [XR, XR + 4], TS, TQ, SB)
    def xstore(i):
        a('s_lshl_b32 s3, s%d, 10' % (88 + i))
        a('s_and_b32 s43, s%d, 15' % (88 + i))
        a('s_lshl_b32 s43, s43, 4')
        a('s_add_u32 s3, s3, s43')
        a('s_add_u32 s3, s3, %d' % L_X)
        a('v_xor_b32 v7, s3, v2')
        a('ds_write_b128 v7, %s' % vr(XR + 4 * i, 4))
    for i in range(2):
        ln_apply(a, XR + 4 * i, SB + 2 * i, TT)
        xstore(i)
    a('s_waitcnt vmcnt(16) lgkmcnt(0)')
    stamp(a, 3)
    a('s_barrier')
    stamp(a, 4)
    a('s_cmp_lg_u32 s%d, 0' % S_W)
    a('s_cbranch_scc1 L_kv_done')
    KW, KX = 64, 128
    a('v_lshrrev_b32 v8, 4, v1')
    a('v_and_b32 v9, 15, v1')
    a('v_lshlrev_b32 v10, 8, v8')
    a('v_lshl_add_u32 v10, v9, 3, v10')
    a('v_xor_b32 v11, v8, v9')
    a('v_lshlrev_b32 v11, 4, v11')
    a('v_add_u32 v12, s47, v9')
    a('v_lshlrev_b32 v12, 10, v12')
    a('v_add_u32 v12, %d, v12' % L_X)
    a('v_add_u32 v12, v12, v11')
    a('v_xor_b32 v13, 64, v12')
    a('v_xor_b32 v14, 0x80, v12')
    a('v_xor_b32 v15, 0xc0, v12')
    def kvload(ks):
        a('ds_read_b64_tr_b16 %s, v10 offset:%d' % (vr(KW + 4 * ks, 2), 1024 * ks))
        a('ds_read_b64_tr_b16 %s, v10 offset:%d' % (vr(KW + 4 * ks + 2, 2), 1024 * ks + 128))
        a('ds_read_b128 %s, v%d offset:%d' % (vr(KX + 4 * ks, 4), 12 + ks % 4, (ks // 4) * 256))
    for ks in range(4): kvload(ks)
    a('s_bitcmp1_b32 s%d, 0' % S_J)
    a('s_cbranch_scc1 L_kv_v')
    for var in (0, 1):
        if var: a.label('L_kv_v'); a.fence(4)
        for ks in range(16):
            if ks + 4 < 16: kvload(ks + 4)
            a('s_waitcnt lgkmcnt(%d)' % (3 * (min(16, ks + 5) - (ks + 1))))
            acc = 16 + 4 * (ks % 2)
            A, B = (KW + 4 * ks, KX + 4 * ks) if var == 0 else (KX + 4 * ks, KW + 4 * ks)
            a('v_mfma_f32_16x16x32_bf16 %s, %s, %s, %s' % (vr(acc, 4), vr(A, 4), vr(B, 4), '0' if ks < 2 else vr(acc, 4)))
        for k in range(4):
            a('v_add_f32 v%d, v%d, v%d' % (16 + k, 16 + k, 20 + k))
        a('v_cvt_pk_bf16_f32 v16, v16, v17')
        a('v_cvt_pk_bf16_f32 v17, v18, v19')
        a('v_and_b32 v18, 1, v8')
        a('v_lshlrev_b32 v18, %d, v18' % (9 if var == 0 else 8))
        a('v_lshl_add_u32 v18, v9, 4, v18')
        a('v_lshrrev_b32 v19, 1, v8')
        a('v_lshl_add_u32 v18, v19, 3, v18')
        a('s_lshl_b32 s3, s%d, 1' % S_RB)
        a('s_lshr_b32 s43, s47, 5')
        a('s_add_u32 s3, s3, s43')
        a('s_lshl_b32 s3, s3, 11')
        a('s_and_b32 s43, s47, 16')
        if var == 0:
            a('s_lshl_b32 s43, s43, 4')
        else:
            a('s_lshl_b32 s43, s43, 5')
            a('s_add_u32 s43, s43, 1024')
        a('s_add_u32 s3, s3, s43')
        a('buffer_store_dwordx2 v[16:17], v18, %s, s3 offen sc1' % srd(S_WS))
        if var == 0:
            a('v_dot2_f32_bf16 v20, v16, v16, 0')
            a('v_dot2_f32_bf16 v20, v17, v17, v20')
            a('v_mov_b32 v21, v20')
            a('v_permlane32_swap_b32 v20, v21')
            a('v_add_f32 v20, v20, v21')
            a('v_mov_b32 v21, v20')
            a('v_permlane16_swap_b32 v20, v21')
            a('v_add_f32 v20, v20, v21')
            for sh in (8, 4, 2, 1):
                a('v_max_f32_dpp v20, v20, v20 row_ror:%d row_mask:0xf bank_mask:0xf' % sh)
            a('s_lshl_b32 s3, s%d, 2' % S_RB)
            a('s_lshr_b32 s43, s%d, 1' % S_J)
            a('s_add_u32 s3, s3, s43')
            a('s_lshl_b32 s3, s3, 2')
            a('s_add_u32 s3, s3, 0x%x' % WS_KMAX)
            a('s_mov_b64 exec, 1')
            a('buffer_store_dword v20, off, %s, s3 sc1' % srd(S_WS))
            a('s_mov_b64 exec, -1')
            a('s_branch L_kv_done')
    a.label('L_kv_done')
    a.fence(4)
    stamp(a, 5)
    a('s_waitcnt vmcnt(10)')
    stamp(a, 6)
    rows = [XR + 4 * i for i in range(2, 8)]
    ln_stats(a, rows, TS, TQ, SB)
    for i in range(2, 8):
        ln_apply(a, XR + 4 * i, SB + 2 * (i - 2), TT)
        xstore(i)
    stamp(a, 7)
    a('s_waitcnt vmcnt(0) lgkmcnt(0)')
    a('s_cmp_lg_u32 s%d, 0' % S_W)
    a('s_cbranch_scc1 L_f1_done')
    a('s_lshl_b32 s3, s%d, 3' % S_RB)
    a('s_add_u32 s3, s3, s%d' % S_J)
    a('s_lshl_b32 s3, s3, 2')
    a('s_add_u32 s3, s3, 0x%x' % WS_F1)
    flag_store(a, 's3', S_F1V, ' sc1', 8)
    a.label('L_f1_done')
    stamp(a, 8)
    a('s_barrier')
    stamp(a, 9)
    a('s_and_b32 s48, s%d, 1' % S_W)
    a('s_bfe_u32 s49, s%d, 0x10001' % S_W)
    a('s_lshr_b32 s50, s%d, 2' % S_W)
    a('v_lshrrev_b32 v8, 5, v1')
    a('v_bfe_u32 v9, v1, 4, 1')
    a('v_bfe_u32 v10, v1, 2, 2')
    a('v_and_b32 v11, 3, v1')
    a('v_lshrrev_b32 v12, 1, v11')
    a('v_lshl_add_u32 v12, v9, 1, v12')
    a('v_lshrrev_b32 v13, 1, v10')
    a('v_lshlrev_b32 v13, 2, v13')
    a('v_xor_b32 v12, v12, v13')
    a('v_lshlrev_b32 v12, 4, v12')
    a('v_and_b32 v11, 1, v11')
    a('v_lshl_add_u32 v12, v11, 3, v12')
    a('v_lshl_add_u32 v13, v8, 3, v10')
    a('v_lshl_add_u32 v13, v13, 7, v12')
    a('s_lshl_b32 s3, s50, 15')
    a('s_lshl_b32 s43, s48, 6')
    a('s_add_u32 s3, s3, %d' % L_WQ)
    a('v_xor_b32 v13, s43, v13')
    a('v_add_u32 v13, s3, v13')
    a('v_lshl_add_u32 v14, v8, 2, v10')
    a('v_lshl_add_u32 v14, v14, 7, v12')
    a('s_lshl_b32 s3, s%d, 11' % S_W)
    a('s_add_u32 s3, s3, %d' % L_TB)
    a('v_add_u32 v14, s3, v14')
    a('v_xor_b32 v15, 64, v14')
    for nt in range(2):
        a('ds_read_b64_tr_b16 %s, v%d' % (vr(192 + 4 * nt, 2), 14 + nt))
        a('ds_read_b64_tr_b16 %s, v%d offset:1024' % (vr(194 + 4 * nt, 2), 14 + nt))
    a('v_and_b32 v16, 31, v1')
    a('v_and_b32 v17, 15, v1')
    a('v_xor_b32 v17, v17, v8')
    a('v_lshlrev_b32 v17, 4, v17')
    a('v_lshl_add_u32 v17, v16, 10, v17')
    a('s_lshl_b32 s3, s49, 15')
    a('s_lshl_b32 s43, s50, 9')
    a('s_add_u32 s3, s3, s43')
    a('s_add_u32 s3, s3, %d' % L_X)
    a('v_add_u32 v24, s3, v17')
    for q in range(1, 8):
        a('v_xor_b32 v%d, %d, v24' % (24 + q, 32 * q))
    QA, QB, QD = 64, 128, 32
    def qload(s):
        a('ds_read_b64_tr_b16 %s, v13 offset:%d' % (vr(QA + 4 * s, 2), 2048 * s))
        a('ds_read_b64_tr_b16 %s, v13 offset:%d' % (vr(QA + 4 * s + 2, 2), 2048 * s + 512))
        a('ds_read_b128 %s, v%d offset:%d' % (vr(QB + 4 * s, 4), 24 + s % 8, (s // 8) * 256))
    PF = 4
    a('s_waitcnt lgkmcnt(0)')
    for s in range(PF): qload(s)
    a('buffer_store_dwordx4 %s, v2, %s, s58 offen sc1' % (vr(192, 4), srd(S_WS)))
    a('s_add_u32 s58, s58, s59')
    a('buffer_store_dwordx4 %s, v2, %s, s58 offen sc1' % (vr(196, 4), srd(S_WS)))
    for s in range(16):
        if s + PF < 16: qload(s + PF)
        rem = min(16, s + PF + 1) - (s + 1)
        a('s_waitcnt lgkmcnt(%d)' % (3 * rem))
        a('v_mfma_f32_32x32x16_bf16 %s, %s, %s, %s' % (vr(QD, 16), vr(QA + 4 * s, 4), vr(QB + 4 * s, 4), '0' if s == 0 else vr(QD, 16)))
    stamp(a, 10)
    a('s_lshl_b32 s3, s%d, 11' % S_W)
    a('v_add_u32 v8, s3, v2')
    a('s_xor_b32 s3, s3, %d' % (4 << 11))
    a('v_add_u32 v9, s3, v2')
    a('s_cmp_eq_u32 s50, 0')
    a('s_cbranch_scc0 L_q_kh1')
    a('s_nop 7')
    a('ds_write_b128 v8, %s' % vr(QD + 8, 4))
    a('ds_write_b128 v8, %s offset:1024' % vr(QD + 12, 4))
    a('s_branch L_q_x')
    a.label('L_q_kh1')
    a.fence(12)
    a('ds_write_b128 v8, %s' % vr(QD, 4))
    a('ds_write_b128 v8, %s offset:1024' % vr(QD + 4, 4))
    for k in range(8):
        a('v_mov_b32 v%d, v%d' % (QD + k, QD + 8 + k))
    a.label('L_q_x')
    a.fence(4)
    a('s_cmp_lg_u32 s%d, 7' % S_W)
    a('s_cbranch_scc1 L_f1p_done')
    poll256(a, WS_F1, 56)
    a.label('L_f1p_done')
    a('s_waitcnt lgkmcnt(0)')
    stamp(a, 11)
    a('s_barrier')
    stamp(a, 12)


R_Q, R_S0, R_S1, R_O, R_P0, R_P1 = 4, 8, 24, 40, 56, 60
R_V0, R_V1, R_K = 64, 72, 80
R_KAD, R_VA0, R_VA1, R_ROW, R_XRES = 88, 3, 89, 90, 92
R_WO, R_W1 = 192, 96


def prefetch_list(a):
    L = []
    def wo_addr():
        a('s_lshr_b32 s51, s%d, 1' % S_W)
        a('s_lshl_b32 s51, s51, 3')
        a('s_lshl_b32 s52, s%d, 6' % S_J)
        a('s_add_u32 s51, s51, s52')
        a('s_lshl_b32 s51, s51, 10')
        a('s_add_u32 s51, s51, 0x%x' % WS_WO)
        a('s_add_u32 s52, s51, %d' % (32 * 1024))
    def wo(nt, s):
        def f():
            if nt == 0 and s == 0: wo_addr()
            if s == 4: a('s_add_u32 s%d, s%d, 4096' % (51 + nt, 51 + nt))
            a('buffer_load_dwordx4 %s, v2, %s, s%d offen offset:%d sc1' % (vr(R_WO + 32 * nt + 4 * s, 4), srd(S_WS), 51 + nt, (s % 4) * 1024))
        return f
    for s in range(8):
        for nt in range(2): L.append(wo(nt, s))
    def xres():
        a('s_and_b32 s3, s%d, 1' % S_W)
        a('s_lshl_b32 s43, s%d, 1' % S_RB)
        a('s_add_u32 s3, s3, s43')
        a('s_lshl_b32 s3, s3, 15')
        a('s_lshl_b32 s43, s%d, 7' % S_J)
        a('s_add_u32 s3, s3, s43')
        a('s_lshr_b32 s43, s%d, 1' % S_W)
        a('s_lshl_b32 s43, s43, 5')
        a('s_add_u32 s53, s3, s43')
        a('buffer_load_dwordx4 %s, v%d, %s, s53 offen' % (vr(R_XRES, 4), R_ROW, srd(S_X)))
    L.append(xres)
    def w1_addr():
        a('s_mul_i32 s54, s%d, 7' % S_J)
        a('s_add_u32 s54, s54, s%d' % S_W)
        a('s_lshl_b32 s54, s54, 15')
        a('s_add_u32 s54, s54, 0x%x' % WS_W1)
        w2_base(a, 's55')
        a('s_add_u32 s56, s55, %d' % (8 * 1024))
        a('s_cmp_eq_u32 s%d, 7' % S_W)
        a('s_cselect_b32 s57, s56, s54')
        a('s_cselect_b32 s58, %d, 0' % ((112 - 14) * 1024))
    def w1(i):
        def f():
            if i == 0: w1_addr()
            if i < 6:
                if i == 4: a('s_add_u32 s57, s57, 4096')
                off = (i % 4) * 1024
            else:
                if i == 6:
                    a('s_add_u32 s57, s57, 2048'); a('s_add_u32 s57, s57, s58')
                elif (i - 6) % 4 == 0:
                    a('s_add_u32 s57, s57, 4096')
                off = ((i - 6) % 4) * 1024
            a('buffer_load_dwordx4 %s, v2, %s, s57 offen offset:%d sc1' % (vr(R_W1 + 4 * i, 4), srd(S_WS), off))
        return f
    for i in range(24): L.append(w1(i))
    return L


def w2_base(a, dst):
    a('s_mul_i32 %s, s%d, %d' % (dst, S_W, 2 * 112))
    a('s_mul_i32 s43, s%d, 14' % S_J)
    a('s_add_u32 %s, %s, s43' % (dst, dst))
    a('s_lshl_b32 %s, %s, 10' % (dst, dst))
    a('s_add_u32 %s, %s, 0x%x' % (dst, dst, WS_W2))


def w2_slot_reg(q):
    return 224 + 4 * q if q < 8 else 96 + 4 * (q - 8)


def attn_tile(a, u, extra=()):
    c, n = u % 2, (u + 1) % 2
    S = [R_S0, R_S1]
    K = lambda b: R_K + 4 * b
    V0 = lambda b: R_V0 + 4 * b
    V1 = lambda b: R_V1 + 4 * b
    ex = list(extra)
    def E(k): a('v_exp_f32 v%d, v%d' % (S[c] + k, S[c] + k))
    def X():
        if ex: ex.pop(0)()
    a('s_waitcnt lgkmcnt(0)')
    E(0)
    a('ds_read_b128 %s, v%d offset:%d' % (vr(K(c), 4), R_KAD, (u + 2) * TS_))
    E(1)
    a('ds_read_b128 %s, v%d offset:%d' % (vr(V0(n), 4), R_VA0, (u + 1) * TS_))
    E(2)
    a('ds_read_b128 %s, v%d offset:%d' % (vr(V1(c), 4), R_VA1, u * TS_))
    E(3)
    a('v_mfma_f32_32x32x16_bf16 %s, %s, %s, 0' % (vr(S[n], 16), vr(K(n), 4), vr(R_Q, 4)))
    E(4); X(); E(5); X(); E(6); X(); E(7)
    for k in range(4): a('v_cvt_pk_bf16_f32 v%d, v%d, v%d' % (R_P0 + k, S[c] + 2 * k, S[c] + 2 * k + 1))
    a('v_mfma_f32_32x32x16_bf16 %s, %s, %s, %s' % (vr(R_O, 16), vr(V1(n), 4), vr(R_P1, 4), vr(R_O, 16)))
    E(8); X(); E(9); X(); E(10); X(); E(11)
    a('v_mfma_f32_32x32x16_bf16 %s, %s, %s, %s' % (vr(R_O, 16), vr(V0(c), 4), vr(R_P0, 4), vr(R_O, 16)))
    for k in range(12, 16): E(k)
    for k in range(4): a('v_cvt_pk_bf16_f32 v%d, v%d, v%d' % (R_P1 + k, S[c] + 8 + 2 * k, S[c] + 9 + 2 * k))
    while ex: ex.pop(0)()


def attn_advance(a):
    for r in (R_KAD, R_VA0, R_VA1):
        a('v_add_u32 v%d, 0x%x, v%d' % (r, 8 * TS_, r))


def attention_fast(a):
    a('ds_read_b128 %s, v%d' % (vr(R_K, 4), R_KAD))
    a('ds_read_b128 %s, v%d offset:%d' % (vr(R_K + 4, 4), R_KAD, TS_))
    a('ds_read_b128 %s, v%d' % (vr(R_V0, 4), R_VA0))
    for k in range(16): a('v_mov_b32 v%d, 0' % (R_O + k))
    for k in range(4): a('v_mov_b32 v%d, 0' % (R_P1 + k))
    for k in range(4): a('v_mov_b32 v%d, 0' % (R_V1 + 4 + k))
    a('s_waitcnt lgkmcnt(2)')
    a('v_mfma_f32_32x32x16_bf16 %s, %s, %s, 0' % (vr(R_S0, 16), vr(R_K, 4), vr(R_Q, 4)))
    a.fence(12)
    for u in range(8): attn_tile(a, u)
    attn_advance(a)
    stamp(a, 15)
    a('s_waitcnt vmcnt(0)')
    a('s_barrier')
    stamp(a, 16)
    a('s_mov_b32 s62, 2')
    a('s_mov_b32 s3, 0x%x' % WS_F2)
    a.raw('.p2align 6')
    a.label('L_attn_a')
    a('buffer_load_dwordx4 %s, v2, %s, s3 offen sc1' % (vr(R_WO, 4), srd(S_WS)))
    for u in range(8): attn_tile(a, u)
    attn_advance(a)
    a('s_sub_u32 s62, s62, 1')
    a('s_cmp_lg_u32 s62, 0')
    a('s_cbranch_scc1 L_attn_a')
    poll256(a, WS_F2, R_WO, first_loaded=True)
    L = prefetch_list(a)
    per = [L[(len(L) * u) // 8:(len(L) * (u + 1)) // 8] for u in range(8)]
    a.fence(2)
    for u in range(8): attn_tile(a, u, per[u])
    attn_advance(a)
    a('s_mov_b32 s62, 4')
    a.raw('.p2align 6')
    a.label('L_attn_b')
    for u in range(8): attn_tile(a, u)
    attn_advance(a)
    a('s_sub_u32 s62, s62, 1')
    a('s_cmp_lg_u32 s62, 0')
    a('s_cbranch_scc1 L_attn_b')
    a('s_waitcnt lgkmcnt(0)')
    a('v_mfma_f32_32x32x16_bf16 %s, %s, %s, %s' % (vr(R_O, 16), vr(R_V1 + 4, 4), vr(R_P1, 4), vr(R_O, 16)))


def attention_slow(a):
    Q, O, P = R_Q, R_O, R_P0
    S = R_S0; K = R_K; V = R_V0
    M, MN, AL, T = R_S1, R_S1 + 1, R_S1 + 2, R_S1 + 3
    a('s_waitcnt vmcnt(0)')
    a('s_barrier')
    for k in range(16): a('v_mov_b32 v%d, 0' % (O + k))
    a('v_mov_b32 v%d, 0xff7fffff' % M)
    a('s_mov_b32 s62, 64')
    a.fence(4)
    a.label('L_attn_slow')
    a('ds_read_b128 %s, v%d' % (vr(K, 4), R_KAD))
    a('ds_read_b128 %s, v%d' % (vr(V, 4), R_VA0))
    a('ds_read_b128 %s, v%d' % (vr(V + 4, 4), R_VA1))
    for r in (R_KAD, R_VA0, R_VA1):
        a('v_add_u32 v%d, 0x%x, v%d' % (r, TS_, r))
    a('s_waitcnt lgkmcnt(0)')
    a('v_mfma_f32_32x32x16_bf16 %s, %s, %s, 0' % (vr(S, 16), vr(K, 4), vr(Q, 4)))
    a('v_max_f32 v%d, v%d, v%d' % (MN, S, S + 1))
    for k in range(2, 16, 2):
        a('v_max3_f32 v%d, v%d, v%d, v%d' % (MN, MN, S + k, S + k + 1))
    a('v_mov_b32 v%d, v%d' % (T, MN))
    a('v_permlane32_swap_b32 v%d, v%d' % (MN, T))
    a('v_max3_f32 v%d, v%d, v%d, v%d' % (MN, MN, T, M))
    a('v_sub_f32 v%d, v%d, v%d' % (AL, M, MN))
    a('v_exp_f32 v%d, v%d' % (AL, AL))
    a('v_mov_b32 v%d, v%d' % (M, MN))
    for k in range(16):
        a('v_sub_f32 v%d, v%d, v%d' % (S + k, S + k, MN))
    for k in range(16):
        a('v_exp_f32 v%d, v%d' % (S + k, S + k))
    for k in range(16):
        a('v_mul_f32 v%d, v%d, v%d' % (O + k, O + k, AL))
    for k in range(8):
        a('v_cvt_pk_bf16_f32 v%d, v%d, v%d' % (P + k, S + 2 * k, S + 2 * k + 1))
    a('v_mfma_f32_32x32x16_bf16 %s, %s, %s, %s' % (vr(O, 16), vr(V, 4), vr(P, 4), vr(O, 16)))
    a('v_mfma_f32_32x32x16_bf16 %s, %s, %s, %s' % (vr(O, 16), vr(V + 4, 4), vr(P + 4, 4), vr(O, 16)))
    a('s_sub_u32 s62, s62, 1')
    a('s_cmp_lg_u32 s62, 0')
    a('s_nop 7'); a('s_nop 7')
    a('s_cbranch_scc1 L_attn_slow')
    poll256(a, WS_F2, R_WO)
    for f in prefetch_list(a): f()


def phase2(a, force_slow=False):
    QD = 32
    a('ds_read_b128 %s, v9' % vr(48, 4))
    a('ds_read_b128 %s, v9 offset:1024' % vr(52, 4))
    a('v_and_b32 v8, 7, v1')
    a('v_lshlrev_b32 v8, 2, v8')
    a('s_lshl_b32 s3, s%d, 5' % S_RB)
    a('s_add_u32 s3, s3, 0x%x' % WS_F1)
    a('buffer_load_dword v12, v8, %s, s3 offen sc1' % srd(S_WS))
    a('v_lshlrev_b32 v8, 3, v1')
    a('s_mov_b32 s3, 0x%x' % WS_KMAX)
    a('buffer_load_dwordx2 v[10:11], v8, %s, s3 offen sc1' % srd(S_WS))
    a('s_lshl_b32 s3, s%d, 11' % S_W)
    a('s_mul_i32 s43, s%d, %d' % (S_W, TS_))
    a('s_add_u32 s43, s43, %d' % KVB)
    for i in range(8):
        a('s_mov_b32 m0, s43')
        a('s_add_u32 s43, s43, %d' % (8 * TS_))
        a('buffer_load_dwordx4 v2, %s, s3 offen sc1 lds' % srd(S_WS))
        a('buffer_load_dwordx4 v2, %s, s3 offen offset:1024 sc1 lds' % srd(S_WS))
        if i < 7: a('s_add_u32 s3, s3, 16384')
    a('v_mov_b32 v16, 0x3f803f80')
    for k in range(1, 4): a('v_mov_b32 v%d, v16' % (16 + k))
    a('s_movk_i32 s3, %d' % TS_)
    a('v_mul_lo_u32 v20, v1, s3')
    a('v_add_u32 v20, %d, v20' % (KVB + 2048))
    a('ds_write_b128 v20, v[16:19]')
    a('v_lshrrev_b32 v8, 5, v1')
    a('v_and_b32 v9, 15, v1')
    a('v_lshl_add_u32 v8, v8, 4, v9')
    a('v_lshlrev_b32 v8, 4, v8')
    a('v_add_u32 v8, %d, v8' % (KVB + 1024))
    a('v_add_u32 v9, 512, v8')
    a('v_and_b32 v13, 16, v1')
    a('v_cmp_eq_u32 vcc, 0, v13')
    a('v_mov_b32 v13, %d' % (KVB + 2048))
    a('v_cndmask_b32 v%d, v13, v8, vcc' % R_VA0)
    a('v_cndmask_b32 v%d, v13, v9, vcc' % R_VA1)
    a('v_add_u32 v%d, %d, v2' % (R_KAD, KVB))
    a('v_and_b32 v13, 31, v1')
    a('v_lshrrev_b32 v14, 5, v1')
    a('v_lshlrev_b32 v13, 10, v13')
    a('v_lshl_add_u32 v%d, v14, 4, v13' % R_ROW)
    a('s_mov_b32 s3, 0x%x' % f2u(0.25 * LOG2E))
    a('s_waitcnt lgkmcnt(1)')
    for k in range(8):
        a('v_add_f32 v%d, v%d, v%d' % (QD + k, QD + k, 48 + k))
    for k in range(8):
        a('v_mul_f32 v%d, s3, v%d' % (QD + k, QD + k))
    for k in range(4):
        a('v_cvt_pk_bf16_f32 v%d, v%d, v%d' % (R_Q + k, QD + 2 * k, QD + 2 * k + 1))
    a('v_dot2_f32_bf16 v14, v%d, v%d, 0' % (R_Q, R_Q))
    for k in range(1, 4): a('v_dot2_f32_bf16 v14, v%d, v%d, v14' % (R_Q + k, R_Q + k))
    a('s_waitcnt vmcnt(16)')
    stamp(a, 13)
    a('v_cmp_ne_u32 vcc, s%d, v12' % S_F1V)
    a('s_cmp_eq_u64 vcc, 0')
    a('s_cselect_b32 s%d, 1, 0' % S_FAST)
    a('v_max_f32 v10, v10, v11')
    a('v_mov_b32 v11, v10')
    a('v_permlane32_swap_b32 v10, v11')
    a('v_max_f32 v10, v10, v11')
    a('v_mov_b32 v11, v10')
    a('v_permlane16_swap_b32 v10, v11')
    a('v_max_f32 v10, v10, v11')
    for sh in (8, 4, 2, 1):
        a('v_max_f32_dpp v10, v10, v10 row_ror:%d row_mask:0xf bank_mask:0xf' % sh)
    a('v_mov_b32 v13, v14')
    a('v_permlane32_swap_b32 v14, v13')
    a('v_add_f32 v14, v14, v13')
    a('v_mul_f32 v14, v14, v10')
    a('s_mov_b32 s3, 0x%x' % f2u(-1.0 if force_slow else LIMIT2))
    a('v_cmp_nle_f32 vcc, v14, s3')
    a('s_waitcnt vmcnt(12) lgkmcnt(0)')
    stamp(a, 14)
    a('s_barrier')
    a('s_cmp_lg_u32 s%d, 0' % S_W)
    a('s_cbranch_scc1 L_f2_done')
    a('s_lshl_b32 s3, s2, 2')
    a('s_add_u32 s3, s3, 0x%x' % WS_F2)
    flag_store(a, 's3', S_TAG, ' sc1', 8)
    a.label('L_f2_done')
    a('s_cbranch_vccnz L_attn_fb')
    attention_fast(a)
    a('s_branch L_attn_fin')
    a.label('L_attn_fb')
    a.fence(4)
    attention_slow(a)
    a.label('L_attn_fin')
    a.fence(12)
    stamp(a, 17)
    O = R_O
    a('v_rcp_f32 v8, v%d' % (O + 8))
    for k in range(8): a('v_mul_f32 v%d, v%d, v8' % (O + k, O + k))
    for k in range(4): a('v_cvt_pk_bf16_f32 v%d, v%d, v%d' % (O + k, O + 2 * k, O + 2 * k + 1))
    G.q_frag_off(a, WS_O, 's48', 's49', 's50', 's3')
    both(a, lambda m: a('buffer_store_dwordx4 %s, v2, %s, s3 offen%s' % (vr(O, 4), srd(S_WS), m)))
    a('s_lshl_b32 s3, s%d, 1' % S_RB)
    a('s_add_u32 s3, s3, s49')
    a('s_lshl_b32 s3, s3, 3')
    a('s_add_u32 s3, s3, s%d' % S_J)
    a('s_lshl_b32 s3, s3, 1')
    a('s_add_u32 s3, s3, s50')
    a('s_lshl_b32 s3, s3, 1')
    a('s_add_u32 s3, s3, s48')
    a('s_lshl_b32 s3, s3, 2')
    a('s_add_u32 s3, s3, 0x%x' % WS_F3)
    a('s_waitcnt vmcnt(0)')
    both(a, lambda m: flag_store(a, 's3', S_TAG, m, 8))
    stamp(a, 18)


def colsum(a, ks_list, regf, first):
    for ks in ks_list:
        for k in range(4):
            c = 80 + k
            a('v_dot2_f32_bf16 v%d, v%d, s44, %s' % (c, regf(ks) + k, '0' if (first and ks == ks_list[0]) else 'v%d' % c))


def w1reg(ks):
    return R_W1 + 4 * ks if ks < 24 else 192 + 4 * (ks - 24)


def phase3(a):
    A, B = R_WO, 8
    D = [40, 64]
    a('s_and_b32 s48, s%d, 1' % S_W)
    a('s_lshr_b32 s49, s%d, 1' % S_W)
    a('s_mov_b32 s44, 0x3f803f80')
    a('s_cmp_eq_u32 s%d, 7' % S_W)
    a('s_cbranch_scc1 L_cs_skip')
    colsum(a, list(range(24)), w1reg, True)
    a.label('L_cs_skip')
    a('s_lshl_b32 s3, s%d, 1' % S_RB)
    a('s_add_u32 s3, s3, s48')
    a('s_lshl_b32 s50, s3, 5')
    a('s_lshl_b32 s3, s49, 3')
    a('s_add_u32 s3, s3, s50')
    a('s_lshl_b32 s18, s3, 10')
    a('s_add_u32 s18, s18, 0x%x' % WS_O)
    a('s_lshl_b32 s3, s3, 2')
    a('s_add_u32 s3, s3, 0x%x' % WS_F3)
    poll8(a, 's3', 72)
    stamp(a, 19)
    for s in range(8):
        if s == 4: a('s_add_u32 s18, s18, 4096')
        a('buffer_load_dwordx4 %s, v2, %s, s18 offen offset:%d sc1' % (vr(B + 4 * s, 4), srd(S_WS), (s % 4) * 1024))
    for s in range(8):
        a('s_waitcnt vmcnt(%d)' % (7 - s))
        for nt in range(2):
            a('v_mfma_f32_32x32x16_bf16 %s, %s, %s, %s' % (vr(D[nt], 16), vr(A + 32 * nt + 4 * s, 4), vr(B + 4 * s, 4),
                                                          '0' if s == 0 else vr(D[nt], 16)))
    stamp(a, 20)
    a('s_barrier')
    a('s_lshl_b32 s3, s48, 15')
    a('s_lshl_b32 s43, s49, 11')
    a('s_add_u32 s3, s3, s43')
    a('v_add_u32 v84, s3, v2')
    a.fence(8)
    for q in range(4):
        r = D[q // 2] + 8 * (q % 2)
        a('s_cmp_eq_u32 s49, %d' % q)
        a('s_cbranch_scc1 L_o_skip%d' % q)
        a('ds_write_b128 v84, %s offset:%d' % (vr(r, 4), q * 8192))
        a('ds_write_b128 v84, %s offset:%d' % (vr(r + 4, 4), q * 8192 + 1024))
        a('s_branch L_o_nxt%d' % q)
        a.label('L_o_skip%d' % q)
        for k in range(8): a('v_mov_b32 v%d, v%d' % (56 + k, r + k))
        a.label('L_o_nxt%d' % q)
    a('s_waitcnt lgkmcnt(0)')
    a('s_barrier')
    a('s_lshl_b32 s3, s48, 15')
    a('s_lshl_b32 s43, s49, 13')
    a('s_add_u32 s3, s3, s43')
    for d in range(1, 4):
        a('s_add_u32 s43, s49, %d' % d)
        a('s_and_b32 s43, s43, 3')
        a('s_lshl_b32 s43, s43, 11')
        a('s_add_u32 s43, s43, s3')
        a('v_add_u32 v%d, s43, v2' % (83 + d))
        a('ds_read_b128 %s, v%d' % (vr(8 + 8 * (d - 1), 4), 83 + d))
        a('ds_read_b128 %s, v%d offset:1024' % (vr(12 + 8 * (d - 1), 4), 83 + d))
    X = R_XRES
    a('v_permlane32_swap_b32 v%d, v%d' % (X, X + 2))
    a('v_permlane32_swap_b32 v%d, v%d' % (X + 1, X + 3))
    for k in range(4):
        a('v_lshlrev_b32 v%d, 16, v%d' % (32 + 2 * k, X + k))
        a('v_and_b32 v%d, 0xffff0000, v%d' % (33 + 2 * k, X + k))
    a('s_waitcnt lgkmcnt(0)')
    for k in range(8):
        a('v_add_f32 v%d, v%d, v%d' % (56 + k, 56 + k, 8 + k))
        a('v_add_f32 v%d, v%d, v%d' % (16 + k, 16 + k, 24 + k))
    for k in range(8):
        a('v_add_f32 v%d, v%d, v%d' % (56 + k, 56 + k, 16 + k))
    for k in range(8):
        a('v_add_f32 v%d, v%d, v%d' % (56 + k, 56 + k, 32 + k))
    for k in range(4):
        a('v_cvt_pk_bf16_f32 v%d, v%d, v%d' % (4 + k, 56 + 2 * k, 57 + 2 * k))
    a('s_lshl_b32 s3, s%d, 2' % S_J)
    a('s_add_u32 s3, s3, s49')
    a('s_add_u32 s3, s3, s50')
    a('s_lshl_b32 s3, s3, 10')
    a('s_add_u32 s3, s3, 0x%x' % WS_H)
    both(a, lambda m: a('buffer_store_dwordx4 v[4:7], v2, %s, s3 offen%s' % (srd(S_WS), m)))
    a('s_lshl_b32 s3, s%d, 3' % S_RB)
    a('s_add_u32 s3, s3, s%d' % S_J)
    a('s_lshl_b32 s3, s3, 3')
    a('s_add_u32 s3, s3, s%d' % S_W)
    a('s_lshl_b32 s3, s3, 2')
    a('s_add_u32 s3, s3, 0x%x' % WS_F4)
    a('s_waitcnt vmcnt(0)')
    both(a, lambda m: flag_store(a, 's3', S_TAG, m, 72))
    stamp(a, 21)


L_H, L_ACT, L_ST, L_CS = 65536, 131072, 159744, 160256


def phase45(a):
    D1 = 32
    BB = 8
    a('s_lshl_b32 s3, s%d, 3' % S_RB)
    a('s_add_u32 s3, s3, s%d' % S_W)
    a('s_lshl_b32 s3, s3, 5')
    a('s_add_u32 s3, s3, 0x%x' % WS_F4)
    poll8(a, 's3', 72)
    stamp(a, 22)
    a('s_lshl_b32 s43, s%d, 16' % S_RB)
    a('s_lshl_b32 s3, s%d, 12' % S_W)
    a('s_add_u32 s43, s43, s3')
    a('s_add_u32 s43, s43, 0x%x' % WS_H)
    a('s_add_u32 s3, s3, %d' % L_H)
    for mt in range(2):
        a('s_mov_b32 m0, s3')
        a('s_nop 0')
        for k in range(4):
            a('buffer_load_dwordx4 v2, %s, s43 offen offset:%d sc1 lds' % (srd(S_WS), k * 1024))
        if mt == 0:
            a('s_add_u32 s3, s3, 32768'); a('s_add_u32 s43, s43, 32768')
    w2_base(a, 's55')
    a('s_add_u32 s56, s55, %d' % (112 * 1024))
    a('s_cmp_eq_u32 s%d, 7' % S_W)
    a('s_cbranch_scc1 L_g1_stats')
    a('s_add_u32 s54, s54, %d' % (24 * 1024))
    for ks in range(24, 32):
        if ks == 28: a('s_add_u32 s54, s54, 4096')
        a('buffer_load_dwordx4 %s, v2, %s, s54 offen offset:%d sc1' % (vr(w1reg(ks), 4), srd(S_WS), (ks % 4) * 1024))
    a('s_mul_i32 s48, s%d, 7' % S_J)
    a('s_add_u32 s48, s48, s%d' % S_W)
    a('v_lshrrev_b32 v3, 5, v1')
    a('v_lshlrev_b32 v3, 3, v3')
    a('s_lshl_b32 s50, s48, 6')
    for q in range(4):
        a('buffer_load_dwordx2 %s, v3, %s, s50 offen offset:%d' % (vr(64 + 2 * q, 2), srd(S_B1), 16 * q))
    def w2load(q):
        nt, s = q // 14, q % 14
        base = 's55' if nt == 0 else 's56'
        hi = (s // 4) * 4096
        if hi:
            a('s_add_u32 s57, %s, %d' % (base, hi)); base = 's57'
        a('buffer_load_dwordx4 %s, v2, %s, %s offen offset:%d sc1' % (vr(w2_slot_reg(q), 4), srd(S_WS), base, (s % 4) * 1024))
    for q in range(8): w2load(q)
    a('s_waitcnt vmcnt(20)')
    stamp(a, 23)
    a('s_barrier')
    seq = [(ks, mt) for ks in range(32) for mt in range(2)]
    NB = 6
    def bload(i):
        ks, mt = seq[i]
        a('ds_read_b128 %s, v92 offset:%d' % (vr(BB + 4 * (i % NB), 4), (mt * 32 + ks) * 1024))
    a('v_add_u32 v92, %d, v2' % L_H)
    PF = 5
    for i in range(PF): bload(i)
    nw2 = 0
    for i, (ks, mt) in enumerate(seq):
        if i + PF < len(seq): bload(i + PF)
        rem = min(len(seq), i + PF + 1) - (i + 1)
        if ks == 24 and mt == 0:
            a('s_waitcnt vmcnt(%d) lgkmcnt(%d)' % (12 + nw2, rem))
        else:
            a('s_waitcnt lgkmcnt(%d)' % rem)
        a('v_mfma_f32_32x32x16_bf16 %s, %s, %s, %s' % (vr(D1 + 16 * mt, 16), vr(w1reg(ks), 4), vr(BB + 4 * (i % NB), 4),
                                                      '0' if ks == 0 else vr(D1 + 16 * mt, 16)))
        if mt == 1 and 1 <= ks <= 20:
            w2load(8 + ks - 1); nw2 += 1
        if mt == 1 and ks >= 25:
            colsum(a, [ks - 1], w1reg, False)
    colsum(a, [31], w1reg, False)
    a('v_add_f32 v80, v80, v81')
    a('v_add_f32 v82, v82, v83')
    a('v_add_f32 v80, v80, v82')
    a('v_mov_b32 v81, v80')
    a('v_permlane32_swap_b32 v80, v81')
    a('v_add_f32 v80, v80, v81')
    a('s_lshl_b32 s3, s%d, 7' % S_W)
    a('s_add_u32 s3, s3, %d' % L_CS)
    a('v_and_b32 v93, 31, v1')
    a('v_lshlrev_b32 v93, 2, v93')
    a('v_add_u32 v93, s3, v93')
    a('ds_write_b32 v93, v80')
    a('v_lshrrev_b32 v93, 5, v1')
    a('v_lshlrev_b32 v93, 4, v93')
    a('v_add_u32 v93, s3, v93')
    a('s_waitcnt lgkmcnt(0)')
    for q in range(4):
        a('ds_read_b128 %s, v93 offset:%d' % (vr(72 + 4 * q, 4), 32 * q))
    a('s_branch L_g1_epi')
    a.label('L_g1_stats')
    a.fence(4)
    for q in range(8): w2load(q)
    a('s_waitcnt vmcnt(8)')
    a('s_barrier')
    a('v_add_u32 v92, %d, v2' % L_H)
    for mt in range(2):
        SA, QA = 64 + 8 * mt, 68 + 8 * mt
        for ks0 in range(0, 32, 4):
            for u in range(4):
                a('ds_read_b128 %s, v92 offset:%d' % (vr(BB + 4 * u, 4), (mt * 32 + ks0 + u) * 1024))
            for u in range(4):
                a('s_waitcnt lgkmcnt(%d)' % (3 - u))
                for k in range(4):
                    first = (ks0 == 0 and u == 0)
                    a('v_dot2_f32_bf16 v%d, v%d, s44, %s' % (SA + k, BB + 4 * u + k, '0' if first else 'v%d' % (SA + k)))
                    a('v_dot2_f32_bf16 v%d, v%d, v%d, %s' % (QA + k, BB + 4 * u + k, BB + 4 * u + k, '0' if first else 'v%d' % (QA + k)))
        for base in (SA, QA):
            a('v_add_f32 v%d, v%d, v%d' % (base, base, base + 1))
            a('v_add_f32 v%d, v%d, v%d' % (base + 2, base + 2, base + 3))
            a('v_add_f32 v%d, v%d, v%d' % (base, base, base + 2))
    for (x, y) in ((64, 72), (68, 76)):
        a('v_permlane32_swap_b32 v%d, v%d' % (x, y))
        a('v_add_f32 v%d, v%d, v%d' % (x, x, y))
    a('s_mov_b32 s45, 0x%x' % f2u(1.0 / 512))
    a('s_mov_b32 s46, 0x%x' % f2u(1e-5))
    a('v_mul_f32 v64, s45, v64')
    a('v_mul_f32 v65, v64, v64')
    a('v_fma_f32 v68, v68, s45, -v65')
    a('v_add_f32 v68, s46, v68')
    a('v_rsq_f32 v68, v68')
    a('s_mov_b32 s45, 0x%x' % f2u(LOG2E))
    a('v_mul_f32 v68, s45, v68')
    a('v_mul_f32_e64 v69, -v64, v68')
    a('v_lshlrev_b32 v93, 3, v1')
    a('v_add_u32 v93, %d, v93' % L_ST)
    a('ds_write_b64 v93, v[68:69]')
    if OPT.get('wb'):
        if OPT['wb'] == 1:
            a('s_cmp_ge_u32 s2, 8')
            a('s_cbranch_scc1 L_g1_epi')
        a('buffer_wbl2 sc1')
    a.label('L_g1_epi')
    a.fence(12)
    stamp(a, 24)
    a('s_waitcnt lgkmcnt(0)')
    a('s_barrier')
    a('s_cmp_eq_u32 s%d, 7' % S_W)
    a('s_cbranch_scc1 L_g1_done')
    a('v_and_b32 v88, 31, v1')
    a('v_lshlrev_b32 v88, 3, v88')
    a('v_add_u32 v88, %d, v88' % L_ST)
    a('ds_read_b64 v[90:91], v88 offset:256')
    a('ds_read_b64 v[88:89], v88')
    a('s_waitcnt vmcnt(28)')
    for q in range(4):
        for e in range(2):
            a('v_lshlrev_b32 v%d, 16, v%d' % (8 + 4 * q + 2 * e, 64 + 2 * q + e))
            a('v_and_b32 v%d, 0xffff0000, v%d' % (8 + 4 * q + 2 * e + 1, 64 + 2 * q + e))
    a('s_mov_b32 s58, 0x%x' % f2u(LOG2E))
    a('s_mov_b32 s59, s58')
    for k in range(8):
        a('v_pk_mul_f32 v[%d:%d], v[%d:%d], s[58:59]' % (8 + 2 * k, 9 + 2 * k, 8 + 2 * k, 9 + 2 * k))
    a('s_lshl_b32 s3, s%d, 11' % S_W)
    a('s_add_u32 s3, s3, %d' % L_ACT)
    a('v_add_u32 v92, s3, v2')
    a('s_mov_b32 s60, 0.5'); a('s_mov_b32 s61, 0.5')
    a('s_waitcnt lgkmcnt(0)')
    P2 = lambda r: 'v[%d:%d]' % (r, r + 1)
    for mt in range(2):
        RS = 88 + 2 * mt
        for g in range(0, 16, 8):
            d = D1 + 16 * mt + g
            T, U = 24, 64
            for k in range(4):
                a('v_pk_fma_f32 %s, %s, %s, %s op_sel:[0,1,0] op_sel_hi:[1,1,1]' % (P2(T + 2 * k), P2(72 + g + 2 * k), P2(RS), P2(8 + g + 2 * k)))
            for k in range(4):
                a('v_pk_fma_f32 %s, %s, %s, %s op_sel:[0,0,0] op_sel_hi:[1,0,1]' % (P2(d + 2 * k), P2(d + 2 * k), P2(RS), P2(T + 2 * k)))
            for k in range(8): a('v_exp_f32 v%d, v%d' % (T + k, d + k))
            for k in range(4):
                a('v_pk_fma_f32 %s, %s, s[60:61], 1.0 op_sel_hi:[1,1,0]' % (P2(U + 2 * k), P2(T + 2 * k)))
            for k in range(4):
                a('v_pk_fma_f32 %s, %s, %s, 1.0 op_sel_hi:[1,1,0]' % (P2(U + 2 * k), P2(T + 2 * k), P2(U + 2 * k)))
            for k in range(8): a('v_rcp_f32 v%d, v%d' % (U + k, U + k))
            for k in range(4):
                a('v_pk_fma_f32 %s, %s, %s, %s neg_lo:[1,0,0] neg_hi:[1,0,0]' % (P2(d + 2 * k), P2(d + 2 * k), P2(U + 2 * k), P2(d + 2 * k)))
            for k in range(4):
                a('v_cvt_pk_bf16_f32 v%d, v%d, v%d' % (T + k, d + 2 * k, d + 2 * k + 1))
            a('ds_write_b128 v92, %s offset:%d' % (vr(T, 4), mt * 14 * 1024 + (g // 8) * 1024))
    a.label('L_g1_done')
    a.fence(4)
    stamp(a, 25)
    a('s_waitcnt vmcnt(0) lgkmcnt(0)')
    a('s_barrier')
    stamp(a, 26)
    D2, B2 = 8, 72
    seq = [(s, mt) for s in range(14) for mt in range(2)]
    def bload2(i):
        s, mt = seq[i]
        a('ds_read_b128 %s, v3 offset:%d' % (vr(B2 + 4 * (i % NB), 4), (mt * 14 + s) * 1024))
    a('v_add_u32 v3, %d, v2' % L_ACT)
    for i in range(PF): bload2(i)
    for i, (s, mt) in enumerate(seq):
        if i + PF < len(seq): bload2(i + PF)
        rem = min(len(seq), i + PF + 1) - (i + 1)
        a('s_waitcnt lgkmcnt(%d)' % rem)
        for nt in range(2):
            acc = D2 + 16 * (2 * nt + mt)
            a('v_mfma_f32_32x32x16_bf16 %s, %s, %s, %s' % (vr(acc, 16), vr(w2_slot_reg(nt * 14 + s), 4), vr(B2 + 4 * (i % NB), 4),
                                                          '0' if s == 0 else vr(acc, 16)))
    stamp(a, 27)
    a('s_lshl_b32 s3, s%d, 3' % S_RB)
    a('s_add_u32 s3, s3, s%d' % S_W)
    a('s_lshl_b32 s3, s3, 3')
    a('s_add_u32 s3, s3, s%d' % S_J)
    a('s_lshl_b32 s18, s3, 2')
    a('s_add_u32 s18, s18, 0x%x' % WS_F5)
    a('s_lshl_b32 s3, s3, 13')
    a('s_add_u32 s3, s3, 0x%x' % WS_P)
    a('s_add_u32 s43, s3, 4096')
    a.fence(8)
    for nt in range(2):
        for mt in range(2):
            acc = D2 + 16 * (2 * nt + mt)
            for k in range(8):
                a('v_cvt_pk_bf16_f32 v%d, v%d, v%d' % (acc + k, acc + 2 * k, acc + 2 * k + 1))
    def pst(m):
        for nt in range(2):
            for mt in range(2):
                acc = D2 + 16 * (2 * nt + mt)
                for hf in range(2):
                    a('buffer_store_dwordx4 %s, v2, %s, %s offen offset:%d%s' % (vr(acc + 4 * hf, 4), srd(S_WS), 's3' if nt == 0 else 's43',
                                                                              (mt * 2 + hf) * 1024, m))
    if OPT.get('psc1'):
        pst(' sc1')
    elif OPT.get('pnt'):
        both(a, lambda m: pst(m + ' nt'))
    else:
        both(a, pst)
    a('s_waitcnt vmcnt(0)')
    both(a, lambda m: flag_store(a, 's18', S_TAG, m, 72))
    stamp(a, 28)


def phase6(a):
    a('s_lshl_b32 s3, s%d, 3' % S_RB)
    a('s_add_u32 s3, s3, s%d' % S_J)
    a('s_lshl_b32 s18, s3, 16')
    a('s_lshl_b32 s3, s3, 5')
    a('s_add_u32 s3, s3, 0x%x' % WS_F5)
    a('s_lshr_b32 s48, s%d, 2' % S_W)
    a('s_lshl_b32 s48, s48, 2')
    a('s_and_b32 s49, s%d, 1' % S_W)
    a('s_lshl_b32 s49, s49, 1')
    a('s_bfe_u32 s50, s%d, 0x10001' % S_W)
    a('s_add_u32 s48, s48, s49')
    a('s_add_u32 s48, s48, s50')
    a('s_lshl_b32 s48, s48, 10')
    a('s_add_u32 s18, s18, s48')
    a('s_add_u32 s18, s18, 0x%x' % WS_P)
    poll8(a, 's3', 72)
    stamp(a, 29)
    for src in range(8):
        a('buffer_load_dwordx4 %s, v2, %s, s18 offen sc1' % (vr(16 + 4 * src, 4), srd(S_WS)))
        if src < 7: a('s_add_u32 s18, s18, 8192')
    for k in range(4):
        a('v_lshlrev_b32 v%d, 16, v%d' % (64 + 2 * k, 4 + k))
        a('v_and_b32 v%d, 0xffff0000, v%d' % (65 + 2 * k, 4 + k))
    for src in range(8):
        a('s_waitcnt vmcnt(%d)' % (7 - src))
        t = 48 if src == 0 else 56
        for k in range(4):
            r = 16 + 4 * src + k
            a('v_lshlrev_b32 v%d, 16, v%d' % (t + 2 * k, r))
            a('v_and_b32 v%d, 0xffff0000, v%d' % (t + 1 + 2 * k, r))
        if src:
            for k in range(4): a('v_pk_add_f32 v[%d:%d], v[%d:%d], v[%d:%d]' % (48 + 2 * k, 49 + 2 * k, 48 + 2 * k, 49 + 2 * k, 56 + 2 * k, 57 + 2 * k))
    a('s_mov_b32 s3, 0x%x' % f2u(1.0 / LOG2E))
    for k in range(8): a('v_fma_f32 v%d, v%d, s3, v%d' % (48 + k, 48 + k, 64 + k))
    for k in range(4): a('v_cvt_pk_bf16_f32 v%d, v%d, v%d' % (8 + k, 48 + 2 * k, 49 + 2 * k))
    a('v_permlane32_swap_b32 v8, v10')
    a('v_permlane32_swap_b32 v9, v11')
    a('v_and_b32 v13, 31, v1')
    a('v_lshrrev_b32 v14, 5, v1')
    a('v_lshlrev_b32 v13, 10, v13')
    a('v_lshl_add_u32 v13, v14, 4, v13')
    a('buffer_store_dwordx4 v[8:11], v13, %s, s53 offen%s' % (srd(S_OUT), ' sc1' if OPT.get('osc1') else (' sc0 sc1' if OPT.get('osc01') else '')))
    a('s_cmp_lg_u32 s2, 0')
    a('s_cbranch_scc1 L_ep_done')
    a('s_cmp_lg_u32 s%d, 0' % S_W)
    a('s_cbranch_scc1 L_ep_done')
    a('s_mov_b32 s3, 0x%x' % WS_EPOCH)
    flag_store(a, 's3', S_E1, ' sc1', 72)
    a.label('L_ep_done')


def gen_fused(force_slow=False):
    n = NAME + '_kernel'
    text = HEADER + '; @launch grid=(256,1,1) block=(512,1,1) lds=163840\n'
    text += '.amdgcn_target "amdgcn-amd-amdhsa--gfx950"\n.text\n'
    a = Asm()
    end = 'L_end'
    setup(a, end)
    if STAMPS: a('v_mov_b32 v%d, 0' % STAMP_V)
    stamp(a, 0)
    phase1(a)
    phase2(a, force_slow)
    phase3(a)
    phase45(a)
    phase6(a)
    if STAMPS:
        a('s_waitcnt vmcnt(0)')
        stamp(a, 31)
        stamp_flush(a)
    a('s_waitcnt vmcnt(0)')
    a.label(end)
    a('s_endpgm')
    text += G.kernel_wrap(n, a.text())
    text += '.section .rodata,"a"\n.p2align 6\n' + G.desc(n)
    return text


if __name__ == '__main__':
    out = sys.argv[1] if len(sys.argv) > 1 else 'cdna_kernels/%s.s' % NAME
    for t in sys.argv[2:]:
        if '=' in t:
            k, v = t.split('='); OPT[k] = int(v)
        else:
            OPT[t] = 1
    STAMPS = 'stamps' in OPT
    t = gen_fused(force_slow='slow' in OPT)
    open(out, 'w').write(t)
    print('wrote', out, len(t))
```

```python
import sys, os
sys.path.insert(0, os.path.dirname(__file__))
from asmlib import Asm
import gen as G
from gen import (NAME, f2u, srd, vr, mk_srd, ln_stats, ln_apply, LOG2E, LIMIT2,
                 S_X, S_WQ, S_WKV, S_B1, S_OUT, S_WS, S_J, S_RB, S_W,
                 WS_KMAX, WS_WO, WS_W1, WS_W2, WS_O, WS_H, WS_P, WS_STAMP, WS_SIZE, HEADER)

WS_F1 = 0x30000
WS_F2 = 0x30400
WS_F3 = 0x31000
WS_F4 = 0x33000
WS_F5 = 0x35000
WS_EPOCH = 0x37000
S_TAG, S_FAST, S_E1, S_F1V = 100, 101, 16, 17
OPT = {}
STAMPS = False
STAMP_V = 0
SPIN = 1 << 17
_uid = [0]


def uid(p):
    _uid[0] += 1
    return '%s_%d' % (p, _uid[0])


def stamp(a, idx):
    if not STAMPS: return
    a('s_waitcnt lgkmcnt(0)')
    a('s_memtime s[96:97]')
    a('s_memrealtime s[98:99]')
    a('s_waitcnt lgkmcnt(0)')
    a('v_writelane_b32 v%d, s96, %d' % (STAMP_V, idx))
    a('v_writelane_b32 v%d, s98, %d' % (STAMP_V, idx + 32))


def stamp_flush_dbg(a):
    sel = [(0, 1), (0, 0), (12, 0), (16, 0), (17, 0), (21, 0), (23, 0), (24, 0), (26, 0), (27, 0), (28, 0), (29, 0), (31, 0), (31, 1), (4, 0), (9, 0)]
    for i, (idx, neg) in enumerate(sel):
        a('v_readlane_b32 s3, v%d, %d' % (STAMP_V, idx + 32))
        if neg: a('s_not_b32 s3, s3')
        a('s_nop 3')
        a('v_writelane_b32 v4, s3, %d' % i)
    a('v_lshlrev_b32 v3, 2, v1')
    a('s_mov_b64 exec, 0xffff')
    a('global_atomic_umax v3, v4, s[22:23]')
    a('s_mov_b64 exec, -1')


def stamp_flush(a):
    if not STAMPS: return
    if OPT.get('dbg'):
        stamp_flush_dbg(a); return
    a('s_lshl_b32 s3, s2, 11')
    a('s_lshl_b32 s43, s%d, 8' % S_W)
    a('s_add_u32 s3, s3, s43')
    a('s_add_u32 s3, s3, 0x%x' % WS_STAMP)
    a('v_lshlrev_b32 v3, 2, v1')
    a('buffer_store_dword v%d, v3, %s, s3 offen' % (STAMP_V, srd(S_WS)))


def both(a, fn):
    if OPT.get('nofast'):
        fn(' sc1'); return
    ls, ld = uid('L_sl'), uid('L_dn')
    a('s_cmp_eq_u32 s%d, 0' % S_FAST)
    a('s_cbranch_scc1 %s' % ls)
    fn('')
    a('s_branch %s' % ld)
    a.label(ls)
    fn(' sc1')
    a.label(ld)


def flag_store(a, soff, val, mod, vt):
    a('v_mov_b32 v%d, s%d' % (vt, val))
    a('s_mov_b64 exec, 1')
    a('buffer_store_dword v%d, off, %s, %s%s' % (vt, srd(S_WS), soff, mod))
    a('s_mov_b64 exec, -1')


def poll8(a, soff, vt, sleep=True):
    l, d = uid('L_poll'), uid('L_pd')
    a('v_and_b32 v%d, 7, v1' % (vt + 1))
    a('v_lshlrev_b32 v%d, 2, v%d' % (vt + 1, vt + 1))
    a('s_mov_b32 s43, %d' % SPIN)
    a.label(l)
    a('buffer_load_dword v%d, v%d, %s, %s offen sc1' % (vt, vt + 1, srd(S_WS), soff))
    a('s_waitcnt vmcnt(0)')
    a('v_cmp_ne_u32 vcc, s%d, v%d' % (S_TAG, vt))
    a('s_cbranch_vccz %s' % d)
    a('s_sub_u32 s43, s43, 1')
    a('s_cmp_lg_u32 s43, 0')
    a('s_cbranch_scc1 %s' % l)
    a.label(d)


def check256(a, vt):
    for k in range(4):
        a('v_xor_b32 v%d, s%d, v%d' % (vt + k, S_TAG, vt + k))
    a('v_or3_b32 v%d, v%d, v%d, v%d' % (vt, vt, vt + 1, vt + 2))
    a('v_or_b32 v%d, v%d, v%d' % (vt, vt, vt + 3))
    a('v_cmp_le_u32 vcc, 16, v%d' % vt)


def poll256(a, base, vt, first_loaded=False):
    l, d, c = uid('L_poll'), uid('L_pd'), uid('L_pc')
    a('s_mov_b32 s43, %d' % SPIN)
    a('s_mov_b32 s3, 0x%x' % base)
    if first_loaded:
        a('s_branch %s' % c)
    a.label(l)
    a('buffer_load_dwordx4 %s, v2, %s, s3 offen sc1' % (vr(vt, 4), srd(S_WS)))
    a.label(c)
    a('s_waitcnt vmcnt(0)')
    check256(a, vt)
    a('s_cbranch_vccz %s' % d)
    a('s_sub_u32 s43, s43, 1')
    a('s_cmp_lg_u32 s43, 0')
    a('s_sleep %d' % OPT.get('slp', 2))
    a('s_cbranch_scc1 %s' % l)
    a.label(d)


def setup(a, endlabel):
    a('s_cmp_ge_u32 s2, 256')
    a('s_cbranch_scc1 %s' % endlabel)
    a('s_load_dwordx16 s[64:79], s[0:1], 0')
    a('s_load_dwordx8 s[80:87], s[0:1], 64')
    a('v_lshrrev_b32 v2, 6, v0')
    a('v_and_b32 v1, 63, v0')
    a('v_readfirstlane_b32 s%d, v2' % S_W)
    a('v_lshlrev_b32 v2, 4, v1')
    a('s_lshr_b32 s%d, s2, 3' % S_J)
    a('s_and_b32 s%d, s%d, 7' % (S_J, S_J))
    a('s_and_b32 s%d, s2, 7' % S_RB)
    a('s_lshl_b32 s%d, s%d, 2' % (S_RB, S_RB))
    a('s_lshr_b32 s3, s2, 6')
    a('s_add_u32 s%d, s%d, s3' % (S_RB, S_RB))
    a('s_getreg_b32 s%d, hwreg(HW_REG_XCC_ID, 0, 4)' % S_F1V)
    a('s_waitcnt lgkmcnt(0)')
    a('s_load_dword s%d, s[86:87], 0x%x' % (S_E1, WS_EPOCH))
    if OPT.get('dbg'):
        a('s_mov_b32 s22, s84'); a('s_mov_b32 s23, s85')
    mk_srd(a, S_X, 64, 2048 * 512 * 2)
    a('s_bitcmp1_b32 s%d, 0' % S_J)
    a('s_cselect_b32 s%d, s70, s68' % S_WKV)
    a('s_cselect_b32 s%d, s71, s69' % (S_WKV + 1))
    a('s_mov_b32 s%d, 0x%x' % (S_WKV + 2, 512 * 16 * 2))
    a('s_mov_b32 s%d, 0x20000' % (S_WKV + 3))
    mk_srd(a, S_WQ, 66, 512 * 512 * 2)
    mk_srd(a, S_WS, 86, WS_SIZE)
    mk_srd(a, S_B1, 78, 1792 * 2)
    mk_srd(a, S_OUT, 82, 2048 * 512 * 2)


L_WKV, L_X, L_WQ = 0, 32768, 98304
TS_ = 2064
KVB = 16256
L_QX = 0
L_BC = 16128
L_TBA, L_TBB = 148480, 4096
CTRL = 7


def tb_setup(a):
    a('s_cmp_lt_u32 s2, 112')
    a('s_cbranch_scc1 L_tb_w1')
    a('s_cmp_lt_u32 s2, 224')
    a('s_cbranch_scc1 L_tb_w2')
    a('s_sub_u32 s3, s2, 224')
    a('s_mov_b32 s52, s72'); a('s_mov_b32 s53, s73'); a('s_mov_b32 s54, 0x%x' % (512 * 512 * 2))
    a('s_mov_b32 s56, 1024')
    a('s_and_b32 s60, s3, 3'); a('s_lshr_b32 s61, s3, 2')
    a('s_mov_b32 s59, %d' % (32 * 1024))
    a('s_mov_b32 s62, 0x%x' % WS_WO)
    a('s_branch L_tb_go')
    a.label('L_tb_w1')
    a('s_mov_b32 s52, s76'); a('s_mov_b32 s53, s77'); a('s_mov_b32 s54, 0x%x' % (512 * 1792 * 2))
    a('s_mov_b32 s56, 3584')
    a('s_and_b32 s60, s2, 3'); a('s_lshr_b32 s61, s2, 2')
    a('s_mov_b32 s59, %d' % (32 * 1024))
    a('s_mov_b32 s62, 0x%x' % WS_W1)
    a('s_branch L_tb_go')
    a.label('L_tb_w2')
    a('s_sub_u32 s3, s2, 112')
    a('s_mov_b32 s52, s80'); a('s_mov_b32 s53, s81'); a('s_mov_b32 s54, 0x%x' % (1792 * 512 * 2))
    a('s_mov_b32 s56, 1024')
    a('s_lshr_b32 s60, s3, 3'); a('s_and_b32 s61, s3, 7')
    a('s_mov_b32 s59, %d' % (112 * 1024))
    a('s_mov_b32 s62, 0x%x' % WS_W2)
    a.label('L_tb_go')
    a('s_mov_b32 s55, 0x20000')
    a('s_lshl_b32 s3, s60, 7')
    a('s_lshl_b32 s43, s%d, 4' % S_W)
    a('s_add_u32 s3, s3, s43')
    a('s_mul_i32 s57, s3, s56')
    a('s_lshl_b32 s3, s61, 7')
    a('s_add_u32 s57, s57, s3')
    a('s_lshl_b32 s3, s61, 1')
    a('s_mul_i32 s58, s3, s59')
    a('s_add_u32 s58, s58, s62')
    a('s_lshl_b32 s3, s60, 3')
    a('s_add_u32 s3, s3, s%d' % S_W)
    a('s_lshl_b32 s3, s3, 10')
    a('s_add_u32 s58, s58, s3')
    a('s_lshl_b32 s60, s%d, 11' % S_W)
    a('s_cmp_lt_u32 s%d, 4' % S_W)
    a('s_mov_b32 s3, %d' % L_TBA)
    a('s_cselect_b32 s3, s3, 0x%x' % ((L_TBB - 4 * 2048) & 0xffffffff))
    a('s_add_u32 s60, s60, s3')


def swz_off(a, vr_, vp):
    a('v_lshrrev_b32 v%d, 3, v1' % vr_)
    a('v_and_b32 v%d, 7, v1' % vp)
    a('v_lshlrev_b32 v%d, 1, v%d' % (vp + 1, vr_))
    a('v_and_b32 v%d, 4, v%d' % (vp + 1, vp + 1))
    a('v_xor_b32 v%d, v%d, v%d' % (vp, vp, vp + 1))
    a('v_lshlrev_b32 v%d, 4, v%d' % (vp, vp))


def phase1(a):
    XR, XQ = 32, 40
    TS, TQ, TT = 8, 16, 24
    QR = [90, 91, 92, 93, 94, 95, 63]
    a('s_lshr_b32 s47, s%d, 1' % S_J)
    a('s_lshl_b32 s47, s47, 4')
    a('s_lshl_b32 s88, s%d, 1' % S_W)
    a('s_add_u32 s88, s88, s47')
    a('s_add_u32 s89, s88, 1')
    a('s_lshl_b32 s48, s%d, 16' % S_RB)
    def xload(sr, v):
        a('s_lshl_b32 s43, s%d, 10' % sr)
        a('s_add_u32 s43, s43, s48')
        a('buffer_load_dwordx4 %s, v2, %s, s43 offen' % (vr(v, 4), srd(S_X)))
    xload(88, XR); xload(89, XR + 4)
    a('s_lshl_b32 s43, s%d, 11' % S_W)
    a('s_mov_b32 m0, s43')
    a('s_mul_i32 s3, s%d, 7' % S_W)
    a('buffer_load_dwordx4 v2, %s, s43 offen lds' % srd(S_WKV))
    a('buffer_load_dwordx4 v2, %s, s43 offen offset:1024 lds' % srd(S_WKV))
    a('s_cmp_eq_u32 s%d, %d' % (S_W, CTRL))
    a('s_cbranch_scc1 L_p1_noq')
    for t in range(7):
        r = QR[t]
        a('s_add_u32 s%d, s3, %d' % (r, t))
        if t == 6: a('s_min_u32 s%d, s%d, 47' % (r, r))
        a('s_add_u32 s43, s%d, 16' % r)
        a('s_cmp_lt_u32 s%d, s47' % r)
        a('s_cselect_b32 s%d, s%d, s43' % (r, r))
        xload(r, XQ + 4 * t)
    a.label('L_p1_noq')
    a('s_mov_b32 s44, 0x3f803f80')
    a('s_mov_b32 s45, 0x%x' % f2u(1.0 / 512))
    a('s_mov_b32 s46, 0x%x' % f2u(1e-5))
    tb_setup(a)
    swz_off(a, 3, 4)
    a('v_lshl_add_u32 v5, v3, 10, v4')
    stamp(a, 1)
    a('s_cmp_eq_u32 s%d, %d' % (S_W, CTRL))
    a('s_cbranch_scc1 L_p1_w7')
    a('s_waitcnt vmcnt(9) lgkmcnt(0)')
    a('s_branch L_p1_w')
    a.label('L_p1_w7')
    a('s_waitcnt vmcnt(2) lgkmcnt(0)')
    a.label('L_p1_w')
    a('s_mul_i32 s%d, s%d, 0x9E3779B1' % (S_TAG, S_E1))
    a('s_add_u32 s%d, s%d, 0x7F4A7C15' % (S_TAG, S_TAG))
    a('s_and_b32 s%d, s%d, 0xFFFFFFF0' % (S_TAG, S_TAG))
    a('s_or_b32 s%d, s%d, s%d' % (S_F1V, S_F1V, S_TAG))
    a('s_add_u32 s%d, s%d, 1' % (S_E1, S_E1))
    stamp(a, 2)
    SB = 72
    ln_stats(a, [XR, XR + 4], TS, TQ, SB)
    def xstore(sr, v):
        a('s_lshl_b32 s3, s%d, 10' % sr)
        a('s_and_b32 s43, s%d, 15' % sr)
        a('s_lshl_b32 s43, s43, 4')
        a('s_add_u32 s3, s3, s43')
        a('s_add_u32 s3, s3, %d' % L_X)
        a('v_xor_b32 v7, s3, v2')
        a('ds_write_b128 v7, %s' % vr(v, 4))
    for i in range(2):
        ln_apply(a, XR + 4 * i, SB + 2 * i, TT)
        xstore(88 + i, XR + 4 * i)
    a('s_cmp_eq_u32 s%d, %d' % (S_W, CTRL))
    a('s_cbranch_scc1 L_p1_w7b')
    a('s_waitcnt vmcnt(7) lgkmcnt(0)')
    stamp(a, 3)
    a('s_barrier')
    stamp(a, 4)
    a('s_lshl_b32 s49, s%d, 13' % S_W)
    a('s_lshl_b32 s43, s%d, 7' % S_J)
    a('s_add_u32 s49, s49, s43')
    a('s_lshl_b32 s50, s%d, 10' % S_W)
    a('s_add_u32 s50, s50, %d' % L_WQ)
    nq = [0]
    def wq(n=1):
        for _ in range(n):
            a('s_mov_b32 m0, s50')
            a('s_add_u32 s50, s50, %d' % (7 * 1024))
            a('buffer_load_dwordx4 v5, %s, s49 offen lds' % srd(S_WQ))
            a('s_add_u32 s49, s49, %d' % (7 * 8192))
            nq[0] += 1
    wq(2)
    a('s_waitcnt vmcnt(5)')
    rows = [XQ + 4 * t for t in range(7)]
    ln_stats(a, rows[0:4], TS, TQ, SB)
    wq(2)
    for t in range(4):
        ln_apply(a, rows[t], SB + 2 * t, TT)
        xstore(QR[t], rows[t])
        if t % 2 == 1: wq(1)
    a('s_waitcnt vmcnt(6)')
    ln_stats(a, [rows[4], rows[5], rows[6], rows[3]], TS, TQ, SB)
    wq(2)
    for t in range(4, 7):
        ln_apply(a, rows[t], SB + 2 * (t - 4), TT)
        xstore(QR[t], rows[t])
        if t == 4: wq(1)
    assert nq[0] == 9
    a('s_cmp_lg_u32 s%d, 0' % S_W)
    a('s_cbranch_scc1 L_p1_wq9')
    wq(1)
    a.label('L_p1_wq9')
    stamp(a, 7)
    a('s_waitcnt vmcnt(0) lgkmcnt(0)')
    stamp(a, 8)
    a('s_barrier')
    stamp(a, 9)
    a('s_cmp_ge_u32 s%d, 4' % S_W)
    a('s_cbranch_scc1 L_q_done')
    a('s_and_b32 s48, s%d, 1' % S_W)
    a('s_lshr_b32 s49, s%d, 1' % S_W)
    a('v_lshrrev_b32 v8, 5, v1')
    a('v_bfe_u32 v9, v1, 4, 1')
    a('v_bfe_u32 v10, v1, 2, 2')
    a('v_and_b32 v11, 3, v1')
    a('v_lshrrev_b32 v12, 1, v11')
    a('v_lshl_add_u32 v12, v9, 1, v12')
    a('v_lshrrev_b32 v13, 1, v10')
    a('v_lshlrev_b32 v13, 2, v13')
    a('v_xor_b32 v12, v12, v13')
    a('v_lshlrev_b32 v12, 4, v12')
    a('v_and_b32 v11, 1, v11')
    a('v_lshl_add_u32 v12, v11, 3, v12')
    a('v_lshl_add_u32 v13, v8, 3, v10')
    a('v_lshl_add_u32 v13, v13, 7, v12')
    a('s_lshl_b32 s43, s48, 6')
    a('v_xor_b32 v13, s43, v13')
    a('v_add_u32 v13, %d, v13' % L_WQ)
    a('v_and_b32 v16, 31, v1')
    a('v_and_b32 v17, 15, v1')
    a('v_xor_b32 v17, v17, v8')
    a('v_lshlrev_b32 v17, 4, v17')
    a('v_lshl_add_u32 v17, v16, 10, v17')
    a('s_lshl_b32 s3, s49, 15')
    a('s_add_u32 s3, s3, %d' % L_X)
    a('v_add_u32 v24, s3, v17')
    for q in range(1, 8):
        a('v_xor_b32 v%d, %d, v24' % (24 + q, 32 * q))
    QA, QB, QD, NR, PF = 64, 128, 32, 8, 4
    def qload(s):
        a('ds_read_b64_tr_b16 %s, v13 offset:%d' % (vr(QA + 4 * (s % NR), 2), 2048 * s))
        a('ds_read_b64_tr_b16 %s, v13 offset:%d' % (vr(QA + 4 * (s % NR) + 2, 2), 2048 * s + 512))
        a('ds_read_b128 %s, v%d offset:%d' % (vr(QB + 4 * (s % NR), 4), 24 + s % 8, (s // 8) * 256))
    for s in range(PF): qload(s)
    for s in range(32):
        if s + PF < 32: qload(s + PF)
        rem = min(32, s + PF + 1) - (s + 1)
        a('s_waitcnt lgkmcnt(%d)' % min(15, 3 * rem))
        a('v_mfma_f32_32x32x16_bf16 %s, %s, %s, %s' % (vr(QD, 16), vr(QA + 4 * (s % NR), 4), vr(QB + 4 * (s % NR), 4), '0' if s == 0 else vr(QD, 16)))
    a('s_mov_b32 s3, 0x%x' % f2u(0.25 * LOG2E))
    a('s_lshl_b32 s43, s%d, 10' % S_W)
    a('v_add_u32 v8, s43, v2')
    a.fence(12)
    for k in range(16):
        a('v_mul_f32 v%d, s3, v%d' % (QD + k, QD + k))
    for k in range(4):
        a('v_cvt_pk_bf16_f32 v%d, v%d, v%d' % (8 + 4 + k, QD + 8 + 2 * k, QD + 9 + 2 * k))
    a('ds_write_b128 v8, v[12:15] offset:%d' % L_QX)
    for k in range(4):
        a('v_cvt_pk_bf16_f32 v%d, v%d, v%d' % (R_Q + k, QD + 2 * k, QD + 2 * k + 1))
    a.label('L_q_done')
    a('s_waitcnt lgkmcnt(0)')
    stamp(a, 11)
    a('s_barrier')
    a('s_branch L_p1_end')
    a.label('L_p1_w7b')
    a.fence(4)
    a('s_waitcnt vmcnt(0) lgkmcnt(0)')
    stamp(a, 3)
    a('s_barrier')
    stamp(a, 4)
    KW, KX = 64, 128
    a('v_lshrrev_b32 v8, 4, v1')
    a('v_and_b32 v9, 15, v1')
    a('v_lshlrev_b32 v10, 8, v8')
    a('v_lshl_add_u32 v10, v9, 3, v10')
    a('v_xor_b32 v11, v8, v9')
    a('v_lshlrev_b32 v11, 4, v11')
    a('v_add_u32 v12, s47, v9')
    a('v_lshlrev_b32 v12, 10, v12')
    a('v_add_u32 v12, %d, v12' % L_X)
    a('v_add_u32 v12, v12, v11')
    a('v_xor_b32 v13, 64, v12')
    a('v_xor_b32 v14, 0x80, v12')
    a('v_xor_b32 v15, 0xc0, v12')
    def kvload(ks):
        a('ds_read_b64_tr_b16 %s, v10 offset:%d' % (vr(KW + 4 * ks, 2), 1024 * ks))
        a('ds_read_b64_tr_b16 %s, v10 offset:%d' % (vr(KW + 4 * ks + 2, 2), 1024 * ks + 128))
        a('ds_read_b128 %s, v%d offset:%d' % (vr(KX + 4 * ks, 4), 12 + ks % 4, (ks // 4) * 256))
    for ks in range(4): kvload(ks)
    a('s_bitcmp1_b32 s%d, 0' % S_J)
    a('s_cbranch_scc1 L_kv_v')
    for var in (0, 1):
        if var: a.label('L_kv_v'); a.fence(4)
        for ks in range(16):
            if ks + 4 < 16: kvload(ks + 4)
            a('s_waitcnt lgkmcnt(%d)' % (3 * (min(16, ks + 5) - (ks + 1))))
            acc = 16 + 4 * (ks % 2)
            A, B = (KW + 4 * ks, KX + 4 * ks) if var == 0 else (KX + 4 * ks, KW + 4 * ks)
            a('v_mfma_f32_16x16x32_bf16 %s, %s, %s, %s' % (vr(acc, 4), vr(A, 4), vr(B, 4), '0' if ks < 2 else vr(acc, 4)))
        for k in range(4):
            a('v_add_f32 v%d, v%d, v%d' % (16 + k, 16 + k, 20 + k))
        a('v_cvt_pk_bf16_f32 v16, v16, v17')
        a('v_cvt_pk_bf16_f32 v17, v18, v19')
        a('v_and_b32 v18, 1, v8')
        a('v_lshlrev_b32 v18, %d, v18' % (9 if var == 0 else 8))
        a('v_lshl_add_u32 v18, v9, 4, v18')
        a('v_lshrrev_b32 v19, 1, v8')
        a('v_lshl_add_u32 v18, v19, 3, v18')
        a('s_lshl_b32 s3, s%d, 1' % S_RB)
        a('s_lshr_b32 s43, s47, 5')
        a('s_add_u32 s3, s3, s43')
        a('s_lshl_b32 s3, s3, 11')
        a('s_and_b32 s43, s47, 16')
        if var == 0:
            a('s_lshl_b32 s43, s43, 4')
        else:
            a('s_lshl_b32 s43, s43, 5')
            a('s_add_u32 s43, s43, 1024')
        a('s_add_u32 s3, s3, s43')
        a('buffer_store_dwordx2 v[16:17], v18, %s, s3 offen sc1' % srd(S_WS))
        if var == 0:
            a('v_dot2_f32_bf16 v20, v16, v16, 0')
            a('v_dot2_f32_bf16 v20, v17, v17, v20')
            a('v_mov_b32 v21, v20')
            a('v_permlane32_swap_b32 v20, v21')
            a('v_add_f32 v20, v20, v21')
            a('v_mov_b32 v21, v20')
            a('v_permlane16_swap_b32 v20, v21')
            a('v_add_f32 v20, v20, v21')
            for sh in (8, 4, 2, 1):
                a('v_max_f32_dpp v20, v20, v20 row_ror:%d row_mask:0xf bank_mask:0xf' % sh)
            a('s_lshl_b32 s3, s%d, 2' % S_RB)
            a('s_lshr_b32 s43, s%d, 1' % S_J)
            a('s_add_u32 s3, s3, s43')
            a('s_lshl_b32 s3, s3, 2')
            a('s_add_u32 s3, s3, 0x%x' % WS_KMAX)
            a('s_mov_b64 exec, 1')
            a('buffer_store_dword v20, off, %s, s3 sc1' % srd(S_WS))
            a('s_mov_b64 exec, -1')
            a('s_branch L_kv_done')
    a.label('L_kv_done')
    a.fence(4)
    stamp(a, 5)
    a('s_lshl_b32 s3, s%d, 3' % S_RB)
    a('s_add_u32 s3, s3, s%d' % S_J)
    a('s_lshl_b32 s3, s3, 2')
    a('s_add_u32 s3, s3, 0x%x' % WS_F1)
    a('s_waitcnt vmcnt(0)')
    stamp(a, 6)
    flag_store(a, 's3', S_F1V, ' sc1', 8)
    a('s_barrier')
    stamp(a, 8)
    poll256(a, WS_F1, 56)
    stamp(a, 7)
    a('v_and_b32 v8, 7, v1')
    a('v_lshlrev_b32 v8, 2, v8')
    a('s_lshl_b32 s3, s%d, 5' % S_RB)
    a('s_add_u32 s3, s3, 0x%x' % WS_F1)
    a('buffer_load_dword v12, v8, %s, s3 offen sc1' % srd(S_WS))
    a('v_lshlrev_b32 v8, 3, v1')
    a('s_mov_b32 s3, 0x%x' % WS_KMAX)
    a('buffer_load_dwordx2 v[10:11], v8, %s, s3 offen sc1' % srd(S_WS))
    a('s_mov_b32 s3, 0')
    a('s_mov_b32 s43, %d' % KVB)
    for t in range(8):
        a('s_mov_b32 m0, s43')
        a('s_add_u32 s43, s43, %d' % TS_)
        a('buffer_load_dwordx4 v2, %s, s3 offen sc1 lds' % srd(S_WS))
        a('buffer_load_dwordx4 v2, %s, s3 offen offset:1024 sc1 lds' % srd(S_WS))
        if t < 7: a('s_add_u32 s3, s3, 2048')
    a('s_waitcnt vmcnt(16)')
    a('v_cmp_ne_u32 vcc, s%d, v12' % S_F1V)
    a('s_cmp_eq_u64 vcc, 0')
    a('s_cselect_b32 s3, 1, 0')
    a('v_max_f32 v10, v10, v11')
    a('v_mov_b32 v11, v10')
    a('v_permlane32_swap_b32 v10, v11')
    a('v_max_f32 v10, v10, v11')
    a('v_mov_b32 v11, v10')
    a('v_permlane16_swap_b32 v10, v11')
    a('v_max_f32 v10, v10, v11')
    for sh in (8, 4, 2, 1):
        a('v_max_f32_dpp v10, v10, v10 row_ror:%d row_mask:0xf bank_mask:0xf' % sh)
    a('v_mov_b32 v11, s3')
    a('v_mov_b32 v12, 0')
    a('v_mov_b32 v13, 0')
    a('v_mov_b32 v8, %d' % L_BC)
    a('s_mov_b64 exec, 1')
    a('ds_write_b128 v8, v[10:13]')
    a('ds_write_b32 v8, v12 offset:16')
    a('s_mov_b64 exec, -1')
    a('s_waitcnt vmcnt(0) lgkmcnt(0)')
    stamp(a, 11)
    a('s_barrier')
    a.label('L_p1_end')
    a.fence(4)
    stamp(a, 12)


R_Q, R_S0, R_S1, R_O, R_P0, R_P1 = 4, 8, 24, 40, 56, 60
R_V0, R_V1, R_K = 64, 72, 80
R_KAD, R_VA0, R_VA1, R_ROW, R_XRES = 88, 3, 89, 90, 92
R_WO, R_W1 = 192, 96


def prefetch_list(a):
    L = []
    def wo_addr():
        a('s_lshr_b32 s51, s%d, 1' % S_W)
        a('s_lshl_b32 s51, s51, 3')
        a('s_lshl_b32 s52, s%d, 6' % S_J)
        a('s_add_u32 s51, s51, s52')
        a('s_lshl_b32 s51, s51, 10')
        a('s_add_u32 s51, s51, 0x%x' % WS_WO)
        a('s_add_u32 s52, s51, %d' % (32 * 1024))
    def wo(nt, s):
        def f():
            if nt == 0 and s == 0: wo_addr()
            if s == 4: a('s_add_u32 s%d, s%d, 4096' % (51 + nt, 51 + nt))
            a('buffer_load_dwordx4 %s, v2, %s, s%d offen offset:%d sc1' % (vr(R_WO + 32 * nt + 4 * s, 4), srd(S_WS), 51 + nt, (s % 4) * 1024))
        return f
    for s in range(8):
        for nt in range(2): L.append(wo(nt, s))
    def xres():
        a('s_and_b32 s3, s%d, 1' % S_W)
        a('s_lshl_b32 s43, s%d, 1' % S_RB)
        a('s_add_u32 s3, s3, s43')
        a('s_lshl_b32 s3, s3, 15')
        a('s_lshl_b32 s43, s%d, 7' % S_J)
        a('s_add_u32 s3, s3, s43')
        a('s_lshr_b32 s43, s%d, 1' % S_W)
        a('s_lshl_b32 s43, s43, 5')
        a('s_add_u32 s53, s3, s43')
        a('buffer_load_dwordx4 %s, v%d, %s, s53 offen' % (vr(R_XRES, 4), R_ROW, srd(S_X)))
    L.append(xres)
    def w1_addr():
        a('s_mul_i32 s54, s%d, 7' % S_J)
        a('s_add_u32 s54, s54, s%d' % S_W)
        a('s_lshl_b32 s54, s54, 15')
        a('s_add_u32 s54, s54, 0x%x' % WS_W1)
        w2_base(a, 's55')
        a('s_add_u32 s56, s55, %d' % (8 * 1024))
        a('s_cmp_eq_u32 s%d, 7' % S_W)
        a('s_cselect_b32 s57, s56, s54')
        a('s_cselect_b32 s58, %d, 0' % ((112 - 14) * 1024))
    def w1(i):
        def f():
            if i == 0: w1_addr()
            if i < 6:
                if i == 4: a('s_add_u32 s57, s57, 4096')
                off = (i % 4) * 1024
            else:
                if i == 6:
                    a('s_add_u32 s57, s57, 2048'); a('s_add_u32 s57, s57, s58')
                elif (i - 6) % 4 == 0:
                    a('s_add_u32 s57, s57, 4096')
                off = ((i - 6) % 4) * 1024
            a('buffer_load_dwordx4 %s, v2, %s, s57 offen offset:%d sc1' % (vr(R_W1 + 4 * i, 4), srd(S_WS), off))
        return f
    for i in range(24): L.append(w1(i))
    return L


def w2_base(a, dst):
    a('s_mul_i32 %s, s%d, %d' % (dst, S_J, 2 * 112))
    a('s_mul_i32 s43, s%d, 14' % S_W)
    a('s_add_u32 %s, %s, s43' % (dst, dst))
    a('s_lshl_b32 %s, %s, 10' % (dst, dst))
    a('s_add_u32 %s, %s, 0x%x' % (dst, dst, WS_W2))


def w2_slot_reg(q):
    return 224 + 4 * q if q < 8 else 96 + 4 * (q - 8)


def attn_tile(a, u, extra=()):
    c, n = u % 2, (u + 1) % 2
    S = [R_S0, R_S1]
    K = lambda b: R_K + 4 * b
    V0 = lambda b: R_V0 + 4 * b
    V1 = lambda b: R_V1 + 4 * b
    ex = list(extra)
    def E(k): a('v_exp_f32 v%d, v%d' % (S[c] + k, S[c] + k))
    def X():
        if ex: ex.pop(0)()
    a('s_waitcnt lgkmcnt(0)')
    if OPT.get('sched', 1) == 0:
        E(0)
        a('ds_read_b128 %s, v%d offset:%d' % (vr(K(c), 4), R_KAD, (u + 2) * TS_))
        E(1)
        a('ds_read_b128 %s, v%d offset:%d' % (vr(V0(n), 4), R_VA0, (u + 1) * TS_))
        E(2)
        a('ds_read_b128 %s, v%d offset:%d' % (vr(V1(c), 4), R_VA1, u * TS_))
        E(3)
        a('v_mfma_f32_32x32x16_bf16 %s, %s, %s, 0' % (vr(S[n], 16), vr(K(n), 4), vr(R_Q, 4)))
        E(4); X(); E(5); X(); E(6); X(); E(7)
        for k in range(4): a('v_cvt_pk_bf16_f32 v%d, v%d, v%d' % (R_P0 + k, S[c] + 2 * k, S[c] + 2 * k + 1))
        a('v_mfma_f32_32x32x16_bf16 %s, %s, %s, %s' % (vr(R_O, 16), vr(V1(n), 4), vr(R_P1, 4), vr(R_O, 16)))
        E(8); X(); E(9); X(); E(10); X(); E(11)
        a('v_mfma_f32_32x32x16_bf16 %s, %s, %s, %s' % (vr(R_O, 16), vr(V0(c), 4), vr(R_P0, 4), vr(R_O, 16)))
        for k in range(12, 16): E(k)
        for k in range(4): a('v_cvt_pk_bf16_f32 v%d, v%d, v%d' % (R_P1 + k, S[c] + 8 + 2 * k, S[c] + 9 + 2 * k))
    else:
        a('v_mfma_f32_32x32x16_bf16 %s, %s, %s, 0' % (vr(S[n], 16), vr(K(n), 4), vr(R_Q, 4)))
        a('ds_read_b128 %s, v%d offset:%d' % (vr(K(c), 4), R_KAD, (u + 2) * TS_))
        a('ds_read_b128 %s, v%d offset:%d' % (vr(V0(n), 4), R_VA0, (u + 1) * TS_))
        a('ds_read_b128 %s, v%d offset:%d' % (vr(V1(c), 4), R_VA1, u * TS_))
        E(0); E(1); X(); E(2); E(3); X(); E(4); E(5); X(); E(6); E(7)
        a('v_mfma_f32_32x32x16_bf16 %s, %s, %s, %s' % (vr(R_O, 16), vr(V1(n), 4), vr(R_P1, 4), vr(R_O, 16)))
        for k in range(4): a('v_cvt_pk_bf16_f32 v%d, v%d, v%d' % (R_P0 + k, S[c] + 2 * k, S[c] + 2 * k + 1))
        E(8); X(); E(9); X(); E(10); X(); E(11)
        a('v_mfma_f32_32x32x16_bf16 %s, %s, %s, %s' % (vr(R_O, 16), vr(V0(c), 4), vr(R_P0, 4), vr(R_O, 16)))
        for k in range(12, 16): E(k)
        for k in range(4): a('v_cvt_pk_bf16_f32 v%d, v%d, v%d' % (R_P1 + k, S[c] + 8 + 2 * k, S[c] + 9 + 2 * k))
    while ex: ex.pop(0)()


def attn_advance(a):
    for r in (R_KAD, R_VA0, R_VA1):
        a('v_add_u32 v%d, 0x%x, v%d' % (r, 8 * TS_, r))


def early_dma_list(a):
    L = []
    def kv(i):
        def f():
            a('s_mov_b32 m0, s19')
            a('s_add_u32 s19, s19, %d' % (8 * TS_))
            a('buffer_load_dwordx4 v2, %s, s18 offen sc1 lds' % srd(S_WS))
            a('buffer_load_dwordx4 v2, %s, s18 offen offset:1024 sc1 lds' % srd(S_WS))
            a('s_add_u32 s18, s18, 16384')
        return f
    for i in range(1, 8): L.append(kv(i))
    def tb(k):
        def f():
            a('s_mov_b32 m0, s60')
            a('s_add_u32 s60, s60, 1024')
            a('buffer_load_dwordx4 v99, s[52:55], s57 offen lds')
            if k == 0:
                a('s_lshl_b32 s61, s56, 3')
                a('s_add_u32 s57, s57, s61')
        return f
    L += [tb(0), tb(1)]
    return L


def tb_read_list(a):
    def rd(nt):
        def f():
            a('ds_read_b64_tr_b16 %s, v%d' % (vr(104 + 4 * nt, 2), 100 + nt))
            a('ds_read_b64_tr_b16 %s, v%d offset:1024' % (vr(106 + 4 * nt, 2), 100 + nt))
        return f
    return [rd(0), rd(1)]


def tb_store_list(a):
    def st(nt):
        def f():
            a('buffer_store_dwordx4 %s, v2, %s, s58 offen sc1' % (vr(104 + 4 * nt, 4), srd(S_WS)))
            if nt == 0: a('s_add_u32 s58, s58, s59')
        return f
    return [st(0), st(1)]


def f2_publish(a):
    sk = uid('L_f2')
    a('s_cmp_lg_u32 s%d, %d' % (S_W, CTRL))
    a('s_cbranch_scc1 %s' % sk)
    a('s_lshl_b32 s18, s2, 2')
    a('s_add_u32 s18, s18, 0x%x' % WS_F2)
    flag_store(a, 's18', S_TAG, ' sc1', 96)
    a.label(sk)


def attention_fast(a):
    a('ds_read_b128 %s, v%d' % (vr(R_K, 4), R_KAD))
    a('ds_read_b128 %s, v%d offset:%d' % (vr(R_K + 4, 4), R_KAD, TS_))
    a('ds_read_b128 %s, v%d' % (vr(R_V0, 4), R_VA0))
    for k in range(16): a('v_mov_b32 v%d, 0' % (R_O + k))
    for k in range(4): a('v_mov_b32 v%d, 0' % (R_P1 + k))
    for k in range(4): a('v_mov_b32 v%d, 0' % (R_V1 + 4 + k))
    a('s_waitcnt lgkmcnt(2)')
    a('v_mfma_f32_32x32x16_bf16 %s, %s, %s, 0' % (vr(R_S0, 16), vr(R_K, 4), vr(R_Q, 4)))
    a.fence(12)
    E = early_dma_list(a)
    tbw = lambda: a('s_waitcnt vmcnt(8)')
    ex0 = [[E[0], E[7]], [E[8], E[1]], [E[2]], [E[3]], [E[4]], [tbw] + tb_read_list(a), tb_store_list(a) + [E[5]], [E[6]]]
    for u in range(8):
        if u == 6:
            stamp(a, 15)
            a('s_barrier')
            stamp(a, 16)
        attn_tile(a, u, ex0[u])
    attn_advance(a)
    for u in range(8):
        if u == 6:
            a('s_waitcnt vmcnt(0)')
            a('s_barrier')
            f2_publish(a)
            stamp(a, 13)
        attn_tile(a, u)
    attn_advance(a)
    a('s_mov_b32 s62, 6')
    a('s_mov_b32 s3, 0x%x' % WS_F2)
    a.raw('.p2align 6')
    a.label('L_attn_a')
    a('buffer_load_dwordx4 %s, v2, %s, s3 offen sc1' % (vr(R_WO, 4), srd(S_WS)))
    for u in range(8): attn_tile(a, u)
    attn_advance(a)
    a('s_sub_u32 s62, s62, 1')
    stamp(a, 10)
    a('s_waitcnt vmcnt(0)')
    check256(a, R_WO)
    a('s_cbranch_vccz L_attn_p')
    a('s_cmp_gt_u32 s62, %d' % OPT.get('lim', 3))
    a('s_cbranch_scc1 L_attn_a')
    poll256(a, WS_F2, R_WO)
    a.label('L_attn_p')
    stamp(a, 30)
    L = prefetch_list(a)
    per = [L[(len(L) * u) // 8:(len(L) * (u + 1)) // 8] for u in range(8)]
    a.fence(2)
    for u in range(8): attn_tile(a, u, per[u])
    attn_advance(a)
    a('s_sub_u32 s62, s62, 1')
    a.raw('.p2align 6')
    a.label('L_attn_b')
    for u in range(8): attn_tile(a, u)
    attn_advance(a)
    a('s_sub_u32 s62, s62, 1')
    a('s_cmp_lg_u32 s62, 0')
    a('s_cbranch_scc1 L_attn_b')
    a('s_waitcnt lgkmcnt(0)')
    a('v_mfma_f32_32x32x16_bf16 %s, %s, %s, %s' % (vr(R_O, 16), vr(R_V1 + 4, 4), vr(R_P1, 4), vr(R_O, 16)))


def attention_slow(a):
    Q, O, P = R_Q, R_O, R_P0
    S = R_S0; K = R_K; V = R_V0
    M, MN, AL, T = R_S1, R_S1 + 1, R_S1 + 2, R_S1 + 3
    for f in early_dma_list(a): f()
    a('s_waitcnt vmcnt(0)')
    for f in tb_read_list(a): f()
    a('s_waitcnt lgkmcnt(0)')
    for f in tb_store_list(a): f()
    a('s_barrier')
    a('s_waitcnt vmcnt(0)')
    a('s_barrier')
    f2_publish(a)
    for k in range(16): a('v_mov_b32 v%d, 0' % (O + k))
    a('v_mov_b32 v%d, 0xff7fffff' % M)
    a('s_mov_b32 s62, 64')
    a.fence(4)
    a.label('L_attn_slow')
    a('ds_read_b128 %s, v%d' % (vr(K, 4), R_KAD))
    a('ds_read_b128 %s, v%d' % (vr(V, 4), R_VA0))
    a('ds_read_b128 %s, v%d' % (vr(V + 4, 4), R_VA1))
    for r in (R_KAD, R_VA0, R_VA1):
        a('v_add_u32 v%d, 0x%x, v%d' % (r, TS_, r))
    a('s_waitcnt lgkmcnt(0)')
    a('v_mfma_f32_32x32x16_bf16 %s, %s, %s, 0' % (vr(S, 16), vr(K, 4), vr(Q, 4)))
    a('v_max_f32 v%d, v%d, v%d' % (MN, S, S + 1))
    for k in range(2, 16, 2):
        a('v_max3_f32 v%d, v%d, v%d, v%d' % (MN, MN, S + k, S + k + 1))
    a('v_mov_b32 v%d, v%d' % (T, MN))
    a('v_permlane32_swap_b32 v%d, v%d' % (MN, T))
    a('v_max3_f32 v%d, v%d, v%d, v%d' % (MN, MN, T, M))
    a('v_sub_f32 v%d, v%d, v%d' % (AL, M, MN))
    a('v_exp_f32 v%d, v%d' % (AL, AL))
    a('v_mov_b32 v%d, v%d' % (M, MN))
    for k in range(16):
        a('v_sub_f32 v%d, v%d, v%d' % (S + k, S + k, MN))
    for k in range(16):
        a('v_exp_f32 v%d, v%d' % (S + k, S + k))
    for k in range(16):
        a('v_mul_f32 v%d, v%d, v%d' % (O + k, O + k, AL))
    for k in range(8):
        a('v_cvt_pk_bf16_f32 v%d, v%d, v%d' % (P + k, S + 2 * k, S + 2 * k + 1))
    a('v_mfma_f32_32x32x16_bf16 %s, %s, %s, %s' % (vr(O, 16), vr(V, 4), vr(P, 4), vr(O, 16)))
    a('v_mfma_f32_32x32x16_bf16 %s, %s, %s, %s' % (vr(O, 16), vr(V + 4, 4), vr(P + 4, 4), vr(O, 16)))
    a('s_sub_u32 s62, s62, 1')
    a('s_cmp_lg_u32 s62, 0')
    a('s_nop 7'); a('s_nop 7')
    a('s_cbranch_scc1 L_attn_slow')
    poll256(a, WS_F2, R_WO)
    for f in prefetch_list(a): f()


def phase2(a, force_slow=False):
    a('s_and_b32 s48, s%d, 1' % S_W)
    a('s_bfe_u32 s49, s%d, 0x10001' % S_W)
    a('s_lshr_b32 s50, s%d, 2' % S_W)
    a('v_mov_b32 v8, %d' % L_BC)
    a('ds_read_b64 v[10:11], v8')
    a('s_cmp_eq_u32 s50, 0')
    a('s_cbranch_scc1 L_q_have')
    a('s_and_b32 s3, s%d, 3' % S_W)
    a('s_lshl_b32 s3, s3, 10')
    a('v_add_u32 v9, s3, v2')
    a('ds_read_b128 %s, v9 offset:%d' % (vr(R_Q, 4), L_QX))
    a.label('L_q_have')
    a.fence(2)
    a('v_mov_b32 v16, 0x3f803f80')
    for k in range(1, 4): a('v_mov_b32 v%d, v16' % (16 + k))
    a('s_movk_i32 s3, %d' % TS_)
    a('v_mul_lo_u32 v20, v1, s3')
    a('v_add_u32 v20, %d, v20' % (KVB + 2048))
    a('ds_write_b128 v20, v[16:19]')
    a('v_lshrrev_b32 v8, 5, v1')
    a('v_and_b32 v9, 15, v1')
    a('v_lshl_add_u32 v8, v8, 4, v9')
    a('v_lshlrev_b32 v8, 4, v8')
    a('v_add_u32 v8, %d, v8' % (KVB + 1024))
    a('v_add_u32 v9, 512, v8')
    a('v_and_b32 v13, 16, v1')
    a('v_cmp_eq_u32 vcc, 0, v13')
    a('v_mov_b32 v13, %d' % (KVB + 2048))
    a('v_cndmask_b32 v%d, v13, v8, vcc' % R_VA0)
    a('v_cndmask_b32 v%d, v13, v9, vcc' % R_VA1)
    a('v_add_u32 v%d, %d, v2' % (R_KAD, KVB))
    a('v_and_b32 v13, 31, v1')
    a('v_lshrrev_b32 v14, 5, v1')
    a('v_lshlrev_b32 v13, 10, v13')
    a('v_lshl_add_u32 v%d, v14, 4, v13' % R_ROW)
    swz_off(a, 96, 97)
    a('v_mul_lo_u32 v99, v96, s56')
    a('v_add_u32 v99, v99, v97')
    a('v_bfe_u32 v21, v1, 4, 1')
    a('v_bfe_u32 v22, v1, 2, 2')
    a('v_and_b32 v23, 3, v1')
    a('v_lshrrev_b32 v24, 1, v23')
    a('v_lshl_add_u32 v24, v21, 1, v24')
    a('v_lshrrev_b32 v25, 1, v22')
    a('v_lshlrev_b32 v25, 2, v25')
    a('v_xor_b32 v24, v24, v25')
    a('v_lshlrev_b32 v24, 4, v24')
    a('v_and_b32 v23, 1, v23')
    a('v_lshl_add_u32 v24, v23, 3, v24')
    a('v_lshl_add_u32 v25, v14, 2, v22')
    a('v_lshl_add_u32 v25, v25, 7, v24')
    a('v_add_u32 v100, s60, v25')
    a('v_xor_b32 v101, 64, v100')
    a('s_lshl_b32 s18, s%d, 11' % S_W)
    a('s_add_u32 s18, s18, 16384')
    a('s_mul_i32 s19, s%d, %d' % (S_W, TS_))
    a('s_add_u32 s19, s19, %d' % (KVB + 8 * TS_))
    a('s_waitcnt lgkmcnt(1)')
    a('v_readfirstlane_b32 s%d, v11' % S_FAST)
    a('v_dot2_f32_bf16 v14, v%d, v%d, 0' % (R_Q, R_Q))
    for k in range(1, 4): a('v_dot2_f32_bf16 v14, v%d, v%d, v14' % (R_Q + k, R_Q + k))
    a('v_mov_b32 v13, v14')
    a('v_permlane32_swap_b32 v14, v13')
    a('v_add_f32 v14, v14, v13')
    a('v_mul_f32 v14, v14, v10')
    a('s_mov_b32 s3, 0x%x' % f2u(-1.0 if force_slow else LIMIT2))
    a('v_cmp_nle_f32 vcc, v14, s3')
    a('s_waitcnt lgkmcnt(0)')
    stamp(a, 14)
    a('s_cbranch_vccnz L_attn_fb')
    attention_fast(a)
    a('s_branch L_attn_fin')
    a.label('L_attn_fb')
    a.fence(4)
    attention_slow(a)
    a.label('L_attn_fin')
    a.fence(12)
    stamp(a, 17)
    O = R_O
    a('v_rcp_f32 v8, v%d' % (O + 8))
    for k in range(8): a('v_mul_f32 v%d, v%d, v8' % (O + k, O + k))
    for k in range(4): a('v_cvt_pk_bf16_f32 v%d, v%d, v%d' % (O + k, O + 2 * k, O + 2 * k + 1))
    G.q_frag_off(a, WS_O, 's48', 's49', 's50', 's3')
    both(a, lambda m: a('buffer_store_dwordx4 %s, v2, %s, s3 offen%s' % (vr(O, 4), srd(S_WS), m)))
    a('s_lshl_b32 s3, s%d, 1' % S_RB)
    a('s_add_u32 s3, s3, s49')
    a('s_lshl_b32 s3, s3, 3')
    a('s_add_u32 s3, s3, s%d' % S_J)
    a('s_lshl_b32 s3, s3, 1')
    a('s_add_u32 s3, s3, s50')
    a('s_lshl_b32 s3, s3, 1')
    a('s_add_u32 s3, s3, s48')
    a('s_lshl_b32 s3, s3, 2')
    a('s_add_u32 s3, s3, 0x%x' % WS_F3)
    a('s_waitcnt vmcnt(0)')
    both(a, lambda m: flag_store(a, 's3', S_TAG, m, 8))
    stamp(a, 18)


def colsum(a, ks_list, regf, first):
    for ks in ks_list:
        for k in range(4):
            c = 80 + k
            a('v_dot2_f32_bf16 v%d, v%d, s44, %s' % (c, regf(ks) + k, '0' if (first and ks == ks_list[0]) else 'v%d' % c))


def w1reg(ks):
    return R_W1 + 4 * ks if ks < 24 else 192 + 4 * (ks - 24)


def phase3(a):
    A, B = R_WO, 8
    D = [40, 64]
    a('s_and_b32 s48, s%d, 1' % S_W)
    a('s_lshr_b32 s49, s%d, 1' % S_W)
    a('s_mov_b32 s44, 0x3f803f80')
    a('s_cmp_eq_u32 s%d, 7' % S_W)
    a('s_cbranch_scc1 L_cs_skip')
    colsum(a, list(range(24)), w1reg, True)
    a.label('L_cs_skip')
    a('s_lshl_b32 s3, s%d, 1' % S_RB)
    a('s_add_u32 s3, s3, s48')
    a('s_lshl_b32 s50, s3, 5')
    a('s_lshl_b32 s3, s49, 3')
    a('s_add_u32 s3, s3, s50')
    a('s_lshl_b32 s18, s3, 10')
    a('s_add_u32 s18, s18, 0x%x' % WS_O)
    a('s_lshl_b32 s3, s3, 2')
    a('s_add_u32 s3, s3, 0x%x' % WS_F3)
    poll8(a, 's3', 72)
    stamp(a, 19)
    for s in range(8):
        if s == 4: a('s_add_u32 s18, s18, 4096')
        a('buffer_load_dwordx4 %s, v2, %s, s18 offen offset:%d sc1' % (vr(B + 4 * s, 4), srd(S_WS), (s % 4) * 1024))
    for s in range(8):
        a('s_waitcnt vmcnt(%d)' % (7 - s))
        for nt in range(2):
            a('v_mfma_f32_32x32x16_bf16 %s, %s, %s, %s' % (vr(D[nt], 16), vr(A + 32 * nt + 4 * s, 4), vr(B + 4 * s, 4),
                                                          '0' if s == 0 else vr(D[nt], 16)))
    stamp(a, 20)
    a('s_barrier')
    a('s_lshl_b32 s3, s48, 15')
    a('s_lshl_b32 s43, s49, 11')
    a('s_add_u32 s3, s3, s43')
    a('v_add_u32 v84, s3, v2')
    a.fence(8)
    for q in range(4):
        r = D[q // 2] + 8 * (q % 2)
        a('s_cmp_eq_u32 s49, %d' % q)
        a('s_cbranch_scc1 L_o_skip%d' % q)
        a('ds_write_b128 v84, %s offset:%d' % (vr(r, 4), q * 8192))
        a('ds_write_b128 v84, %s offset:%d' % (vr(r + 4, 4), q * 8192 + 1024))
        a('s_branch L_o_nxt%d' % q)
        a.label('L_o_skip%d' % q)
        for k in range(8): a('v_mov_b32 v%d, v%d' % (56 + k, r + k))
        a.label('L_o_nxt%d' % q)
    a('s_waitcnt lgkmcnt(0)')
    a('s_barrier')
    a('s_lshl_b32 s3, s48, 15')
    a('s_lshl_b32 s43, s49, 13')
    a('s_add_u32 s3, s3, s43')
    for d in range(1, 4):
        a('s_add_u32 s43, s49, %d' % d)
        a('s_and_b32 s43, s43, 3')
        a('s_lshl_b32 s43, s43, 11')
        a('s_add_u32 s43, s43, s3')
        a('v_add_u32 v%d, s43, v2' % (83 + d))
        a('ds_read_b128 %s, v%d' % (vr(8 + 8 * (d - 1), 4), 83 + d))
        a('ds_read_b128 %s, v%d offset:1024' % (vr(12 + 8 * (d - 1), 4), 83 + d))
    X = R_XRES
    a('v_permlane32_swap_b32 v%d, v%d' % (X, X + 2))
    a('v_permlane32_swap_b32 v%d, v%d' % (X + 1, X + 3))
    for k in range(4):
        a('v_lshlrev_b32 v%d, 16, v%d' % (32 + 2 * k, X + k))
        a('v_and_b32 v%d, 0xffff0000, v%d' % (33 + 2 * k, X + k))
    a('s_waitcnt lgkmcnt(0)')
    for k in range(8):
        a('v_add_f32 v%d, v%d, v%d' % (56 + k, 56 + k, 8 + k))
        a('v_add_f32 v%d, v%d, v%d' % (16 + k, 16 + k, 24 + k))
    for k in range(8):
        a('v_add_f32 v%d, v%d, v%d' % (56 + k, 56 + k, 16 + k))
    for k in range(8):
        a('v_add_f32 v%d, v%d, v%d' % (56 + k, 56 + k, 32 + k))
    for k in range(4):
        a('v_cvt_pk_bf16_f32 v%d, v%d, v%d' % (4 + k, 56 + 2 * k, 57 + 2 * k))
    a('s_lshl_b32 s3, s%d, 2' % S_J)
    a('s_add_u32 s3, s3, s49')
    a('s_add_u32 s3, s3, s50')
    a('s_lshl_b32 s3, s3, 10')
    a('s_add_u32 s3, s3, 0x%x' % WS_H)
    both(a, lambda m: a('buffer_store_dwordx4 v[4:7], v2, %s, s3 offen%s' % (srd(S_WS), m)))
    a('s_lshl_b32 s3, s%d, 3' % S_RB)
    a('s_add_u32 s3, s3, s%d' % S_J)
    a('s_lshl_b32 s3, s3, 3')
    a('s_add_u32 s3, s3, s%d' % S_W)
    a('s_lshl_b32 s3, s3, 2')
    a('s_add_u32 s3, s3, 0x%x' % WS_F4)
    a('s_waitcnt vmcnt(0)')
    both(a, lambda m: flag_store(a, 's3', S_TAG, m, 72))
    stamp(a, 21)


L_H, L_ACT, L_ST, L_CS = 65536, 131072, 159744, 160256


def phase45(a):
    D1 = 32
    BB = 8
    a('s_lshl_b32 s3, s%d, 3' % S_RB)
    a('s_add_u32 s3, s3, s%d' % S_W)
    a('s_lshl_b32 s3, s3, 5')
    a('s_add_u32 s3, s3, 0x%x' % WS_F4)
    poll8(a, 's3', 72)
    stamp(a, 22)
    a('s_lshl_b32 s43, s%d, 16' % S_RB)
    a('s_lshl_b32 s3, s%d, 12' % S_W)
    a('s_add_u32 s43, s43, s3')
    a('s_add_u32 s43, s43, 0x%x' % WS_H)
    a('s_add_u32 s3, s3, %d' % L_H)
    for mt in range(2):
        a('s_mov_b32 m0, s3')
        a('s_nop 0')
        for k in range(4):
            a('buffer_load_dwordx4 v2, %s, s43 offen offset:%d sc1 lds' % (srd(S_WS), k * 1024))
        if mt == 0:
            a('s_add_u32 s3, s3, 32768'); a('s_add_u32 s43, s43, 32768')
    w2_base(a, 's55')
    a('s_add_u32 s56, s55, %d' % (112 * 1024))
    a('s_cmp_eq_u32 s%d, 7' % S_W)
    a('s_cbranch_scc1 L_g1_stats')
    a('s_add_u32 s54, s54, %d' % (24 * 1024))
    for ks in range(24, 32):
        if ks == 28: a('s_add_u32 s54, s54, 4096')
        a('buffer_load_dwordx4 %s, v2, %s, s54 offen offset:%d sc1' % (vr(w1reg(ks), 4), srd(S_WS), (ks % 4) * 1024))
    a('s_mul_i32 s48, s%d, 7' % S_J)
    a('s_add_u32 s48, s48, s%d' % S_W)
    a('v_lshrrev_b32 v3, 5, v1')
    a('v_lshlrev_b32 v3, 3, v3')
    a('s_lshl_b32 s50, s48, 6')
    for q in range(4):
        a('buffer_load_dwordx2 %s, v3, %s, s50 offen offset:%d' % (vr(64 + 2 * q, 2), srd(S_B1), 16 * q))
    def w2load(q):
        nt, s = q // 14, q % 14
        base = 's55' if nt == 0 else 's56'
        hi = (s // 4) * 4096
        if hi:
            a('s_add_u32 s57, %s, %d' % (base, hi)); base = 's57'
        a('buffer_load_dwordx4 %s, v2, %s, %s offen offset:%d sc1' % (vr(w2_slot_reg(q), 4), srd(S_WS), base, (s % 4) * 1024))
    for q in range(8): w2load(q)
    a('s_waitcnt vmcnt(20)')
    stamp(a, 23)
    a('s_barrier')
    seq = [(ks, mt) for ks in range(32) for mt in range(2)]
    NB = 6
    def bload(i):
        ks, mt = seq[i]
        a('ds_read_b128 %s, v92 offset:%d' % (vr(BB + 4 * (i % NB), 4), (mt * 32 + ks) * 1024))
    a('v_add_u32 v92, %d, v2' % L_H)
    PF = 5
    for i in range(PF): bload(i)
    nw2 = 0
    for i, (ks, mt) in enumerate(seq):
        if i + PF < len(seq): bload(i + PF)
        rem = min(len(seq), i + PF + 1) - (i + 1)
        if ks == 24 and mt == 0:
            a('s_waitcnt vmcnt(%d) lgkmcnt(%d)' % (12 + nw2, rem))
        else:
            a('s_waitcnt lgkmcnt(%d)' % rem)
        a('v_mfma_f32_32x32x16_bf16 %s, %s, %s, %s' % (vr(D1 + 16 * mt, 16), vr(w1reg(ks), 4), vr(BB + 4 * (i % NB), 4),
                                                      '0' if ks == 0 else vr(D1 + 16 * mt, 16)))
        if mt == 1 and 1 <= ks <= 20:
            w2load(8 + ks - 1); nw2 += 1
        if mt == 1 and ks >= 25:
            colsum(a, [ks - 1], w1reg, False)
    colsum(a, [31], w1reg, False)
    a('v_add_f32 v80, v80, v81')
    a('v_add_f32 v82, v82, v83')
    a('v_add_f32 v80, v80, v82')
    a('v_mov_b32 v81, v80')
    a('v_permlane32_swap_b32 v80, v81')
    a('v_add_f32 v80, v80, v81')
    a('s_lshl_b32 s3, s%d, 7' % S_W)
    a('s_add_u32 s3, s3, %d' % L_CS)
    a('v_and_b32 v93, 31, v1')
    a('v_lshlrev_b32 v93, 2, v93')
    a('v_add_u32 v93, s3, v93')
    a('ds_write_b32 v93, v80')
    a('v_lshrrev_b32 v93, 5, v1')
    a('v_lshlrev_b32 v93, 4, v93')
    a('v_add_u32 v93, s3, v93')
    a('s_waitcnt lgkmcnt(0)')
    for q in range(4):
        a('ds_read_b128 %s, v93 offset:%d' % (vr(72 + 4 * q, 4), 32 * q))
    a('s_branch L_g1_epi')
    a.label('L_g1_stats')
    a.fence(4)
    for q in range(8): w2load(q)
    a('s_waitcnt vmcnt(8)')
    a('s_barrier')
    a('v_add_u32 v92, %d, v2' % L_H)
    for mt in range(2):
        SA, QA = 64 + 8 * mt, 68 + 8 * mt
        for ks0 in range(0, 32, 4):
            for u in range(4):
                a('ds_read_b128 %s, v92 offset:%d' % (vr(BB + 4 * u, 4), (mt * 32 + ks0 + u) * 1024))
            for u in range(4):
                a('s_waitcnt lgkmcnt(%d)' % (3 - u))
                for k in range(4):
                    first = (ks0 == 0 and u == 0)
                    a('v_dot2_f32_bf16 v%d, v%d, s44, %s' % (SA + k, BB + 4 * u + k, '0' if first else 'v%d' % (SA + k)))
                    a('v_dot2_f32_bf16 v%d, v%d, v%d, %s' % (QA + k, BB + 4 * u + k, BB + 4 * u + k, '0' if first else 'v%d' % (QA + k)))
        for base in (SA, QA):
            a('v_add_f32 v%d, v%d, v%d' % (base, base, base + 1))
            a('v_add_f32 v%d, v%d, v%d' % (base + 2, base + 2, base + 3))
            a('v_add_f32 v%d, v%d, v%d' % (base, base, base + 2))
    for (x, y) in ((64, 72), (68, 76)):
        a('v_permlane32_swap_b32 v%d, v%d' % (x, y))
        a('v_add_f32 v%d, v%d, v%d' % (x, x, y))
    a('s_mov_b32 s45, 0x%x' % f2u(1.0 / 512))
    a('s_mov_b32 s46, 0x%x' % f2u(1e-5))
    a('v_mul_f32 v64, s45, v64')
    a('v_mul_f32 v65, v64, v64')
    a('v_fma_f32 v68, v68, s45, -v65')
    a('v_add_f32 v68, s46, v68')
    a('v_rsq_f32 v68, v68')
    a('s_mov_b32 s45, 0x%x' % f2u(LOG2E))
    a('v_mul_f32 v68, s45, v68')
    a('v_mul_f32_e64 v69, -v64, v68')
    a('v_lshlrev_b32 v93, 3, v1')
    a('v_add_u32 v93, %d, v93' % L_ST)
    a('ds_write_b64 v93, v[68:69]')
    if OPT.get('wb'):
        if OPT['wb'] == 1:
            a('s_cmp_ge_u32 s2, 8')
            a('s_cbranch_scc1 L_g1_epi')
        a('buffer_wbl2 sc1')
    a.label('L_g1_epi')
    a.fence(12)
    stamp(a, 24)
    a('s_waitcnt lgkmcnt(0)')
    a('s_barrier')
    a('s_cmp_eq_u32 s%d, 7' % S_W)
    a('s_cbranch_scc1 L_g1_done')
    a('v_and_b32 v88, 31, v1')
    a('v_lshlrev_b32 v88, 3, v88')
    a('v_add_u32 v88, %d, v88' % L_ST)
    a('ds_read_b64 v[90:91], v88 offset:256')
    a('ds_read_b64 v[88:89], v88')
    a('s_waitcnt vmcnt(28)')
    for q in range(4):
        for e in range(2):
            a('v_lshlrev_b32 v%d, 16, v%d' % (8 + 4 * q + 2 * e, 64 + 2 * q + e))
            a('v_and_b32 v%d, 0xffff0000, v%d' % (8 + 4 * q + 2 * e + 1, 64 + 2 * q + e))
    a('s_mov_b32 s58, 0x%x' % f2u(LOG2E))
    a('s_mov_b32 s59, s58')
    for k in range(8):
        a('v_pk_mul_f32 v[%d:%d], v[%d:%d], s[58:59]' % (8 + 2 * k, 9 + 2 * k, 8 + 2 * k, 9 + 2 * k))
    a('s_lshl_b32 s3, s%d, 3' % S_RB)
    a('s_add_u32 s3, s3, s%d' % S_J)
    a('s_mul_i32 s3, s3, 28')
    a('s_lshl_b32 s43, s%d, 1' % S_W)
    a('s_add_u32 s3, s3, s43')
    a('s_lshl_b32 s3, s3, 10')
    a('s_add_u32 s48, s3, 0x%x' % WS_P)
    a('s_add_u32 s49, s48, %d' % (14 * 1024))
    a('s_mov_b32 s60, 0.5'); a('s_mov_b32 s61, 0.5')
    a('s_waitcnt lgkmcnt(0)')
    P2 = lambda r: 'v[%d:%d]' % (r, r + 1)
    for mt in range(2):
        RS = 88 + 2 * mt
        for g in range(0, 16, 8):
            d = D1 + 16 * mt + g
            T, U = 24, 64
            for k in range(4):
                a('v_pk_fma_f32 %s, %s, %s, %s op_sel:[0,1,0] op_sel_hi:[1,1,1]' % (P2(T + 2 * k), P2(72 + g + 2 * k), P2(RS), P2(8 + g + 2 * k)))
            for k in range(4):
                a('v_pk_fma_f32 %s, %s, %s, %s op_sel:[0,0,0] op_sel_hi:[1,0,1]' % (P2(d + 2 * k), P2(d + 2 * k), P2(RS), P2(T + 2 * k)))
            for k in range(8): a('v_exp_f32 v%d, v%d' % (T + k, d + k))
            for k in range(4):
                a('v_pk_fma_f32 %s, %s, s[60:61], 1.0 op_sel_hi:[1,1,0]' % (P2(U + 2 * k), P2(T + 2 * k)))
            for k in range(4):
                a('v_pk_fma_f32 %s, %s, %s, 1.0 op_sel_hi:[1,1,0]' % (P2(U + 2 * k), P2(T + 2 * k), P2(U + 2 * k)))
            for k in range(8): a('v_rcp_f32 v%d, v%d' % (U + k, U + k))
            for k in range(4):
                a('v_pk_fma_f32 %s, %s, %s, %s neg_lo:[1,0,0] neg_hi:[1,0,0]' % (P2(d + 2 * k), P2(d + 2 * k), P2(U + 2 * k), P2(d + 2 * k)))
            TO = 72 + 8 * mt + 4 * (g // 8)
            TO = 176 + 8 * mt + 4 * (g // 8)
            for k in range(4):
                a('v_cvt_pk_bf16_f32 v%d, v%d, v%d' % (TO + k, d + 2 * k, d + 2 * k + 1))
            both(a, lambda m, TO=TO, mt=mt, g=g: a('buffer_store_dwordx4 %s, v2, %s, s%d offen offset:%d%s' % (vr(TO, 4), srd(S_WS), 48 + mt, (g // 8) * 1024, m)))
    a.label('L_g1_done')
    a.fence(4)
    stamp(a, 25)
    a('s_lshl_b32 s3, s%d, 3' % S_RB)
    a('s_add_u32 s3, s3, s%d' % S_J)
    a('s_lshl_b32 s3, s3, 3')
    a('s_add_u32 s3, s3, s%d' % S_W)
    a('s_lshl_b32 s3, s3, 2')
    a('s_add_u32 s3, s3, 0x%x' % WS_F5)
    a('s_waitcnt vmcnt(0)')
    both(a, lambda m: flag_store(a, 's3', S_TAG, m, 72))
    stamp(a, 26)
    a('s_lshl_b32 s3, s%d, 3' % S_RB)
    a('s_add_u32 s3, s3, s%d' % S_W)
    a('s_mul_i32 s18, s3, %d' % (28 * 1024))
    a('s_add_u32 s18, s18, 0x%x' % WS_P)
    a('s_add_u32 s19, s18, %d' % (14 * 1024))
    a('s_lshl_b32 s3, s3, 5')
    a('s_add_u32 s3, s3, 0x%x' % WS_F5)
    poll8(a, 's3', 72)
    stamp(a, 27)
    D2, B2, NB2 = 8, 176, 12
    seq = [(s_, mt) for s_ in range(14) for mt in range(2)]
    def bload2(i):
        s_, mt = seq[i]
        base = 18 + mt
        if s_ in (4, 8, 12): a('s_add_u32 s%d, s%d, 4096' % (base, base))
        a('buffer_load_dwordx4 %s, v2, %s, s%d offen offset:%d sc1' % (vr(B2 + 4 * (i % NB2), 4), srd(S_WS), base, (s_ % 4) * 1024))
    for i in range(NB2): bload2(i)
    for i, (s_, mt) in enumerate(seq):
        issued = min(len(seq), i + NB2)
        a('s_waitcnt vmcnt(%d)' % (issued - (i + 1)))
        for nt in range(2):
            acc = D2 + 16 * (2 * nt + mt)
            a('v_mfma_f32_32x32x16_bf16 %s, %s, %s, %s' % (vr(acc, 16), vr(w2_slot_reg(nt * 14 + s_), 4), vr(B2 + 4 * (i % NB2), 4),
                                                          '0' if s_ == 0 else vr(acc, 16)))
        if i + NB2 < len(seq): bload2(i + NB2)
    stamp(a, 28)
    a('s_lshr_b32 s48, s%d, 2' % S_W)
    a('s_lshl_b32 s48, s48, 2')
    a('s_and_b32 s49, s%d, 1' % S_W)
    a('s_lshl_b32 s49, s49, 1')
    a('s_bfe_u32 s50, s%d, 0x10001' % S_W)
    a('s_add_u32 s48, s48, s49')
    a('s_add_u32 s48, s48, s50')
    a('s_lshl_b32 s3, s%d, 11' % S_W)
    a('v_add_u32 v72, s3, v2')
    a('v_add_u32 v73, 0x10000, v72')
    a.fence(12)
    for p_ in range(8):
        nt, mt, hf = p_ >> 2, (p_ >> 1) & 1, p_ & 1
        r = D2 + 16 * (2 * nt + mt) + 8 * hf
        lo, ln = uid('L_own'), uid('L_nx')
        a('s_cmp_eq_u32 s48, %d' % p_)
        a('s_cbranch_scc1 %s' % lo)
        vb, off = (72, p_ * 16384) if p_ < 4 else (73, (p_ - 4) * 16384)
        a('ds_write_b128 v%d, %s offset:%d' % (vb, vr(r, 4), off))
        a('ds_write_b128 v%d, %s offset:%d' % (vb, vr(r + 4, 4), off + 1024))
        a('s_branch %s' % ln)
        a.label(lo)
        for k in range(8): a('v_mov_b32 v%d, v%d' % (80 + k, r + k))
        a.label(ln)
    a('s_lshl_b32 s3, s48, 14')
    a('v_add_u32 v74, s3, v2')
    for k in range(4):
        a('v_lshlrev_b32 v%d, 16, v%d' % (88 + 2 * k, 4 + k))
        a('v_and_b32 v%d, 0xffff0000, v%d' % (89 + 2 * k, 4 + k))
    a('s_waitcnt lgkmcnt(0)')
    a('s_barrier')
    stamp(a, 29)
    for d in range(1, 8):
        a('s_add_u32 s3, s%d, %d' % (S_W, d))
        a('s_and_b32 s3, s3, 7')
        a('s_lshl_b32 s3, s3, 11')
        a('v_add_u32 v75, s3, v74')
        a('ds_read_b128 %s, v75' % vr(8 + 8 * (d - 1), 4))
        a('ds_read_b128 %s, v75 offset:1024' % vr(12 + 8 * (d - 1), 4))
    P2 = lambda r: 'v[%d:%d]' % (r, r + 1)
    for d in range(1, 8):
        a('s_waitcnt lgkmcnt(%d)' % (2 * (7 - d)))
        for k in range(4):
            a('v_pk_add_f32 %s, %s, %s' % (P2(80 + 2 * k), P2(80 + 2 * k), P2(8 + 8 * (d - 1) + 2 * k)))
    a('s_mov_b32 s3, 0x%x' % f2u(1.0 / LOG2E))
    for k in range(8): a('v_fma_f32 v%d, v%d, s3, v%d' % (80 + k, 80 + k, 88 + k))
    for k in range(4): a('v_cvt_pk_bf16_f32 v%d, v%d, v%d' % (8 + k, 80 + 2 * k, 81 + 2 * k))
    a('v_permlane32_swap_b32 v8, v10')
    a('v_permlane32_swap_b32 v9, v11')
    a('v_and_b32 v13, 31, v1')
    a('v_lshrrev_b32 v14, 5, v1')
    a('v_lshlrev_b32 v13, 10, v13')
    a('v_lshl_add_u32 v13, v14, 4, v13')
    a('buffer_store_dwordx4 v[8:11], v13, %s, s53 offen%s' % (srd(S_OUT), ' sc1' if OPT.get('osc1') else ''))
    a('s_cmp_lg_u32 s2, 0')
    a('s_cbranch_scc1 L_ep_done')
    a('s_cmp_lg_u32 s%d, 0' % S_W)
    a('s_cbranch_scc1 L_ep_done')
    a('s_mov_b32 s3, 0x%x' % WS_EPOCH)
    flag_store(a, 's3', S_E1, ' sc1', 72)
    a.label('L_ep_done')


def gen_fused(force_slow=False):
    n = NAME + '_kernel'
    text = HEADER + '; @launch grid=(256,1,1) block=(512,1,1) lds=163840\n'
    text += '.amdgcn_target "amdgcn-amd-amdhsa--gfx950"\n.text\n'
    a = Asm()
    end = 'L_end'
    setup(a, end)
    if STAMPS: a('v_mov_b32 v%d, 0' % STAMP_V)
    stamp(a, 0)
    phase1(a)
    phase2(a, force_slow)
    phase3(a)
    phase45(a)
    if STAMPS:
        a('s_waitcnt vmcnt(0)')
        stamp(a, 31)
        stamp_flush(a)
    a('s_waitcnt vmcnt(0)')
    a.label(end)
    a('s_endpgm')
    text += G.kernel_wrap(n, a.text())
    text += '.section .rodata,"a"\n.p2align 6\n' + G.desc(n)
    return text


if __name__ == '__main__':
    out = sys.argv[1] if len(sys.argv) > 1 else 'cdna_kernels/%s.s' % NAME
    for t in sys.argv[2:]:
        if '=' in t:
            k, v = t.split('='); OPT[k] = int(v)
        else:
            OPT[t] = 1
    STAMPS = 'stamps' in OPT
    t = gen_fused(force_slow='slow' in OPT)
    open(out, 'w').write(t)
    print('wrote', out, len(t))
```

```python
import sys, os
sys.path.insert(0, os.path.dirname(__file__))
from asmlib import Asm
import gen as G
from gen import (NAME, f2u, srd, vr, mk_srd, ln_stats, ln_apply, LOG2E, LIMIT2,
                 S_X, S_WQ, S_WKV, S_B1, S_OUT, S_WS, S_J, S_RB, S_W,
                 WS_KMAX, WS_WO, WS_W1, WS_W2, WS_O, WS_H, WS_P, WS_STAMP, WS_SIZE, HEADER)

WS_F1 = 0x30000
WS_F2 = 0x30400
WS_F3 = 0x31000
WS_F4 = 0x33000
WS_F5 = 0x35000
WS_EPOCH = 0x37000
WS_F5B = 0x38000
S_TAG, S_FAST, S_E1, S_F1V = 100, 101, 16, 17
OPT = {}
STAMPS = False
STAMP_V = 0
SPIN = 1 << 17
_uid = [0]


def uid(p):
    _uid[0] += 1
    return '%s_%d' % (p, _uid[0])


def stamp(a, idx):
    if not STAMPS: return
    a('s_waitcnt lgkmcnt(0)')
    a('s_memtime s[96:97]')
    a('s_memrealtime s[98:99]')
    a('s_waitcnt lgkmcnt(0)')
    a('v_writelane_b32 v%d, s96, %d' % (STAMP_V, idx))
    a('v_writelane_b32 v%d, s98, %d' % (STAMP_V, idx + 32))


def stamp_flush_dbg(a):
    sel = [(0, 1), (0, 0), (12, 0), (16, 0), (17, 0), (21, 0), (23, 0), (24, 0), (26, 0), (27, 0), (28, 0), (29, 0), (31, 0), (31, 1), (4, 0), (9, 0)]
    for i, (idx, neg) in enumerate(sel):
        a('v_readlane_b32 s3, v%d, %d' % (STAMP_V, idx + 32))
        if neg: a('s_not_b32 s3, s3')
        a('s_nop 3')
        a('v_writelane_b32 v4, s3, %d' % i)
    a('v_lshlrev_b32 v3, 2, v1')
    a('s_mov_b64 exec, 0xffff')
    a('global_atomic_umax v3, v4, s[22:23]')
    a('s_mov_b64 exec, -1')


def stamp_flush(a):
    if not STAMPS: return
    if OPT.get('dbg'):
        stamp_flush_dbg(a); return
    a('s_lshl_b32 s3, s2, 11')
    a('s_lshl_b32 s43, s%d, 8' % S_W)
    a('s_add_u32 s3, s3, s43')
    a('s_add_u32 s3, s3, 0x%x' % WS_STAMP)
    a('v_lshlrev_b32 v3, 2, v1')
    a('buffer_store_dword v%d, v3, %s, s3 offen' % (STAMP_V, srd(S_WS)))


def both(a, fn):
    if OPT.get('nofast'):
        fn(' sc1'); return
    ls, ld = uid('L_sl'), uid('L_dn')
    a('s_cmp_eq_u32 s%d, 0' % S_FAST)
    a('s_cbranch_scc1 %s' % ls)
    fn('')
    a('s_branch %s' % ld)
    a.label(ls)
    fn(' sc1')
    a.label(ld)


def flag_store(a, soff, val, mod, vt):
    a('v_mov_b32 v%d, s%d' % (vt, val))
    a('s_mov_b64 exec, 1')
    a('buffer_store_dword v%d, off, %s, %s%s' % (vt, srd(S_WS), soff, mod))
    a('s_mov_b64 exec, -1')


def poll8(a, soff, vt, sleep=True):
    l, d = uid('L_poll'), uid('L_pd')
    a('v_and_b32 v%d, 7, v1' % (vt + 1))
    a('v_lshlrev_b32 v%d, 2, v%d' % (vt + 1, vt + 1))
    a('s_mov_b32 s43, %d' % SPIN)
    a.label(l)
    a('buffer_load_dword v%d, v%d, %s, %s offen sc1' % (vt, vt + 1, srd(S_WS), soff))
    a('s_waitcnt vmcnt(0)')
    a('v_cmp_ne_u32 vcc, s%d, v%d' % (S_TAG, vt))
    a('s_cbranch_vccz %s' % d)
    a('s_sub_u32 s43, s43, 1')
    a('s_cmp_lg_u32 s43, 0')
    a('s_cbranch_scc1 %s' % l)
    a.label(d)


def check256(a, vt):
    for k in range(4):
        a('v_xor_b32 v%d, s%d, v%d' % (vt + k, S_TAG, vt + k))
    a('v_or3_b32 v%d, v%d, v%d, v%d' % (vt, vt, vt + 1, vt + 2))
    a('v_or_b32 v%d, v%d, v%d' % (vt, vt, vt + 3))
    a('v_cmp_le_u32 vcc, 16, v%d' % vt)


def poll256(a, base, vt, first_loaded=False):
    l, d, c = uid('L_poll'), uid('L_pd'), uid('L_pc')
    a('s_mov_b32 s43, %d' % SPIN)
    a('s_mov_b32 s3, 0x%x' % base)
    if first_loaded:
        a('s_branch %s' % c)
    a.label(l)
    a('buffer_load_dwordx4 %s, v2, %s, s3 offen sc1' % (vr(vt, 4), srd(S_WS)))
    a.label(c)
    a('s_waitcnt vmcnt(0)')
    check256(a, vt)
    a('s_cbranch_vccz %s' % d)
    a('s_sub_u32 s43, s43, 1')
    a('s_cmp_lg_u32 s43, 0')
    a('s_sleep %d' % OPT.get('slp', 2))
    a('s_cbranch_scc1 %s' % l)
    a.label(d)


def setup(a, endlabel):
    a('s_cmp_ge_u32 s2, 256')
    a('s_cbranch_scc1 %s' % endlabel)
    a('s_load_dwordx16 s[64:79], s[0:1], 0')
    a('s_load_dwordx8 s[80:87], s[0:1], 64')
    a('v_lshrrev_b32 v2, 6, v0')
    a('v_and_b32 v1, 63, v0')
    a('v_readfirstlane_b32 s%d, v2' % S_W)
    a('v_lshlrev_b32 v2, 4, v1')
    a('s_lshr_b32 s%d, s2, 3' % S_J)
    a('s_and_b32 s%d, s%d, 7' % (S_J, S_J))
    a('s_and_b32 s%d, s2, 7' % S_RB)
    a('s_lshl_b32 s%d, s%d, 2' % (S_RB, S_RB))
    a('s_lshr_b32 s3, s2, 6')
    a('s_add_u32 s%d, s%d, s3' % (S_RB, S_RB))
    a('s_getreg_b32 s%d, hwreg(HW_REG_XCC_ID, 0, 4)' % S_F1V)
    a('s_waitcnt lgkmcnt(0)')
    a('s_load_dword s%d, s[86:87], 0x%x' % (S_E1, WS_EPOCH))
    if OPT.get('dbg'):
        a('s_mov_b32 s22, s84'); a('s_mov_b32 s23, s85')
    mk_srd(a, S_X, 64, 2048 * 512 * 2)
    a('s_bitcmp1_b32 s%d, 0' % S_J)
    a('s_cselect_b32 s%d, s70, s68' % S_WKV)
    a('s_cselect_b32 s%d, s71, s69' % (S_WKV + 1))
    a('s_mov_b32 s%d, 0x%x' % (S_WKV + 2, 512 * 16 * 2))
    a('s_mov_b32 s%d, 0x20000' % (S_WKV + 3))
    mk_srd(a, S_WQ, 66, 512 * 512 * 2)
    mk_srd(a, S_WS, 86, WS_SIZE)
    mk_srd(a, S_B1, 78, 1792 * 2)
    mk_srd(a, S_OUT, 82, 2048 * 512 * 2)


L_WKV, L_X, L_WQ = 0, 32768, 98304
TS_ = 2064
KVB = 16256
L_QX = 0
L_BC = 16128
L_TBA, L_TBB = 148480, 4096
CTRL = 7


def tb_setup(a):
    a('s_cmp_lt_u32 s2, 112')
    a('s_cbranch_scc1 L_tb_w1')
    a('s_cmp_lt_u32 s2, 224')
    a('s_cbranch_scc1 L_tb_w2')
    a('s_sub_u32 s3, s2, 224')
    a('s_mov_b32 s52, s72'); a('s_mov_b32 s53, s73'); a('s_mov_b32 s54, 0x%x' % (512 * 512 * 2))
    a('s_mov_b32 s56, 1024')
    a('s_and_b32 s60, s3, 3'); a('s_lshr_b32 s61, s3, 2')
    a('s_mov_b32 s59, %d' % (32 * 1024))
    a('s_mov_b32 s62, 0x%x' % WS_WO)
    a('s_branch L_tb_go')
    a.label('L_tb_w1')
    a('s_mov_b32 s52, s76'); a('s_mov_b32 s53, s77'); a('s_mov_b32 s54, 0x%x' % (512 * 1792 * 2))
    a('s_mov_b32 s56, 3584')
    a('s_and_b32 s60, s2, 3'); a('s_lshr_b32 s61, s2, 2')
    a('s_mov_b32 s59, %d' % (32 * 1024))
    a('s_mov_b32 s62, 0x%x' % WS_W1)
    a('s_branch L_tb_go')
    a.label('L_tb_w2')
    a('s_sub_u32 s3, s2, 112')
    a('s_mov_b32 s52, s80'); a('s_mov_b32 s53, s81'); a('s_mov_b32 s54, 0x%x' % (1792 * 512 * 2))
    a('s_mov_b32 s56, 1024')
    a('s_lshr_b32 s60, s3, 3'); a('s_and_b32 s61, s3, 7')
    a('s_mov_b32 s59, %d' % (112 * 1024))
    a('s_mov_b32 s62, 0x%x' % WS_W2)
    a.label('L_tb_go')
    a('s_mov_b32 s55, 0x20000')
    a('s_lshl_b32 s3, s60, 7')
    a('s_lshl_b32 s43, s%d, 4' % S_W)
    a('s_add_u32 s3, s3, s43')
    a('s_mul_i32 s57, s3, s56')
    a('s_lshl_b32 s3, s61, 7')
    a('s_add_u32 s57, s57, s3')
    a('s_lshl_b32 s3, s61, 1')
    a('s_mul_i32 s58, s3, s59')
    a('s_add_u32 s58, s58, s62')
    a('s_lshl_b32 s3, s60, 3')
    a('s_add_u32 s3, s3, s%d' % S_W)
    a('s_lshl_b32 s3, s3, 10')
    a('s_add_u32 s58, s58, s3')
    a('s_lshl_b32 s60, s%d, 11' % S_W)
    a('s_cmp_lt_u32 s%d, 4' % S_W)
    a('s_mov_b32 s3, %d' % L_TBA)
    a('s_cselect_b32 s3, s3, 0x%x' % ((L_TBB - 4 * 2048) & 0xffffffff))
    a('s_add_u32 s60, s60, s3')


def swz_off(a, vr_, vp):
    a('v_lshrrev_b32 v%d, 3, v1' % vr_)
    a('v_and_b32 v%d, 7, v1' % vp)
    a('v_lshlrev_b32 v%d, 1, v%d' % (vp + 1, vr_))
    a('v_and_b32 v%d, 4, v%d' % (vp + 1, vp + 1))
    a('v_xor_b32 v%d, v%d, v%d' % (vp, vp, vp + 1))
    a('v_lshlrev_b32 v%d, 4, v%d' % (vp, vp))


def phase1(a):
    XR, XQ = 32, 40
    TS, TQ, TT = 8, 16, 24
    QR = [90, 91, 92, 93, 94, 95, 63]
    a('s_lshr_b32 s47, s%d, 1' % S_J)
    a('s_lshl_b32 s47, s47, 4')
    a('s_lshl_b32 s88, s%d, 1' % S_W)
    a('s_add_u32 s88, s88, s47')
    a('s_add_u32 s89, s88, 1')
    a('s_lshl_b32 s48, s%d, 16' % S_RB)
    def xload(sr, v):
        a('s_lshl_b32 s43, s%d, 10' % sr)
        a('s_add_u32 s43, s43, s48')
        a('buffer_load_dwordx4 %s, v2, %s, s43 offen' % (vr(v, 4), srd(S_X)))
    xload(88, XR); xload(89, XR + 4)
    KVP = OPT.get('kvpre', 0)
    if KVP:
        a('s_cmp_lg_u32 s%d, %d' % (S_W, CTRL))
        a('s_cbranch_scc1 L_p1_nowkv')
        for g in range(4):
            a('s_mov_b32 s43, %d' % (g * 4096))
            a('s_mov_b32 m0, s43')
            a('s_nop 0')
            for k in range(4):
                a('buffer_load_dwordx4 v2, %s, s43 offen offset:%d lds' % (srd(S_WKV), k * 1024))
        a.label('L_p1_nowkv')
    else:
        a('s_lshl_b32 s43, s%d, 11' % S_W)
        a('s_mov_b32 m0, s43')
        a('buffer_load_dwordx4 v2, %s, s43 offen lds' % srd(S_WKV))
        a('buffer_load_dwordx4 v2, %s, s43 offen offset:1024 lds' % srd(S_WKV))
    def qrows():
        a('s_cmp_eq_u32 s%d, %d' % (S_W, CTRL))
        a('s_cbranch_scc1 L_p1_noq')
        for t in range(7):
            r = QR[t]
            a('s_mul_i32 s%d, s%d, 7' % (r, S_W))
            a('s_add_u32 s%d, s%d, %d' % (r, r, t))
            if t == 6: a('s_min_u32 s%d, s%d, 47' % (r, r))
            a('s_add_u32 s43, s%d, 16' % r)
            a('s_cmp_lt_u32 s%d, s47' % r)
            a('s_cselect_b32 s%d, s%d, s43' % (r, r))
            xload(r, XQ + 4 * t)
        a.label('L_p1_noq')
    P1Q = OPT.get('p1q', 0)
    if not P1Q: qrows()
    a('s_mov_b32 s44, 0x3f803f80')
    a('s_mov_b32 s45, 0x%x' % f2u(1.0 / 512))
    a('s_mov_b32 s46, 0x%x' % f2u(1e-5))
    tb_setup(a)
    swz_off(a, 3, 4)
    a('v_lshl_add_u32 v5, v3, 10, v4')
    stamp(a, 1)
    if P1Q:
        if KVP:
            a('s_cmp_eq_u32 s%d, %d' % (S_W, CTRL))
            a('s_cbranch_scc1 L_p1_w7')
            a('s_waitcnt vmcnt(0) lgkmcnt(0)')
            a('s_branch L_p1_w')
            a.label('L_p1_w7')
            a('s_waitcnt vmcnt(16) lgkmcnt(0)')
            a.label('L_p1_w')
        else:
            a('s_waitcnt vmcnt(2) lgkmcnt(0)')
        qrows()
    else:
        a('s_cmp_eq_u32 s%d, %d' % (S_W, CTRL))
        a('s_cbranch_scc1 L_p1_w7')
        a('s_waitcnt vmcnt(9) lgkmcnt(0)')
        a('s_branch L_p1_w')
        a.label('L_p1_w7')
        a('s_waitcnt vmcnt(2) lgkmcnt(0)')
        a.label('L_p1_w')
    a('s_mul_i32 s%d, s%d, 0x9E3779B1' % (S_TAG, S_E1))
    a('s_add_u32 s%d, s%d, 0x7F4A7C15' % (S_TAG, S_TAG))
    a('s_and_b32 s%d, s%d, 0xFFFFFFF0' % (S_TAG, S_TAG))
    a('s_or_b32 s%d, s%d, s%d' % (S_F1V, S_F1V, S_TAG))
    a('s_add_u32 s%d, s%d, 1' % (S_E1, S_E1))
    stamp(a, 2)
    SB = 72
    ln_stats(a, [XR, XR + 4], TS, TQ, SB)
    def xstore(sr, v):
        a('s_lshl_b32 s3, s%d, 10' % sr)
        a('s_and_b32 s43, s%d, 15' % sr)
        a('s_lshl_b32 s43, s43, 4')
        a('s_add_u32 s3, s3, s43')
        a('s_add_u32 s3, s3, %d' % L_X)
        a('v_xor_b32 v7, s3, v2')
        a('ds_write_b128 v7, %s' % vr(v, 4))
    for i in range(2):
        ln_apply(a, XR + 4 * i, SB + 2 * i, TT)
        xstore(88 + i, XR + 4 * i)
    a('s_cmp_eq_u32 s%d, %d' % (S_W, CTRL))
    a('s_cbranch_scc1 L_p1_w7b')
    a('s_waitcnt vmcnt(7) lgkmcnt(0)')
    stamp(a, 3)
    a('s_barrier')
    stamp(a, 4)
    a('s_lshl_b32 s49, s%d, 13' % S_W)
    a('s_lshl_b32 s43, s%d, 7' % S_J)
    a('s_add_u32 s49, s49, s43')
    a('s_lshl_b32 s50, s%d, 10' % S_W)
    a('s_add_u32 s50, s50, %d' % L_WQ)
    nq = [0]
    def wq(n=1):
        for _ in range(n):
            a('s_mov_b32 m0, s50')
            a('s_add_u32 s50, s50, %d' % (7 * 1024))
            a('buffer_load_dwordx4 v5, %s, s49 offen lds' % srd(S_WQ))
            a('s_add_u32 s49, s49, %d' % (7 * 8192))
            nq[0] += 1
    wq(2)
    a('s_waitcnt vmcnt(5)')
    rows = [XQ + 4 * t for t in range(7)]
    ln_stats(a, rows[0:4], TS, TQ, SB)
    wq(2)
    for t in range(4):
        ln_apply(a, rows[t], SB + 2 * t, TT)
        xstore(QR[t], rows[t])
        if t % 2 == 1: wq(1)
    a('s_waitcnt vmcnt(6)')
    ln_stats(a, [rows[4], rows[5], rows[6], rows[3]], TS, TQ, SB)
    wq(2)
    for t in range(4, 7):
        ln_apply(a, rows[t], SB + 2 * (t - 4), TT)
        xstore(QR[t], rows[t])
        if t == 4: wq(1)
    assert nq[0] == 9
    a('s_cmp_lg_u32 s%d, 0' % S_W)
    a('s_cbranch_scc1 L_p1_wq9')
    wq(1)
    a.label('L_p1_wq9')
    stamp(a, 7)
    a('s_waitcnt vmcnt(0) lgkmcnt(0)')
    stamp(a, 8)
    a('s_barrier')
    stamp(a, 9)
    a('s_cmp_ge_u32 s%d, 4' % S_W)
    a('s_cbranch_scc1 L_q_done')
    a('s_and_b32 s48, s%d, 1' % S_W)
    a('s_lshr_b32 s49, s%d, 1' % S_W)
    a('v_lshrrev_b32 v8, 5, v1')
    a('v_bfe_u32 v9, v1, 4, 1')
    a('v_bfe_u32 v10, v1, 2, 2')
    a('v_and_b32 v11, 3, v1')
    a('v_lshrrev_b32 v12, 1, v11')
    a('v_lshl_add_u32 v12, v9, 1, v12')
    a('v_lshrrev_b32 v13, 1, v10')
    a('v_lshlrev_b32 v13, 2, v13')
    a('v_xor_b32 v12, v12, v13')
    a('v_lshlrev_b32 v12, 4, v12')
    a('v_and_b32 v11, 1, v11')
    a('v_lshl_add_u32 v12, v11, 3, v12')
    a('v_lshl_add_u32 v13, v8, 3, v10')
    a('v_lshl_add_u32 v13, v13, 7, v12')
    a('s_lshl_b32 s43, s48, 6')
    a('v_xor_b32 v13, s43, v13')
    a('v_add_u32 v13, %d, v13' % L_WQ)
    a('v_and_b32 v16, 31, v1')
    a('v_and_b32 v17, 15, v1')
    a('v_xor_b32 v17, v17, v8')
    a('v_lshlrev_b32 v17, 4, v17')
    a('v_lshl_add_u32 v17, v16, 10, v17')
    a('s_lshl_b32 s3, s49, 15')
    a('s_add_u32 s3, s3, %d' % L_X)
    a('v_add_u32 v24, s3, v17')
    for q in range(1, 8):
        a('v_xor_b32 v%d, %d, v24' % (24 + q, 32 * q))
    QA, QB, QD, NR, PF = 64, 128, 32, 8, 4
    def qload(s):
        a('ds_read_b64_tr_b16 %s, v13 offset:%d' % (vr(QA + 4 * (s % NR), 2), 2048 * s))
        a('ds_read_b64_tr_b16 %s, v13 offset:%d' % (vr(QA + 4 * (s % NR) + 2, 2), 2048 * s + 512))
        a('ds_read_b128 %s, v%d offset:%d' % (vr(QB + 4 * (s % NR), 4), 24 + s % 8, (s // 8) * 256))
    for s in range(PF): qload(s)
    for s in range(32):
        if s + PF < 32: qload(s + PF)
        rem = min(32, s + PF + 1) - (s + 1)
        a('s_waitcnt lgkmcnt(%d)' % min(15, 3 * rem))
        a('v_mfma_f32_32x32x16_bf16 %s, %s, %s, %s' % (vr(QD, 16), vr(QA + 4 * (s % NR), 4), vr(QB + 4 * (s % NR), 4), '0' if s == 0 else vr(QD, 16)))
    a('s_mov_b32 s3, 0x%x' % f2u(0.25 * LOG2E))
    a('s_lshl_b32 s43, s%d, 10' % S_W)
    a('v_add_u32 v8, s43, v2')
    a.fence(12)
    for k in range(16):
        a('v_mul_f32 v%d, s3, v%d' % (QD + k, QD + k))
    for k in range(4):
        a('v_cvt_pk_bf16_f32 v%d, v%d, v%d' % (8 + 4 + k, QD + 8 + 2 * k, QD + 9 + 2 * k))
    a('ds_write_b128 v8, v[12:15] offset:%d' % L_QX)
    for k in range(4):
        a('v_cvt_pk_bf16_f32 v%d, v%d, v%d' % (R_Q + k, QD + 2 * k, QD + 2 * k + 1))
    a.label('L_q_done')
    a('s_waitcnt lgkmcnt(0)')
    stamp(a, 11)
    a('s_barrier')
    a('s_branch L_p1_end')
    a.label('L_p1_w7b')
    a.fence(4)
    a('s_waitcnt vmcnt(0) lgkmcnt(0)')
    if not KVP:
        stamp(a, 3)
        a('s_barrier')
        stamp(a, 4)
    KW, KX = 64, 128
    a('v_lshrrev_b32 v8, 4, v1')
    a('v_and_b32 v9, 15, v1')
    a('v_lshlrev_b32 v10, 8, v8')
    a('v_lshl_add_u32 v10, v9, 3, v10')
    a('v_xor_b32 v11, v8, v9')
    a('v_lshlrev_b32 v11, 4, v11')
    a('v_add_u32 v12, s47, v9')
    a('v_lshlrev_b32 v12, 10, v12')
    a('v_add_u32 v12, %d, v12' % L_X)
    a('v_add_u32 v12, v12, v11')
    a('v_xor_b32 v13, 64, v12')
    a('v_xor_b32 v14, 0x80, v12')
    a('v_xor_b32 v15, 0xc0, v12')
    def kvload(ks):
        if not KVP:
            a('ds_read_b64_tr_b16 %s, v10 offset:%d' % (vr(KW + 4 * ks, 2), 1024 * ks))
            a('ds_read_b64_tr_b16 %s, v10 offset:%d' % (vr(KW + 4 * ks + 2, 2), 1024 * ks + 128))
        a('ds_read_b128 %s, v%d offset:%d' % (vr(KX + 4 * ks, 4), 12 + ks % 4, (ks // 4) * 256))
    KPF = 8 if KVP else 4
    if KVP:
        for ks in range(16):
            a('ds_read_b64_tr_b16 %s, v10 offset:%d' % (vr(KW + 4 * ks, 2), 1024 * ks))
            a('ds_read_b64_tr_b16 %s, v10 offset:%d' % (vr(KW + 4 * ks + 2, 2), 1024 * ks + 128))
            if ks % 4 == 3: a('s_waitcnt lgkmcnt(4)')
        a('s_waitcnt lgkmcnt(0)')
        stamp(a, 3)
        a('s_barrier')
        stamp(a, 4)
    for ks in range(KPF): kvload(ks)
    a('s_bitcmp1_b32 s%d, 0' % S_J)
    a('s_cbranch_scc1 L_kv_v')
    for var in (0, 1):
        if var: a.label('L_kv_v'); a.fence(4)
        for ks in range(16):
            if ks + KPF < 16: kvload(ks + KPF)
            a('s_waitcnt lgkmcnt(%d)' % ((1 if KVP else 3) * (min(16, ks + KPF + 1) - (ks + 1))))
            acc = 16 + 4 * (ks % 2)
            A, B = (KW + 4 * ks, KX + 4 * ks) if var == 0 else (KX + 4 * ks, KW + 4 * ks)
            a('v_mfma_f32_16x16x32_bf16 %s, %s, %s, %s' % (vr(acc, 4), vr(A, 4), vr(B, 4), '0' if ks < 2 else vr(acc, 4)))
        for k in range(4):
            a('v_add_f32 v%d, v%d, v%d' % (16 + k, 16 + k, 20 + k))
        a('v_cvt_pk_bf16_f32 v16, v16, v17')
        a('v_cvt_pk_bf16_f32 v17, v18, v19')
        a('v_and_b32 v18, 1, v8')
        a('v_lshlrev_b32 v18, %d, v18' % (9 if var == 0 else 8))
        a('v_lshl_add_u32 v18, v9, 4, v18')
        a('v_lshrrev_b32 v19, 1, v8')
        a('v_lshl_add_u32 v18, v19, 3, v18')
        a('s_lshl_b32 s3, s%d, 1' % S_RB)
        a('s_lshr_b32 s43, s47, 5')
        a('s_add_u32 s3, s3, s43')
        a('s_lshl_b32 s3, s3, 11')
        a('s_and_b32 s43, s47, 16')
        if var == 0:
            a('s_lshl_b32 s43, s43, 4')
        else:
            a('s_lshl_b32 s43, s43, 5')
            a('s_add_u32 s43, s43, 1024')
        a('s_add_u32 s3, s3, s43')
        a('buffer_store_dwordx2 v[16:17], v18, %s, s3 offen sc1' % srd(S_WS))
        if var == 0:
            a('v_dot2_f32_bf16 v20, v16, v16, 0')
            a('v_dot2_f32_bf16 v20, v17, v17, v20')
            a('v_mov_b32 v21, v20')
            a('v_permlane32_swap_b32 v20, v21')
            a('v_add_f32 v20, v20, v21')
            a('v_mov_b32 v21, v20')
            a('v_permlane16_swap_b32 v20, v21')
            a('v_add_f32 v20, v20, v21')
            for sh in (8, 4, 2, 1):
                a('v_max_f32_dpp v20, v20, v20 row_ror:%d row_mask:0xf bank_mask:0xf' % sh)
            a('s_lshl_b32 s3, s%d, 2' % S_RB)
            a('s_lshr_b32 s43, s%d, 1' % S_J)
            a('s_add_u32 s3, s3, s43')
            a('s_lshl_b32 s3, s3, 2')
            a('s_add_u32 s3, s3, 0x%x' % WS_KMAX)
            a('s_mov_b64 exec, 1')
            a('buffer_store_dword v20, off, %s, s3 sc1' % srd(S_WS))
            a('s_mov_b64 exec, -1')
            a('s_branch L_kv_done')
    a.label('L_kv_done')
    a.fence(4)
    stamp(a, 5)
    a('s_lshl_b32 s3, s%d, 3' % S_RB)
    a('s_add_u32 s3, s3, s%d' % S_J)
    a('s_lshl_b32 s3, s3, 2')
    a('s_add_u32 s3, s3, 0x%x' % WS_F1)
    a('s_waitcnt vmcnt(0)')
    stamp(a, 6)
    flag_store(a, 's3', S_F1V, ' sc1', 8)
    a('s_barrier')
    stamp(a, 8)
    poll256(a, WS_F1, 56)
    stamp(a, 7)
    a('v_and_b32 v8, 7, v1')
    a('v_lshlrev_b32 v8, 2, v8')
    a('s_lshl_b32 s3, s%d, 5' % S_RB)
    a('s_add_u32 s3, s3, 0x%x' % WS_F1)
    a('buffer_load_dword v12, v8, %s, s3 offen sc1' % srd(S_WS))
    a('v_lshlrev_b32 v8, 3, v1')
    a('s_mov_b32 s3, 0x%x' % WS_KMAX)
    a('buffer_load_dwordx2 v[10:11], v8, %s, s3 offen sc1' % srd(S_WS))
    a('s_mov_b32 s3, 0')
    a('s_mov_b32 s43, %d' % KVB)
    for t in range(8):
        a('s_mov_b32 m0, s43')
        a('s_add_u32 s43, s43, %d' % TS_)
        a('buffer_load_dwordx4 v2, %s, s3 offen sc1 lds' % srd(S_WS))
        a('buffer_load_dwordx4 v2, %s, s3 offen offset:1024 sc1 lds' % srd(S_WS))
        if t < 7: a('s_add_u32 s3, s3, 2048')
    a('s_waitcnt vmcnt(16)')
    a('v_cmp_ne_u32 vcc, s%d, v12' % S_F1V)
    a('s_cmp_eq_u64 vcc, 0')
    a('s_cselect_b32 s3, 1, 0')
    a('v_max_f32 v10, v10, v11')
    a('v_mov_b32 v11, v10')
    a('v_permlane32_swap_b32 v10, v11')
    a('v_max_f32 v10, v10, v11')
    a('v_mov_b32 v11, v10')
    a('v_permlane16_swap_b32 v10, v11')
    a('v_max_f32 v10, v10, v11')
    for sh in (8, 4, 2, 1):
        a('v_max_f32_dpp v10, v10, v10 row_ror:%d row_mask:0xf bank_mask:0xf' % sh)
    a('v_mov_b32 v11, s3')
    a('v_mov_b32 v12, 0')
    a('v_mov_b32 v13, 0')
    a('v_mov_b32 v8, %d' % L_BC)
    a('s_mov_b64 exec, 1')
    a('ds_write_b128 v8, v[10:13]')
    a('ds_write_b32 v8, v12 offset:16')
    a('s_mov_b64 exec, -1')
    a('s_waitcnt vmcnt(0) lgkmcnt(0)')
    stamp(a, 11)
    a('s_barrier')
    a.label('L_p1_end')
    a.fence(4)
    stamp(a, 12)


R_Q, R_S0, R_S1, R_O, R_P0, R_P1 = 4, 8, 24, 40, 56, 60
R_V0, R_V1, R_K = 64, 72, 80
R_KAD, R_VA0, R_VA1, R_ROW, R_XRES = 88, 3, 89, 90, 92
R_WO, R_W1 = 192, 96


def prefetch_list(a):
    L = []
    def wo_addr():
        a('s_lshr_b32 s51, s%d, 1' % S_W)
        a('s_lshl_b32 s51, s51, 3')
        a('s_lshl_b32 s52, s%d, 6' % S_J)
        a('s_add_u32 s51, s51, s52')
        a('s_lshl_b32 s51, s51, 10')
        a('s_add_u32 s51, s51, 0x%x' % WS_WO)
        a('s_add_u32 s52, s51, %d' % (32 * 1024))
    def wo(nt, s):
        def f():
            if nt == 0 and s == 0: wo_addr()
            if s == 4: a('s_add_u32 s%d, s%d, 4096' % (51 + nt, 51 + nt))
            a('buffer_load_dwordx4 %s, v2, %s, s%d offen offset:%d sc1' % (vr(R_WO + 32 * nt + 4 * s, 4), srd(S_WS), 51 + nt, (s % 4) * 1024))
        return f
    for s in range(8):
        for nt in range(2): L.append(wo(nt, s))
    def xres():
        a('s_and_b32 s3, s%d, 1' % S_W)
        a('s_lshl_b32 s43, s%d, 1' % S_RB)
        a('s_add_u32 s3, s3, s43')
        a('s_lshl_b32 s3, s3, 15')
        a('s_lshl_b32 s43, s%d, 7' % S_J)
        a('s_add_u32 s3, s3, s43')
        a('s_lshr_b32 s43, s%d, 1' % S_W)
        a('s_lshl_b32 s43, s43, 5')
        a('s_add_u32 s53, s3, s43')
        a('buffer_load_dwordx4 %s, v%d, %s, s53 offen' % (vr(R_XRES, 4), R_ROW, srd(S_X)))
    L.append(xres)
    def w1_addr():
        a('s_mul_i32 s54, s%d, 7' % S_J)
        a('s_add_u32 s54, s54, s%d' % S_W)
        a('s_lshl_b32 s54, s54, 15')
        a('s_add_u32 s54, s54, 0x%x' % WS_W1)
        w2_base(a, 's55')
        a('s_add_u32 s56, s55, %d' % (8 * 1024))
        a('s_cmp_eq_u32 s%d, 7' % S_W)
        a('s_cselect_b32 s57, s56, s54')
        a('s_cselect_b32 s58, %d, 0' % ((112 - 14) * 1024))
    def w1(i):
        def f():
            if i == 0: w1_addr()
            if i < 6:
                if i == 4: a('s_add_u32 s57, s57, 4096')
                off = (i % 4) * 1024
            else:
                if i == 6:
                    a('s_add_u32 s57, s57, 2048'); a('s_add_u32 s57, s57, s58')
                elif (i - 6) % 4 == 0:
                    a('s_add_u32 s57, s57, 4096')
                off = ((i - 6) % 4) * 1024
            a('buffer_load_dwordx4 %s, v2, %s, s57 offen offset:%d sc1' % (vr(R_W1 + 4 * i, 4), srd(S_WS), off))
        return f
    for i in range(24): L.append(w1(i))
    return L


def w2_base(a, dst):
    a('s_mul_i32 %s, s%d, %d' % (dst, S_J, 2 * 112))
    a('s_mul_i32 s43, s%d, 14' % S_W)
    a('s_add_u32 %s, %s, s43' % (dst, dst))
    a('s_lshl_b32 %s, %s, 10' % (dst, dst))
    a('s_add_u32 %s, %s, 0x%x' % (dst, dst, WS_W2))


def w2_slot_reg(q):
    return 224 + 4 * q if q < 8 else 96 + 4 * (q - 8)


def attn_tile(a, u, extra=()):
    c, n = u % 2, (u + 1) % 2
    a0 = a
    def a(t):
        if OPT.get('xnods') and t.startswith('ds_read'): return
        if OPT.get('xnomf') and t.startswith('v_mfma'): return
        if OPT.get('xnocv') and t.startswith('v_cvt_pk'): return
        if OPT.get('xnoexp') and t.startswith('v_exp'): return
        if OPT.get('xhalfexp') and t.startswith('v_exp') and int(t.split()[1][1:-1]) % 2: return
        a0(t)
    S = [R_S0, R_S1]
    K = lambda b: R_K + 4 * b
    V0 = lambda b: R_V0 + 4 * b
    V1 = lambda b: R_V1 + 4 * b
    ex = list(extra)
    def E(k): a('v_exp_f32 v%d, v%d' % (S[c] + k, S[c] + k))
    def X():
        if ex: ex.pop(0)()
    def CV(d, x, y):
        if OPT.get('perm'): a('v_perm_b32 v%d, v%d, v%d, s63' % (d, y, x))
        else: a('v_cvt_pk_bf16_f32 v%d, v%d, v%d' % (d, x, y))
    a('s_waitcnt lgkmcnt(0)')
    if OPT.get('sched', 1) == 0:
        E(0)
        a('ds_read_b128 %s, v%d offset:%d' % (vr(K(c), 4), R_KAD, (u + 2) * TS_))
        E(1)
        a('ds_read_b128 %s, v%d offset:%d' % (vr(V0(n), 4), R_VA0, (u + 1) * TS_))
        E(2)
        a('ds_read_b128 %s, v%d offset:%d' % (vr(V1(c), 4), R_VA1, u * TS_))
        E(3)
        a('v_mfma_f32_32x32x16_bf16 %s, %s, %s, 0' % (vr(S[n], 16), vr(K(n), 4), vr(R_Q, 4)))
        E(4); X(); E(5); X(); E(6); X(); E(7)
        for k in range(4): a('v_cvt_pk_bf16_f32 v%d, v%d, v%d' % (R_P0 + k, S[c] + 2 * k, S[c] + 2 * k + 1))
        a('v_mfma_f32_32x32x16_bf16 %s, %s, %s, %s' % (vr(R_O, 16), vr(V1(n), 4), vr(R_P1, 4), vr(R_O, 16)))
        E(8); X(); E(9); X(); E(10); X(); E(11)
        a('v_mfma_f32_32x32x16_bf16 %s, %s, %s, %s' % (vr(R_O, 16), vr(V0(c), 4), vr(R_P0, 4), vr(R_O, 16)))
        for k in range(12, 16): E(k)
        for k in range(4): a('v_cvt_pk_bf16_f32 v%d, v%d, v%d' % (R_P1 + k, S[c] + 8 + 2 * k, S[c] + 9 + 2 * k))
    else:
        a('v_mfma_f32_32x32x16_bf16 %s, %s, %s, 0' % (vr(S[n], 16), vr(K(n), 4), vr(R_Q, 4)))
        a('ds_read_b128 %s, v%d offset:%d' % (vr(K(c), 4), R_KAD, (u + 2) * TS_))
        a('ds_read_b128 %s, v%d offset:%d' % (vr(V0(n), 4), R_VA0, (u + 1) * TS_))
        a('ds_read_b128 %s, v%d offset:%d' % (vr(V1(c), 4), R_VA1, u * TS_))
        E(0); E(1); X(); E(2); E(3); X(); E(4); E(5); X(); E(6); E(7)
        a('v_mfma_f32_32x32x16_bf16 %s, %s, %s, %s' % (vr(R_O, 16), vr(V1(n), 4), vr(R_P1, 4), vr(R_O, 16)))
        for k in range(4): CV(R_P0 + k, S[c] + 2 * k, S[c] + 2 * k + 1)
        E(8); X(); E(9); X(); E(10); X(); E(11)
        a('v_mfma_f32_32x32x16_bf16 %s, %s, %s, %s' % (vr(R_O, 16), vr(V0(c), 4), vr(R_P0, 4), vr(R_O, 16)))
        for k in range(12, 16): E(k)
        for k in range(4): CV(R_P1 + k, S[c] + 8 + 2 * k, S[c] + 9 + 2 * k)
    while ex: ex.pop(0)()


def attn_advance(a):
    for r in (R_KAD, R_VA0, R_VA1):
        a('v_add_u32 v%d, 0x%x, v%d' % (r, 8 * TS_, r))


def early_dma_list(a):
    L = []
    def kv(i):
        def f():
            a('s_mov_b32 m0, s19')
            a('s_add_u32 s19, s19, %d' % (8 * TS_))
            a('buffer_load_dwordx4 v2, %s, s18 offen sc1 lds' % srd(S_WS))
            a('buffer_load_dwordx4 v2, %s, s18 offen offset:1024 sc1 lds' % srd(S_WS))
            a('s_add_u32 s18, s18, 16384')
        return f
    for i in range(1, 8): L.append(kv(i))
    def tb(k):
        def f():
            a('s_mov_b32 m0, s60')
            a('s_add_u32 s60, s60, 1024')
            a('buffer_load_dwordx4 v99, s[52:55], s57 offen lds')
            if k == 0:
                a('s_lshl_b32 s61, s56, 3')
                a('s_add_u32 s57, s57, s61')
        return f
    L += [tb(0), tb(1)]
    return L


def tb_read_list(a):
    def rd(nt):
        def f():
            a('ds_read_b64_tr_b16 %s, v%d' % (vr(104 + 4 * nt, 2), 100 + nt))
            a('ds_read_b64_tr_b16 %s, v%d offset:1024' % (vr(106 + 4 * nt, 2), 100 + nt))
        return f
    return [rd(0), rd(1)]


def tb_store_list(a):
    def st(nt):
        def f():
            a('buffer_store_dwordx4 %s, v2, %s, s58 offen sc1' % (vr(104 + 4 * nt, 4), srd(S_WS)))
            if nt == 0: a('s_add_u32 s58, s58, s59')
        return f
    return [st(0), st(1)]


def f2_publish(a):
    sk = uid('L_f2')
    a('s_cmp_lg_u32 s%d, %d' % (S_W, CTRL))
    a('s_cbranch_scc1 %s' % sk)
    a('s_lshl_b32 s18, s2, 2')
    a('s_add_u32 s18, s18, 0x%x' % WS_F2)
    flag_store(a, 's18', S_TAG, ' sc1', 96)
    a.label(sk)


def f2_count(a):
    sk = uid('L_f2n')
    a('v_mov_b32 v96, %d' % (L_BC + 16))
    a('v_mov_b32 v97, 1')
    a('s_waitcnt vmcnt(0)')
    a('s_mov_b64 exec, 1')
    a('ds_add_rtn_u32 v97, v96, v97')
    a('s_waitcnt lgkmcnt(0)')
    a('s_mov_b64 exec, -1')
    a('v_readfirstlane_b32 s18, v97')
    a('s_cmp_lg_u32 s18, 7')
    a('s_cbranch_scc1 %s' % sk)
    a('s_lshl_b32 s18, s2, 2')
    a('s_add_u32 s18, s18, 0x%x' % WS_F2)
    flag_store(a, 's18', S_TAG, ' sc1', 96)
    a.label(sk)


def fair_prio(a):
    if not OPT.get('fair'): return
    d = uid('L_fp')
    lv = {1: [(5, 3), (3, 2), (2, 1), (0, 0)], 2: [(6, 3), (5, 2), (3, 1), (0, 0)], 3: [(5, 3), (4, 2), (2, 1), (0, 0)]}[OPT['fair']]
    for (th, pr) in lv:
        a('s_setprio %d' % pr)
        if th:
            a('s_cmp_ge_u32 s62, %d' % th)
            a('s_cbranch_scc1 %s' % d)
    a.label(d)


def attention_fast(a):
    if OPT.get('fair'): a('s_setprio 3')
    if OPT.get('perm'): a('s_mov_b32 s63, 0x07060302')
    if OPT.get('prio') in (1, 2):
        a('s_cmp_lt_u32 s%d, 4' % S_W)
        a('s_cbranch_scc1 L_prio0')
        a('s_setprio 1')
        a.label('L_prio0')
    a('ds_read_b128 %s, v%d' % (vr(R_K, 4), R_KAD))
    a('ds_read_b128 %s, v%d offset:%d' % (vr(R_K + 4, 4), R_KAD, TS_))
    a('ds_read_b128 %s, v%d' % (vr(R_V0, 4), R_VA0))
    for k in range(16): a('v_mov_b32 v%d, 0' % (R_O + k))
    for k in range(4): a('v_mov_b32 v%d, 0' % (R_P1 + k))
    for k in range(4): a('v_mov_b32 v%d, 0' % (R_V1 + 4 + k))
    a('s_waitcnt lgkmcnt(2)')
    a('v_mfma_f32_32x32x16_bf16 %s, %s, %s, 0' % (vr(R_S0, 16), vr(R_K, 4), vr(R_Q, 4)))
    a.fence(12)
    E = early_dma_list(a)
    tbw = lambda: a('s_waitcnt vmcnt(8)')
    TB2 = OPT.get('tb2', 0)
    if TB2:
        ex0 = [[E[0]], [E[1]], [E[7], E[8]], [E[2]], [E[3]], [E[4]], [E[5]], [E[6]]]
        w10 = lambda: a('s_waitcnt vmcnt(10)')
        ex1 = [[w10] + tb_read_list(a), tb_store_list(a), [], [], [], [], [], []]
    else:
        ex0 = [[E[0], E[7]], [E[8], E[1]], [E[2]], [E[3]], [E[4]], [tbw] + tb_read_list(a), tb_store_list(a) + [E[5]], [E[6]]]
        ex1 = [[] for _ in range(8)]
    for u in range(8):
        if u == 6:
            stamp(a, 15)
            if TB2: a('s_waitcnt vmcnt(10)')
            a('s_barrier')
            stamp(a, 16)
        attn_tile(a, u, ex0[u])
    attn_advance(a)
    for u in range(8):
        if u == 6:
            if TB2 == 2:
                a('s_waitcnt vmcnt(2)')
                a('s_barrier')
            else:
                a('s_waitcnt vmcnt(0)')
                a('s_barrier')
                f2_publish(a)
            stamp(a, 13)
        attn_tile(a, u, ex1[u])
    if TB2 == 2: f2_count(a)
    attn_advance(a)
    a('s_mov_b32 s62, 6')
    if OPT.get('stag'):
        a('s_lshr_b32 s63, s%d, 2' % S_W)
    if OPT.get('late'):
        a('s_cmp_lt_u32 s%d, 4' % S_W)
        a('s_cselect_b32 s63, 1, 0')
        a('s_cbranch_scc1 L_attn_b')
    a('s_mov_b32 s3, 0x%x' % WS_F2)
    a.raw('.p2align 6')
    a.label('L_attn_a')
    fair_prio(a)
    f2ld = lambda: a('buffer_load_dwordx4 %s, v2, %s, s3 offen sc1' % (vr(R_WO, 4), srd(S_WS)))
    for u in range(8): attn_tile(a, u, [f2ld] if u == OPT.get('f2u', 0) else [])
    attn_advance(a)
    a('s_sub_u32 s62, s62, 1')
    stamp(a, 10)
    a('s_waitcnt vmcnt(0)')
    check256(a, R_WO)
    if OPT.get('xnof2'): a('s_branch L_attn_p')
    if OPT.get('stag'):
        a('s_cbranch_vccnz L_attn_nf')
        a('s_cmp_eq_u32 s63, 0')
        a('s_cbranch_scc1 L_attn_p')
        a('s_mov_b32 s63, 0')
        a('s_cmp_gt_u32 s62, %d' % OPT.get('lim', 3))
        a('s_cbranch_scc1 L_attn_a')
        a('s_branch L_attn_p')
        a.label('L_attn_nf')
    else:
        a('s_cbranch_vccz L_attn_p')
    a('s_cmp_gt_u32 s62, %d' % OPT.get('lim', 3))
    a('s_cbranch_scc1 L_attn_a')
    poll256(a, WS_F2, R_WO)
    a.label('L_attn_p')
    stamp(a, 30)
    if OPT.get('prio') == 2: a('s_setprio 0')
    fair_prio(a)
    L = prefetch_list(a)
    per = [L[(len(L) * u) // 8:(len(L) * (u + 1)) // 8] for u in range(8)]
    a.fence(2)
    for u in range(8): attn_tile(a, u, per[u])
    attn_advance(a)
    a('s_sub_u32 s62, s62, 1')
    a.raw('.p2align 6')
    a.label('L_attn_b')
    fair_prio(a)
    for u in range(8): attn_tile(a, u)
    attn_advance(a)
    a('s_sub_u32 s62, s62, 1')
    a('s_cmp_lg_u32 s62, 0')
    a('s_cbranch_scc1 L_attn_b')
    if OPT.get('prio') or OPT.get('fair'): a('s_setprio 0')
    a('s_waitcnt lgkmcnt(0)')
    a('v_mfma_f32_32x32x16_bf16 %s, %s, %s, %s' % (vr(R_O, 16), vr(R_V1 + 4, 4), vr(R_P1, 4), vr(R_O, 16)))


def attention_slow(a):
    Q, O, P = R_Q, R_O, R_P0
    S = R_S0; K = R_K; V = R_V0
    M, MN, AL, T = R_S1, R_S1 + 1, R_S1 + 2, R_S1 + 3
    for f in early_dma_list(a): f()
    a('s_waitcnt vmcnt(0)')
    for f in tb_read_list(a): f()
    a('s_waitcnt lgkmcnt(0)')
    for f in tb_store_list(a): f()
    a('s_barrier')
    a('s_waitcnt vmcnt(0)')
    a('s_barrier')
    if OPT.get('tb2') == 2: f2_count(a)
    else: f2_publish(a)
    for k in range(16): a('v_mov_b32 v%d, 0' % (O + k))
    a('v_mov_b32 v%d, 0xff7fffff' % M)
    a('s_mov_b32 s62, 64')
    a.fence(4)
    a.label('L_attn_slow')
    a('ds_read_b128 %s, v%d' % (vr(K, 4), R_KAD))
    a('ds_read_b128 %s, v%d' % (vr(V, 4), R_VA0))
    a('ds_read_b128 %s, v%d' % (vr(V + 4, 4), R_VA1))
    for r in (R_KAD, R_VA0, R_VA1):
        a('v_add_u32 v%d, 0x%x, v%d' % (r, TS_, r))
    a('s_waitcnt lgkmcnt(0)')
    a('v_mfma_f32_32x32x16_bf16 %s, %s, %s, 0' % (vr(S, 16), vr(K, 4), vr(Q, 4)))
    a('v_max_f32 v%d, v%d, v%d' % (MN, S, S + 1))
    for k in range(2, 16, 2):
        a('v_max3_f32 v%d, v%d, v%d, v%d' % (MN, MN, S + k, S + k + 1))
    a('v_mov_b32 v%d, v%d' % (T, MN))
    a('v_permlane32_swap_b32 v%d, v%d' % (MN, T))
    a('v_max3_f32 v%d, v%d, v%d, v%d' % (MN, MN, T, M))
    a('v_sub_f32 v%d, v%d, v%d' % (AL, M, MN))
    a('v_exp_f32 v%d, v%d' % (AL, AL))
    a('v_mov_b32 v%d, v%d' % (M, MN))
    for k in range(16):
        a('v_sub_f32 v%d, v%d, v%d' % (S + k, S + k, MN))
    for k in range(16):
        a('v_exp_f32 v%d, v%d' % (S + k, S + k))
    for k in range(16):
        a('v_mul_f32 v%d, v%d, v%d' % (O + k, O + k, AL))
    for k in range(8):
        a('v_cvt_pk_bf16_f32 v%d, v%d, v%d' % (P + k, S + 2 * k, S + 2 * k + 1))
    a('v_mfma_f32_32x32x16_bf16 %s, %s, %s, %s' % (vr(O, 16), vr(V, 4), vr(P, 4), vr(O, 16)))
    a('v_mfma_f32_32x32x16_bf16 %s, %s, %s, %s' % (vr(O, 16), vr(V + 4, 4), vr(P + 4, 4), vr(O, 16)))
    a('s_sub_u32 s62, s62, 1')
    a('s_cmp_lg_u32 s62, 0')
    a('s_nop 7'); a('s_nop 7')
    a('s_cbranch_scc1 L_attn_slow')
    poll256(a, WS_F2, R_WO)
    for f in prefetch_list(a): f()


def phase2(a, force_slow=False):
    a('s_and_b32 s48, s%d, 1' % S_W)
    a('s_bfe_u32 s49, s%d, 0x10001' % S_W)
    a('s_lshr_b32 s50, s%d, 2' % S_W)
    a('v_mov_b32 v8, %d' % L_BC)
    a('ds_read_b64 v[10:11], v8')
    a('s_cmp_eq_u32 s50, 0')
    a('s_cbranch_scc1 L_q_have')
    a('s_and_b32 s3, s%d, 3' % S_W)
    a('s_lshl_b32 s3, s3, 10')
    a('v_add_u32 v9, s3, v2')
    a('ds_read_b128 %s, v9 offset:%d' % (vr(R_Q, 4), L_QX))
    a.label('L_q_have')
    a.fence(2)
    a('v_mov_b32 v16, 0x3f803f80')
    for k in range(1, 4): a('v_mov_b32 v%d, v16' % (16 + k))
    a('s_movk_i32 s3, %d' % TS_)
    a('v_mul_lo_u32 v20, v1, s3')
    a('v_add_u32 v20, %d, v20' % (KVB + 2048))
    a('ds_write_b128 v20, v[16:19]')
    a('v_lshrrev_b32 v8, 5, v1')
    a('v_and_b32 v9, 15, v1')
    a('v_lshl_add_u32 v8, v8, 4, v9')
    a('v_lshlrev_b32 v8, 4, v8')
    a('v_add_u32 v8, %d, v8' % (KVB + 1024))
    a('v_add_u32 v9, 512, v8')
    a('v_and_b32 v13, 16, v1')
    a('v_cmp_eq_u32 vcc, 0, v13')
    a('v_mov_b32 v13, %d' % (KVB + 2048))
    a('v_cndmask_b32 v%d, v13, v8, vcc' % R_VA0)
    a('v_cndmask_b32 v%d, v13, v9, vcc' % R_VA1)
    a('v_add_u32 v%d, %d, v2' % (R_KAD, KVB))
    a('v_and_b32 v13, 31, v1')
    a('v_lshrrev_b32 v14, 5, v1')
    a('v_lshlrev_b32 v13, 10, v13')
    a('v_lshl_add_u32 v%d, v14, 4, v13' % R_ROW)
    swz_off(a, 96, 97)
    a('v_mul_lo_u32 v99, v96, s56')
    a('v_add_u32 v99, v99, v97')
    a('v_bfe_u32 v21, v1, 4, 1')
    a('v_bfe_u32 v22, v1, 2, 2')
    a('v_and_b32 v23, 3, v1')
    a('v_lshrrev_b32 v24, 1, v23')
    a('v_lshl_add_u32 v24, v21, 1, v24')
    a('v_lshrrev_b32 v25, 1, v22')
    a('v_lshlrev_b32 v25, 2, v25')
    a('v_xor_b32 v24, v24, v25')
    a('v_lshlrev_b32 v24, 4, v24')
    a('v_and_b32 v23, 1, v23')
    a('v_lshl_add_u32 v24, v23, 3, v24')
    a('v_lshl_add_u32 v25, v14, 2, v22')
    a('v_lshl_add_u32 v25, v25, 7, v24')
    a('v_add_u32 v100, s60, v25')
    a('v_xor_b32 v101, 64, v100')
    a('s_lshl_b32 s18, s%d, 11' % S_W)
    a('s_add_u32 s18, s18, 16384')
    a('s_mul_i32 s19, s%d, %d' % (S_W, TS_))
    a('s_add_u32 s19, s19, %d' % (KVB + 8 * TS_))
    a('s_waitcnt lgkmcnt(1)')
    a('v_readfirstlane_b32 s%d, v11' % S_FAST)
    a('v_dot2_f32_bf16 v14, v%d, v%d, 0' % (R_Q, R_Q))
    for k in range(1, 4): a('v_dot2_f32_bf16 v14, v%d, v%d, v14' % (R_Q + k, R_Q + k))
    a('v_mov_b32 v13, v14')
    a('v_permlane32_swap_b32 v14, v13')
    a('v_add_f32 v14, v14, v13')
    a('v_mul_f32 v14, v14, v10')
    a('s_mov_b32 s3, 0x%x' % f2u(-1.0 if force_slow else LIMIT2))
    a('v_cmp_nle_f32 vcc, v14, s3')
    a('s_waitcnt lgkmcnt(0)')
    stamp(a, 14)
    if OPT.get('late'): a('s_mov_b32 s63, 0')
    a('s_cbranch_vccnz L_attn_fb')
    attention_fast(a)
    a('s_branch L_attn_fin')
    a.label('L_attn_fb')
    a.fence(4)
    attention_slow(a)
    a.label('L_attn_fin')
    a.fence(12)
    stamp(a, 17)
    O = R_O
    a('v_rcp_f32 v8, v%d' % (O + 8))
    for k in range(8): a('v_mul_f32 v%d, v%d, v8' % (O + k, O + k))
    for k in range(4): a('v_cvt_pk_bf16_f32 v%d, v%d, v%d' % (O + k, O + 2 * k, O + 2 * k + 1))
    G.q_frag_off(a, WS_O, 's48', 's49', 's50', 's3')
    both(a, lambda m: a('buffer_store_dwordx4 %s, v2, %s, s3 offen%s' % (vr(O, 4), srd(S_WS), m)))
    a('s_lshl_b32 s3, s%d, 1' % S_RB)
    a('s_add_u32 s3, s3, s49')
    a('s_lshl_b32 s3, s3, 3')
    a('s_add_u32 s3, s3, s%d' % S_J)
    a('s_lshl_b32 s3, s3, 1')
    a('s_add_u32 s3, s3, s50')
    a('s_lshl_b32 s3, s3, 1')
    a('s_add_u32 s3, s3, s48')
    a('s_lshl_b32 s3, s3, 2')
    a('s_add_u32 s3, s3, 0x%x' % WS_F3)
    a('s_waitcnt vmcnt(0)')
    both(a, lambda m: flag_store(a, 's3', S_TAG, m, 8))
    stamp(a, 18)
    if OPT.get('late'):
        a('s_cmp_eq_u32 s63, 0')
        a('s_cbranch_scc1 L_late_skip')
        poll256(a, WS_F2, R_WO)
        for f in prefetch_list(a): f()
        a('s_waitcnt vmcnt(0)')
        a.label('L_late_skip')


def colsum(a, ks_list, regf, first):
    for ks in ks_list:
        for k in range(4):
            c = 80 + k
            a('v_dot2_f32_bf16 v%d, v%d, s44, %s' % (c, regf(ks) + k, '0' if (first and ks == ks_list[0]) else 'v%d' % c))


def w1reg(ks):
    return R_W1 + 4 * ks if ks < 24 else 192 + 4 * (ks - 24)


def phase3(a):
    A, B = R_WO, 8
    D = [40, 64]
    a('s_and_b32 s48, s%d, 1' % S_W)
    a('s_lshr_b32 s49, s%d, 1' % S_W)
    a('s_mov_b32 s44, 0x3f803f80')
    a('s_cmp_eq_u32 s%d, 7' % S_W)
    a('s_cbranch_scc1 L_cs_skip')
    colsum(a, list(range(24)), w1reg, True)
    a.label('L_cs_skip')
    a('s_lshl_b32 s3, s%d, 1' % S_RB)
    a('s_add_u32 s3, s3, s48')
    a('s_lshl_b32 s50, s3, 5')
    a('s_lshl_b32 s3, s49, 3')
    a('s_add_u32 s3, s3, s50')
    a('s_lshl_b32 s18, s3, 10')
    a('s_add_u32 s18, s18, 0x%x' % WS_O)
    a('s_lshl_b32 s3, s3, 2')
    a('s_add_u32 s3, s3, 0x%x' % WS_F3)
    poll8(a, 's3', 72)
    stamp(a, 19)
    for s in range(8):
        if s == 4: a('s_add_u32 s18, s18, 4096')
        a('buffer_load_dwordx4 %s, v2, %s, s18 offen offset:%d sc1' % (vr(B + 4 * s, 4), srd(S_WS), (s % 4) * 1024))
    for s in range(8):
        a('s_waitcnt vmcnt(%d)' % (7 - s))
        for nt in range(2):
            a('v_mfma_f32_32x32x16_bf16 %s, %s, %s, %s' % (vr(D[nt], 16), vr(A + 32 * nt + 4 * s, 4), vr(B + 4 * s, 4),
                                                          '0' if s == 0 else vr(D[nt], 16)))
    stamp(a, 20)
    a('s_barrier')
    a('s_lshl_b32 s3, s48, 15')
    a('s_lshl_b32 s43, s49, 11')
    a('s_add_u32 s3, s3, s43')
    a('v_add_u32 v84, s3, v2')
    a.fence(8)
    for q in range(4):
        r = D[q // 2] + 8 * (q % 2)
        a('s_cmp_eq_u32 s49, %d' % q)
        a('s_cbranch_scc1 L_o_skip%d' % q)
        a('ds_write_b128 v84, %s offset:%d' % (vr(r, 4), q * 8192))
        a('ds_write_b128 v84, %s offset:%d' % (vr(r + 4, 4), q * 8192 + 1024))
        a('s_branch L_o_nxt%d' % q)
        a.label('L_o_skip%d' % q)
        for k in range(8): a('v_mov_b32 v%d, v%d' % (56 + k, r + k))
        a.label('L_o_nxt%d' % q)
    a('s_waitcnt lgkmcnt(0)')
    a('s_barrier')
    a('s_lshl_b32 s3, s48, 15')
    a('s_lshl_b32 s43, s49, 13')
    a('s_add_u32 s3, s3, s43')
    for d in range(1, 4):
        a('s_add_u32 s43, s49, %d' % d)
        a('s_and_b32 s43, s43, 3')
        a('s_lshl_b32 s43, s43, 11')
        a('s_add_u32 s43, s43, s3')
        a('v_add_u32 v%d, s43, v2' % (83 + d))
        a('ds_read_b128 %s, v%d' % (vr(8 + 8 * (d - 1), 4), 83 + d))
        a('ds_read_b128 %s, v%d offset:1024' % (vr(12 + 8 * (d - 1), 4), 83 + d))
    X = R_XRES
    a('v_permlane32_swap_b32 v%d, v%d' % (X, X + 2))
    a('v_permlane32_swap_b32 v%d, v%d' % (X + 1, X + 3))
    for k in range(4):
        a('v_lshlrev_b32 v%d, 16, v%d' % (32 + 2 * k, X + k))
        a('v_and_b32 v%d, 0xffff0000, v%d' % (33 + 2 * k, X + k))
    a('s_waitcnt lgkmcnt(0)')
    for k in range(8):
        a('v_add_f32 v%d, v%d, v%d' % (56 + k, 56 + k, 8 + k))
        a('v_add_f32 v%d, v%d, v%d' % (16 + k, 16 + k, 24 + k))
    for k in range(8):
        a('v_add_f32 v%d, v%d, v%d' % (56 + k, 56 + k, 16 + k))
    for k in range(8):
        a('v_add_f32 v%d, v%d, v%d' % (56 + k, 56 + k, 32 + k))
    for k in range(4):
        a('v_cvt_pk_bf16_f32 v%d, v%d, v%d' % (4 + k, 56 + 2 * k, 57 + 2 * k))
    a('s_lshl_b32 s3, s%d, 2' % S_J)
    a('s_add_u32 s3, s3, s49')
    a('s_add_u32 s3, s3, s50')
    a('s_lshl_b32 s3, s3, 10')
    a('s_add_u32 s3, s3, 0x%x' % WS_H)
    both(a, lambda m: a('buffer_store_dwordx4 v[4:7], v2, %s, s3 offen%s' % (srd(S_WS), m)))
    a('s_lshl_b32 s3, s%d, 3' % S_RB)
    a('s_add_u32 s3, s3, s%d' % S_J)
    a('s_lshl_b32 s3, s3, 3')
    a('s_add_u32 s3, s3, s%d' % S_W)
    a('s_lshl_b32 s3, s3, 2')
    a('s_add_u32 s3, s3, 0x%x' % WS_F4)
    a('s_waitcnt vmcnt(0)')
    both(a, lambda m: flag_store(a, 's3', S_TAG, m, 72))
    stamp(a, 21)


L_H, L_ACT, L_ST, L_CS = 65536, 131072, 159744, 160256


def phase45(a):
    D1 = 32
    BB = 8
    G1 = OPT.get('g1', 0)
    w2_base(a, 's55')
    a('s_add_u32 s56, s55, %d' % (112 * 1024))
    def w1rest():
        a('s_add_u32 s54, s54, %d' % (24 * 1024))
        for ks in range(24, 32):
            if ks == 28: a('s_add_u32 s54, s54, 4096')
            a('buffer_load_dwordx4 %s, v2, %s, s54 offen offset:%d sc1' % (vr(w1reg(ks), 4), srd(S_WS), (ks % 4) * 1024))
        a('s_mul_i32 s48, s%d, 7' % S_J)
        a('s_add_u32 s48, s48, s%d' % S_W)
        a('v_lshrrev_b32 v3, 5, v1')
        a('v_lshlrev_b32 v3, 3, v3')
        a('s_lshl_b32 s50, s48, 6')
        for q in range(4):
            a('buffer_load_dwordx2 %s, v3, %s, s50 offen offset:%d' % (vr(64 + 2 * q, 2), srd(S_B1), 16 * q))
    def w2load(q):
        nt, s = q // 14, q % 14
        base = 's55' if nt == 0 else 's56'
        hi = (s // 4) * 4096
        if hi:
            a('s_add_u32 s57, %s, %d' % (base, hi)); base = 's57'
        a('buffer_load_dwordx4 %s, v2, %s, %s offen offset:%d sc1' % (vr(w2_slot_reg(q), 4), srd(S_WS), base, (s % 4) * 1024))
    if G1:
        a('s_cmp_eq_u32 s%d, 7' % S_W)
        a('s_cbranch_scc1 L_g1_now1')
        w1rest()
        a.label('L_g1_now1')
    a('s_lshl_b32 s3, s%d, 3' % S_RB)
    a('s_add_u32 s3, s3, s%d' % S_W)
    a('s_lshl_b32 s3, s3, 5')
    a('s_add_u32 s3, s3, 0x%x' % WS_F4)
    poll8(a, 's3', 72)
    stamp(a, 22)
    a('s_lshl_b32 s43, s%d, 16' % S_RB)
    a('s_lshl_b32 s3, s%d, 12' % S_W)
    a('s_add_u32 s43, s43, s3')
    a('s_add_u32 s43, s43, 0x%x' % WS_H)
    a('s_add_u32 s3, s3, %d' % L_H)
    for mt in range(2):
        a('s_mov_b32 m0, s3')
        a('s_nop 0')
        for k in range(4):
            a('buffer_load_dwordx4 v2, %s, s43 offen offset:%d sc1 lds' % (srd(S_WS), k * 1024))
        if mt == 0:
            a('s_add_u32 s3, s3, 32768'); a('s_add_u32 s43, s43, 32768')
    a('s_cmp_eq_u32 s%d, 7' % S_W)
    a('s_cbranch_scc1 L_g1_stats')
    if G1:
        a('s_waitcnt vmcnt(0)')
    else:
        w1rest()
        for q in range(8): w2load(q)
        a('s_waitcnt vmcnt(20)')
    stamp(a, 23)
    a('s_barrier')
    seq = [(ks, mt) for ks in range(32) for mt in range(2)]
    NB = 6
    def bload(i):
        ks, mt = seq[i]
        a('ds_read_b128 %s, v92 offset:%d' % (vr(BB + 4 * (i % NB), 4), (mt * 32 + ks) * 1024))
    a('v_add_u32 v92, %d, v2' % L_H)
    PF = 5
    for i in range(PF): bload(i)
    nw2 = 0
    for i, (ks, mt) in enumerate(seq):
        if i + PF < len(seq): bload(i + PF)
        rem = min(len(seq), i + PF + 1) - (i + 1)
        if ks == 24 and mt == 0 and not G1:
            a('s_waitcnt vmcnt(%d) lgkmcnt(%d)' % (12 + nw2, rem))
        else:
            a('s_waitcnt lgkmcnt(%d)' % rem)
        a('v_mfma_f32_32x32x16_bf16 %s, %s, %s, %s' % (vr(D1 + 16 * mt, 16), vr(w1reg(ks), 4), vr(BB + 4 * (i % NB), 4),
                                                      '0' if ks == 0 else vr(D1 + 16 * mt, 16)))
        if G1:
            if mt == 1 and ks < 28:
                order = list(range(8)) + list(range(8, 28))
                w2load(order[ks])
        elif mt == 1 and 1 <= ks <= 20:
            w2load(8 + ks - 1); nw2 += 1
        if mt == 1 and ks >= 25:
            colsum(a, [ks - 1], w1reg, False)
    colsum(a, [31], w1reg, False)
    a('v_add_f32 v80, v80, v81')
    a('v_add_f32 v82, v82, v83')
    a('v_add_f32 v80, v80, v82')
    a('v_mov_b32 v81, v80')
    a('v_permlane32_swap_b32 v80, v81')
    a('v_add_f32 v80, v80, v81')
    a('s_lshl_b32 s3, s%d, 7' % S_W)
    a('s_add_u32 s3, s3, %d' % L_CS)
    a('v_and_b32 v93, 31, v1')
    a('v_lshlrev_b32 v93, 2, v93')
    a('v_add_u32 v93, s3, v93')
    a('ds_write_b32 v93, v80')
    a('v_lshrrev_b32 v93, 5, v1')
    a('v_lshlrev_b32 v93, 4, v93')
    a('v_add_u32 v93, s3, v93')
    a('s_waitcnt lgkmcnt(0)')
    for q in range(4):
        a('ds_read_b128 %s, v93 offset:%d' % (vr(72 + 4 * q, 4), 32 * q))
    a('s_branch L_g1_epi')
    a.label('L_g1_stats')
    a.fence(4)
    if G1:
        a('s_waitcnt vmcnt(0)')
        a('s_barrier')
        for q in range(8): w2load(q)
    else:
        for q in range(8): w2load(q)
        a('s_waitcnt vmcnt(8)')
        a('s_barrier')
    a('v_add_u32 v92, %d, v2' % L_H)
    for mt in range(2):
        SA, QA = 64 + 8 * mt, 68 + 8 * mt
        for ks0 in range(0, 32, 4):
            for u in range(4):
                a('ds_read_b128 %s, v92 offset:%d' % (vr(BB + 4 * u, 4), (mt * 32 + ks0 + u) * 1024))
            for u in range(4):
                a('s_waitcnt lgkmcnt(%d)' % (3 - u))
                for k in range(4):
                    first = (ks0 == 0 and u == 0)
                    a('v_dot2_f32_bf16 v%d, v%d, s44, %s' % (SA + k, BB + 4 * u + k, '0' if first else 'v%d' % (SA + k)))
                    a('v_dot2_f32_bf16 v%d, v%d, v%d, %s' % (QA + k, BB + 4 * u + k, BB + 4 * u + k, '0' if first else 'v%d' % (QA + k)))
        for base in (SA, QA):
            a('v_add_f32 v%d, v%d, v%d' % (base, base, base + 1))
            a('v_add_f32 v%d, v%d, v%d' % (base + 2, base + 2, base + 3))
            a('v_add_f32 v%d, v%d, v%d' % (base, base, base + 2))
    for (x, y) in ((64, 72), (68, 76)):
        a('v_permlane32_swap_b32 v%d, v%d' % (x, y))
        a('v_add_f32 v%d, v%d, v%d' % (x, x, y))
    a('s_mov_b32 s45, 0x%x' % f2u(1.0 / 512))
    a('s_mov_b32 s46, 0x%x' % f2u(1e-5))
    a('v_mul_f32 v64, s45, v64')
    a('v_mul_f32 v65, v64, v64')
    a('v_fma_f32 v68, v68, s45, -v65')
    a('v_add_f32 v68, s46, v68')
    a('v_rsq_f32 v68, v68')
    a('s_mov_b32 s45, 0x%x' % f2u(LOG2E))
    a('v_mul_f32 v68, s45, v68')
    a('v_mul_f32_e64 v69, -v64, v68')
    a('v_lshlrev_b32 v93, 3, v1')
    a('v_add_u32 v93, %d, v93' % L_ST)
    a('ds_write_b64 v93, v[68:69]')
    if OPT.get('wb'):
        if OPT['wb'] == 1:
            a('s_cmp_ge_u32 s2, 8')
            a('s_cbranch_scc1 L_g1_epi')
        a('buffer_wbl2 sc1')
    a.label('L_g1_epi')
    a.fence(12)
    stamp(a, 24)
    a('s_waitcnt lgkmcnt(0)')
    a('s_barrier')
    a('s_cmp_eq_u32 s%d, 7' % S_W)
    a('s_cbranch_scc1 L_g1_done')
    a('v_and_b32 v88, 31, v1')
    a('v_lshlrev_b32 v88, 3, v88')
    a('v_add_u32 v88, %d, v88' % L_ST)
    a('ds_read_b64 v[90:91], v88 offset:256')
    a('ds_read_b64 v[88:89], v88')
    a('s_waitcnt vmcnt(28)')
    for q in range(4):
        for e in range(2):
            a('v_lshlrev_b32 v%d, 16, v%d' % (8 + 4 * q + 2 * e, 64 + 2 * q + e))
            a('v_and_b32 v%d, 0xffff0000, v%d' % (8 + 4 * q + 2 * e + 1, 64 + 2 * q + e))
    a('s_mov_b32 s58, 0x%x' % f2u(LOG2E))
    a('s_mov_b32 s59, s58')
    for k in range(8):
        a('v_pk_mul_f32 v[%d:%d], v[%d:%d], s[58:59]' % (8 + 2 * k, 9 + 2 * k, 8 + 2 * k, 9 + 2 * k))
    a('s_lshl_b32 s3, s%d, 3' % S_RB)
    a('s_add_u32 s3, s3, s%d' % S_J)
    a('s_mul_i32 s3, s3, 28')
    a('s_lshl_b32 s43, s%d, 1' % S_W)
    a('s_add_u32 s3, s3, s43')
    a('s_lshl_b32 s3, s3, 10')
    a('s_add_u32 s48, s3, 0x%x' % WS_P)
    a('s_add_u32 s49, s48, %d' % (14 * 1024))
    a('s_mov_b32 s60, 0.5'); a('s_mov_b32 s61, 0.5')
    a('s_waitcnt lgkmcnt(0)')
    P2 = lambda r: 'v[%d:%d]' % (r, r + 1)
    for mt in range(2):
        RS = 88 + 2 * mt
        for g in range(0, 16, 8):
            d = D1 + 16 * mt + g
            T, U = 24, 64
            for k in range(4):
                a('v_pk_fma_f32 %s, %s, %s, %s op_sel:[0,1,0] op_sel_hi:[1,1,1]' % (P2(T + 2 * k), P2(72 + g + 2 * k), P2(RS), P2(8 + g + 2 * k)))
            for k in range(4):
                a('v_pk_fma_f32 %s, %s, %s, %s op_sel:[0,0,0] op_sel_hi:[1,0,1]' % (P2(d + 2 * k), P2(d + 2 * k), P2(RS), P2(T + 2 * k)))
            for k in range(8): a('v_exp_f32 v%d, v%d' % (T + k, d + k))
            for k in range(4):
                a('v_pk_fma_f32 %s, %s, s[60:61], 1.0 op_sel_hi:[1,1,0]' % (P2(U + 2 * k), P2(T + 2 * k)))
            for k in range(4):
                a('v_pk_fma_f32 %s, %s, %s, 1.0 op_sel_hi:[1,1,0]' % (P2(U + 2 * k), P2(T + 2 * k), P2(U + 2 * k)))
            for k in range(8): a('v_rcp_f32 v%d, v%d' % (U + k, U + k))
            for k in range(4):
                a('v_pk_fma_f32 %s, %s, %s, %s neg_lo:[1,0,0] neg_hi:[1,0,0]' % (P2(d + 2 * k), P2(d + 2 * k), P2(U + 2 * k), P2(d + 2 * k)))
            TO = 72 + 8 * mt + 4 * (g // 8)
            TO = 176 + 8 * mt + 4 * (g // 8)
            for k in range(4):
                a('v_cvt_pk_bf16_f32 v%d, v%d, v%d' % (TO + k, d + 2 * k, d + 2 * k + 1))
            st = lambda m, TO=TO, mt=mt, g=g: a('buffer_store_dwordx4 %s, v2, %s, s%d offen offset:%d%s' % (vr(TO, 4), srd(S_WS), 48 + mt, (g // 8) * 1024, m))
            if OPT.get('asc1') == 2: both(a, lambda m: st(m + ' nt'))
            elif OPT.get('asc1') == 3: st(' sc1 nt')
            elif OPT.get('asc1') == 4: both(a, lambda m: st(' sc1' if m else ' sc0'))
            elif OPT.get('asc1'): st(' sc1')
            else: both(a, st)
    a.label('L_g1_done')
    a.fence(4)
    stamp(a, 25)
    a('s_lshl_b32 s3, s%d, 3' % S_RB)
    a('s_add_u32 s3, s3, s%d' % S_J)
    a('s_lshl_b32 s3, s3, 3')
    a('s_add_u32 s3, s3, s%d' % S_W)
    a('s_lshl_b32 s3, s3, 2')
    a('s_add_u32 s3, s3, 0x%x' % WS_F5)
    fm = lambda f: both(a, f)
    if OPT.get('split'):
        a('s_waitcnt vmcnt(2)')
        fm(lambda m: flag_store(a, 's3', S_TAG, m, 72))
        a('s_add_u32 s3, s3, 0x%x' % (WS_F5B - WS_F5))
        a('s_waitcnt vmcnt(1)')
        fm(lambda m: flag_store(a, 's3', S_TAG, m, 72))
    else:
        a('s_waitcnt vmcnt(0)')
        both(a, lambda m: flag_store(a, 's3', S_TAG, m, 72))
    stamp(a, 26)
    a('s_lshl_b32 s3, s%d, 3' % S_RB)
    a('s_add_u32 s3, s3, s%d' % S_W)
    a('s_mul_i32 s18, s3, %d' % (28 * 1024))
    a('s_add_u32 s18, s18, 0x%x' % WS_P)
    a('s_add_u32 s19, s18, %d' % (14 * 1024))
    a('s_lshl_b32 s3, s3, 5')
    a('s_add_u32 s3, s3, 0x%x' % WS_F5)
    poll8(a, 's3', 72)
    stamp(a, 27)
    D2, B2, NB2 = 8, 176, 12
    seq = [(s_, mt) for s_ in range(14) for mt in range(2)]
    if OPT.get('split'): seq = [(s_, mt) for mt in range(2) for s_ in range(14)]
    def bload2(i):
        s_, mt = seq[i]
        base = 18 + mt
        if s_ in (4, 8, 12): a('s_add_u32 s%d, s%d, 4096' % (base, base))
        a('buffer_load_dwordx4 %s, v2, %s, s%d offen offset:%d sc1' % (vr(B2 + 4 * (i % NB2), 4), srd(S_WS), base, (s_ % 4) * 1024))
    if OPT.get('split'): a('s_add_u32 s50, s3, 0x%x' % (WS_F5B - WS_F5))
    for i in range(NB2): bload2(i)
    if OPT.get('split'): poll8(a, 's50', 72)
    W2B = OPT.get('wb2', 0)
    for i, (s_, mt) in enumerate(seq):
        issued = min(len(seq), i + NB2)
        if W2B and i == len(seq) - NB2:
            lw = uid('L_wb2')
            a('s_cmp_lg_u32 s%d, %d' % (S_W, 7 if W2B != 3 else 0))
            a('s_cbranch_scc1 %s' % lw)
            if W2B in (1, 3):
                a('s_cmp_ge_u32 s2, 8')
            else:
                a('s_cmp_lg_u32 s%d, 0' % S_J)
            a('s_cbranch_scc1 %s' % lw)
            a('buffer_wbl2 sc1')
            for i2 in range(i, len(seq)):
                s2_, mt2 = seq[i2]
                a('s_waitcnt vmcnt(%d)' % (len(seq) - (i2 + 1) + 1))
                for nt in range(2):
                    acc = D2 + 16 * (2 * nt + mt2)
                    a('v_mfma_f32_32x32x16_bf16 %s, %s, %s, %s' % (vr(acc, 16), vr(w2_slot_reg(nt * 14 + s2_), 4), vr(B2 + 4 * (i2 % NB2), 4), vr(acc, 16)))
            a('s_branch L_g2_done')
            a.label(lw)
        a('s_waitcnt vmcnt(%d)' % (issued - (i + 1)))
        for nt in range(2):
            acc = D2 + 16 * (2 * nt + mt)
            a('v_mfma_f32_32x32x16_bf16 %s, %s, %s, %s' % (vr(acc, 16), vr(w2_slot_reg(nt * 14 + s_), 4), vr(B2 + 4 * (i % NB2), 4),
                                                          '0' if s_ == 0 else vr(acc, 16)))
        if i + NB2 < len(seq): bload2(i + NB2)
    a.label('L_g2_done')
    a.fence(2)
    stamp(a, 28)
    a('s_lshr_b32 s48, s%d, 2' % S_W)
    a('s_lshl_b32 s48, s48, 2')
    a('s_and_b32 s49, s%d, 1' % S_W)
    a('s_lshl_b32 s49, s49, 1')
    a('s_bfe_u32 s50, s%d, 0x10001' % S_W)
    a('s_add_u32 s48, s48, s49')
    a('s_add_u32 s48, s48, s50')
    a('s_lshl_b32 s3, s%d, 11' % S_W)
    a('v_add_u32 v72, s3, v2')
    a('v_add_u32 v73, 0x10000, v72')
    a.fence(12)
    for p_ in range(8):
        nt, mt, hf = p_ >> 2, (p_ >> 1) & 1, p_ & 1
        r = D2 + 16 * (2 * nt + mt) + 8 * hf
        lo, ln = uid('L_own'), uid('L_nx')
        a('s_cmp_eq_u32 s48, %d' % p_)
        a('s_cbranch_scc1 %s' % lo)
        vb, off = (72, p_ * 16384) if p_ < 4 else (73, (p_ - 4) * 16384)
        a('ds_write_b128 v%d, %s offset:%d' % (vb, vr(r, 4), off))
        a('ds_write_b128 v%d, %s offset:%d' % (vb, vr(r + 4, 4), off + 1024))
        a('s_branch %s' % ln)
        a.label(lo)
        for k in range(8): a('v_mov_b32 v%d, v%d' % (80 + k, r + k))
        a.label(ln)
    a('s_lshl_b32 s3, s48, 14')
    a('v_add_u32 v74, s3, v2')
    for k in range(4):
        a('v_lshlrev_b32 v%d, 16, v%d' % (88 + 2 * k, 4 + k))
        a('v_and_b32 v%d, 0xffff0000, v%d' % (89 + 2 * k, 4 + k))
    a('s_waitcnt lgkmcnt(0)')
    a('s_barrier')
    stamp(a, 29)
    for d in range(1, 8):
        a('s_add_u32 s3, s%d, %d' % (S_W, d))
        a('s_and_b32 s3, s3, 7')
        a('s_lshl_b32 s3, s3, 11')
        a('v_add_u32 v75, s3, v74')
        a('ds_read_b128 %s, v75' % vr(8 + 8 * (d - 1), 4))
        a('ds_read_b128 %s, v75 offset:1024' % vr(12 + 8 * (d - 1), 4))
    P2 = lambda r: 'v[%d:%d]' % (r, r + 1)
    for d in range(1, 8):
        a('s_waitcnt lgkmcnt(%d)' % (2 * (7 - d)))
        for k in range(4):
            a('v_pk_add_f32 %s, %s, %s' % (P2(80 + 2 * k), P2(80 + 2 * k), P2(8 + 8 * (d - 1) + 2 * k)))
    a('s_mov_b32 s3, 0x%x' % f2u(1.0 / LOG2E))
    for k in range(8): a('v_fma_f32 v%d, v%d, s3, v%d' % (80 + k, 80 + k, 88 + k))
    for k in range(4): a('v_cvt_pk_bf16_f32 v%d, v%d, v%d' % (8 + k, 80 + 2 * k, 81 + 2 * k))
    a('v_permlane32_swap_b32 v8, v10')
    a('v_permlane32_swap_b32 v9, v11')
    a('v_and_b32 v13, 31, v1')
    a('v_lshrrev_b32 v14, 5, v1')
    a('v_lshlrev_b32 v13, 10, v13')
    a('v_lshl_add_u32 v13, v14, 4, v13')
    a('buffer_store_dwordx4 v[8:11], v13, %s, s53 offen%s' % (srd(S_OUT), {0: '', 1: ' sc1', 2: ' nt', 3: ' sc1 nt'}[OPT.get('osc1', 0)]))
    a('s_cmp_lg_u32 s2, 0')
    a('s_cbranch_scc1 L_ep_done')
    a('s_cmp_lg_u32 s%d, 0' % S_W)
    a('s_cbranch_scc1 L_ep_done')
    a('s_mov_b32 s3, 0x%x' % WS_EPOCH)
    flag_store(a, 's3', S_E1, ' sc1', 72)
    a.label('L_ep_done')


def gen_fused(force_slow=False):
    n = NAME + '_kernel'
    text = HEADER + '; @launch grid=(256,1,1) block=(512,1,1) lds=163840\n'
    text += '.amdgcn_target "amdgcn-amd-amdhsa--gfx950"\n.text\n'
    a = Asm()
    end = 'L_end'
    setup(a, end)
    if STAMPS: a('v_mov_b32 v%d, 0' % STAMP_V)
    stamp(a, 0)
    phase1(a)
    phase2(a, force_slow)
    phase3(a)
    phase45(a)
    if STAMPS:
        a('s_waitcnt vmcnt(0)')
        stamp(a, 31)
        stamp_flush(a)
    if not OPT.get('noend'): a('s_waitcnt vmcnt(0)')
    a.label(end)
    a('s_endpgm')
    text += G.kernel_wrap(n, a.text())
    text += '.section .rodata,"a"\n.p2align 6\n' + G.desc(n)
    return text


if __name__ == '__main__':
    out = sys.argv[1] if len(sys.argv) > 1 else 'cdna_kernels/%s.s' % NAME
    for t in sys.argv[2:]:
        if '=' in t:
            k, v = t.split('='); OPT[k] = int(v)
        else:
            OPT[t] = 1
    STAMPS = 'stamps' in OPT
    t = gen_fused(force_slow='slow' in OPT)
    open(out, 'w').write(t)
    print('wrote', out, len(t))
```

```python
import sys, os
sys.path.insert(0, os.path.dirname(__file__))
from asmlib import Asm
import gen as G
from gen import (NAME, f2u, srd, vr, mk_srd, ln_stats, ln_apply, LOG2E, LIMIT2,
                 S_X, S_WQ, S_WKV, S_B1, S_OUT, S_WS, S_J, S_RB, S_W,
                 WS_KMAX, WS_WO, WS_W1, WS_W2, WS_O, WS_H, WS_P, WS_STAMP, WS_SIZE, HEADER)

WS_F1 = 0x30000
WS_F2 = 0x30400
WS_F3 = 0x31000
WS_F4 = 0x33000
WS_F5 = 0x35000
WS_EPOCH = 0x37000
WS_F5B = 0x38000
S_TAG, S_FAST, S_E1, S_F1V = 100, 101, 16, 17
OPT = {}
STAMPS = False
STAMP_V = 0
SPIN = 1 << 17
_uid = [0]


def uid(p):
    _uid[0] += 1
    return '%s_%d' % (p, _uid[0])


def stamp(a, idx):
    if not STAMPS: return
    a('s_waitcnt lgkmcnt(0)')
    a('s_memtime s[96:97]')
    a('s_memrealtime s[98:99]')
    a('s_waitcnt lgkmcnt(0)')
    a('v_writelane_b32 v%d, s96, %d' % (STAMP_V, idx))
    a('v_writelane_b32 v%d, s98, %d' % (STAMP_V, idx + 32))


def stamp_flush_dbg(a):
    sel = [(0, 1), (0, 0), (12, 0), (16, 0), (17, 0), (21, 0), (23, 0), (24, 0), (26, 0), (27, 0), (28, 0), (29, 0), (31, 0), (31, 1), (4, 0), (9, 0)]
    for i, (idx, neg) in enumerate(sel):
        a('v_readlane_b32 s3, v%d, %d' % (STAMP_V, idx + 32))
        if neg: a('s_not_b32 s3, s3')
        a('s_nop 3')
        a('v_writelane_b32 v4, s3, %d' % i)
    a('v_lshlrev_b32 v3, 2, v1')
    a('s_mov_b64 exec, 0xffff')
    a('global_atomic_umax v3, v4, s[22:23]')
    a('s_mov_b64 exec, -1')


def stamp_flush(a):
    if not STAMPS: return
    if OPT.get('dbg'):
        stamp_flush_dbg(a); return
    a('s_lshl_b32 s3, s2, 11')
    a('s_lshl_b32 s43, s%d, 8' % S_W)
    a('s_add_u32 s3, s3, s43')
    a('s_add_u32 s3, s3, 0x%x' % WS_STAMP)
    a('v_lshlrev_b32 v3, 2, v1')
    a('buffer_store_dword v%d, v3, %s, s3 offen' % (STAMP_V, srd(S_WS)))


def both(a, fn):
    if OPT.get('nofast'):
        fn(' sc1'); return
    ls, ld = uid('L_sl'), uid('L_dn')
    a('s_cmp_eq_u32 s%d, 0' % S_FAST)
    a('s_cbranch_scc1 %s' % ls)
    fn('')
    a('s_branch %s' % ld)
    a.label(ls)
    fn(' sc1')
    a.label(ld)


def flag_store(a, soff, val, mod, vt):
    a('v_mov_b32 v%d, s%d' % (vt, val))
    a('s_mov_b64 exec, 1')
    a('buffer_store_dword v%d, off, %s, %s%s' % (vt, srd(S_WS), soff, mod))
    a('s_mov_b64 exec, -1')


def poll8(a, soff, vt, sleep=True):
    l, d = uid('L_poll'), uid('L_pd')
    a('v_and_b32 v%d, 7, v1' % (vt + 1))
    a('v_lshlrev_b32 v%d, 2, v%d' % (vt + 1, vt + 1))
    a('s_mov_b32 s43, %d' % SPIN)
    a.label(l)
    a('buffer_load_dword v%d, v%d, %s, %s offen sc1' % (vt, vt + 1, srd(S_WS), soff))
    a('s_waitcnt vmcnt(0)')
    a('v_cmp_ne_u32 vcc, s%d, v%d' % (S_TAG, vt))
    a('s_cbranch_vccz %s' % d)
    a('s_sub_u32 s43, s43, 1')
    a('s_cmp_lg_u32 s43, 0')
    a('s_cbranch_scc1 %s' % l)
    a.label(d)


def check256(a, vt):
    for k in range(4):
        a('v_xor_b32 v%d, s%d, v%d' % (vt + k, S_TAG, vt + k))
    a('v_or3_b32 v%d, v%d, v%d, v%d' % (vt, vt, vt + 1, vt + 2))
    a('v_or_b32 v%d, v%d, v%d' % (vt, vt, vt + 3))
    a('v_cmp_le_u32 vcc, 16, v%d' % vt)


def poll256(a, base, vt, first_loaded=False):
    l, d, c = uid('L_poll'), uid('L_pd'), uid('L_pc')
    a('s_mov_b32 s43, %d' % SPIN)
    a('s_mov_b32 s3, 0x%x' % base)
    if first_loaded:
        a('s_branch %s' % c)
    a.label(l)
    a('buffer_load_dwordx4 %s, v2, %s, s3 offen sc1' % (vr(vt, 4), srd(S_WS)))
    a.label(c)
    a('s_waitcnt vmcnt(0)')
    check256(a, vt)
    a('s_cbranch_vccz %s' % d)
    a('s_sub_u32 s43, s43, 1')
    a('s_cmp_lg_u32 s43, 0')
    a('s_sleep %d' % OPT.get('slp', 2))
    a('s_cbranch_scc1 %s' % l)
    a.label(d)


def setup(a, endlabel):
    a('s_cmp_ge_u32 s2, 256')
    a('s_cbranch_scc1 %s' % endlabel)
    a('s_load_dwordx16 s[64:79], s[0:1], 0')
    a('s_load_dwordx8 s[80:87], s[0:1], 64')
    a('v_lshrrev_b32 v2, 6, v0')
    a('v_and_b32 v1, 63, v0')
    a('v_readfirstlane_b32 s%d, v2' % S_W)
    a('v_lshlrev_b32 v2, 4, v1')
    a('s_lshr_b32 s%d, s2, 3' % S_J)
    a('s_and_b32 s%d, s%d, 7' % (S_J, S_J))
    a('s_and_b32 s%d, s2, 7' % S_RB)
    a('s_lshl_b32 s%d, s%d, 2' % (S_RB, S_RB))
    a('s_lshr_b32 s3, s2, 6')
    a('s_add_u32 s%d, s%d, s3' % (S_RB, S_RB))
    a('s_getreg_b32 s%d, hwreg(HW_REG_XCC_ID, 0, 4)' % S_F1V)
    a('s_waitcnt lgkmcnt(0)')
    a('s_load_dword s%d, s[86:87], 0x%x' % (S_E1, WS_EPOCH))
    if OPT.get('dbg'):
        a('s_mov_b32 s22, s84'); a('s_mov_b32 s23, s85')
    mk_srd(a, S_X, 64, 2048 * 512 * 2)
    a('s_bitcmp1_b32 s%d, 0' % S_J)
    a('s_cselect_b32 s%d, s70, s68' % S_WKV)
    a('s_cselect_b32 s%d, s71, s69' % (S_WKV + 1))
    a('s_mov_b32 s%d, 0x%x' % (S_WKV + 2, 512 * 16 * 2))
    a('s_mov_b32 s%d, 0x20000' % (S_WKV + 3))
    mk_srd(a, S_WQ, 66, 512 * 512 * 2)
    mk_srd(a, S_WS, 86, WS_SIZE)
    mk_srd(a, S_B1, 78, 1792 * 2)
    mk_srd(a, S_OUT, 82, 2048 * 512 * 2)


L_WKV, L_X, L_WQ = 0, 32768, 98304
TS_ = 2064
KVB = 16256
L_QX = 0
L_BC = 16128
L_TBA, L_TBB = 148480, 4096
CTRL = 7


def tb_setup(a):
    a('s_cmp_lt_u32 s2, 112')
    a('s_cbranch_scc1 L_tb_w1')
    a('s_cmp_lt_u32 s2, 224')
    a('s_cbranch_scc1 L_tb_w2')
    a('s_sub_u32 s3, s2, 224')
    a('s_mov_b32 s52, s72'); a('s_mov_b32 s53, s73'); a('s_mov_b32 s54, 0x%x' % (512 * 512 * 2))
    a('s_mov_b32 s56, 1024')
    a('s_and_b32 s60, s3, 3'); a('s_lshr_b32 s61, s3, 2')
    a('s_mov_b32 s59, %d' % (32 * 1024))
    a('s_mov_b32 s62, 0x%x' % WS_WO)
    a('s_branch L_tb_go')
    a.label('L_tb_w1')
    a('s_mov_b32 s52, s76'); a('s_mov_b32 s53, s77'); a('s_mov_b32 s54, 0x%x' % (512 * 1792 * 2))
    a('s_mov_b32 s56, 3584')
    a('s_and_b32 s60, s2, 3'); a('s_lshr_b32 s61, s2, 2')
    a('s_mov_b32 s59, %d' % (32 * 1024))
    a('s_mov_b32 s62, 0x%x' % WS_W1)
    a('s_branch L_tb_go')
    a.label('L_tb_w2')
    a('s_sub_u32 s3, s2, 112')
    a('s_mov_b32 s52, s80'); a('s_mov_b32 s53, s81'); a('s_mov_b32 s54, 0x%x' % (1792 * 512 * 2))
    a('s_mov_b32 s56, 1024')
    a('s_lshr_b32 s60, s3, 3'); a('s_and_b32 s61, s3, 7')
    a('s_mov_b32 s59, %d' % (112 * 1024))
    a('s_mov_b32 s62, 0x%x' % WS_W2)
    a.label('L_tb_go')
    a('s_mov_b32 s55, 0x20000')
    a('s_lshl_b32 s3, s60, 7')
    a('s_lshl_b32 s43, s%d, 4' % S_W)
    a('s_add_u32 s3, s3, s43')
    a('s_mul_i32 s57, s3, s56')
    a('s_lshl_b32 s3, s61, 7')
    a('s_add_u32 s57, s57, s3')
    a('s_lshl_b32 s3, s61, 1')
    a('s_mul_i32 s58, s3, s59')
    a('s_add_u32 s58, s58, s62')
    a('s_lshl_b32 s3, s60, 3')
    a('s_add_u32 s3, s3, s%d' % S_W)
    a('s_lshl_b32 s3, s3, 10')
    a('s_add_u32 s58, s58, s3')
    a('s_lshl_b32 s60, s%d, 11' % S_W)
    a('s_cmp_lt_u32 s%d, 4' % S_W)
    a('s_mov_b32 s3, %d' % L_TBA)
    a('s_cselect_b32 s3, s3, 0x%x' % ((L_TBB - 4 * 2048) & 0xffffffff))
    a('s_add_u32 s60, s60, s3')


def swz_off(a, vr_, vp):
    a('v_lshrrev_b32 v%d, 3, v1' % vr_)
    a('v_and_b32 v%d, 7, v1' % vp)
    a('v_lshlrev_b32 v%d, 1, v%d' % (vp + 1, vr_))
    a('v_and_b32 v%d, 4, v%d' % (vp + 1, vp + 1))
    a('v_xor_b32 v%d, v%d, v%d' % (vp, vp, vp + 1))
    a('v_lshlrev_b32 v%d, 4, v%d' % (vp, vp))


def phase1(a):
    XR, XQ = 32, 40
    TS, TQ, TT = 8, 16, 24
    QR = [90, 91, 92, 93, 94, 95, 63]
    a('s_lshr_b32 s47, s%d, 1' % S_J)
    a('s_lshl_b32 s47, s47, 4')
    a('s_lshl_b32 s88, s%d, 1' % S_W)
    a('s_add_u32 s88, s88, s47')
    a('s_add_u32 s89, s88, 1')
    a('s_lshl_b32 s48, s%d, 16' % S_RB)
    def xload(sr, v):
        a('s_lshl_b32 s43, s%d, 10' % sr)
        a('s_add_u32 s43, s43, s48')
        a('buffer_load_dwordx4 %s, v2, %s, s43 offen' % (vr(v, 4), srd(S_X)))
    def ipf():
        a('s_getpc_b64 s[90:91]')
        a.label('L_pc')
        a('v_lshlrev_b32 v8, 7, v1')
        a('s_lshl_b32 s3, s%d, 13' % S_W)
        a('v_add_u32 v8, s3, v8')
        a('s_mov_b32 s3, L_end-L_pc-4')
        a('v_min_u32 v8, s3, v8')
        a('v_mov_b32 v9, s91')
        a('v_add_co_u32 v8, vcc, s90, v8')
        a('v_addc_co_u32 v9, vcc, 0, v9, vcc')
        a('global_load_dword v10, v[8:9], off')
    if OPT.get('ipf') == 1: ipf()
    xload(88, XR); xload(89, XR + 4)
    KVP = OPT.get('kvpre', 0)
    if KVP:
        a('s_cmp_lg_u32 s%d, %d' % (S_W, CTRL))
        a('s_cbranch_scc1 L_p1_nowkv')
        for g in range(4):
            a('s_mov_b32 s43, %d' % (g * 4096))
            a('s_mov_b32 m0, s43')
            a('s_nop 0')
            for k in range(4):
                a('buffer_load_dwordx4 v2, %s, s43 offen offset:%d lds' % (srd(S_WKV), k * 1024))
        a.label('L_p1_nowkv')
    else:
        a('s_lshl_b32 s43, s%d, 11' % S_W)
        a('s_mov_b32 m0, s43')
        a('buffer_load_dwordx4 v2, %s, s43 offen lds' % srd(S_WKV))
        a('buffer_load_dwordx4 v2, %s, s43 offen offset:1024 lds' % srd(S_WKV))
    def qrows():
        a('s_cmp_eq_u32 s%d, %d' % (S_W, CTRL))
        a('s_cbranch_scc1 L_p1_noq')
        for t in range(7):
            r = QR[t]
            a('s_mul_i32 s%d, s%d, 7' % (r, S_W))
            a('s_add_u32 s%d, s%d, %d' % (r, r, t))
            if t == 6: a('s_min_u32 s%d, s%d, 47' % (r, r))
            a('s_add_u32 s43, s%d, 16' % r)
            a('s_cmp_lt_u32 s%d, s47' % r)
            a('s_cselect_b32 s%d, s%d, s43' % (r, r))
            xload(r, XQ + 4 * t)
        a.label('L_p1_noq')
    P1Q = OPT.get('p1q', 0)
    if not P1Q: qrows()
    a('s_mov_b32 s44, 0x3f803f80')
    a('s_mov_b32 s45, 0x%x' % f2u(1.0 / 512))
    a('s_mov_b32 s46, 0x%x' % f2u(1e-5))
    tb_setup(a)
    swz_off(a, 3, 4)
    a('v_lshl_add_u32 v5, v3, 10, v4')
    stamp(a, 1)
    if P1Q:
        if KVP:
            a('s_cmp_eq_u32 s%d, %d' % (S_W, CTRL))
            a('s_cbranch_scc1 L_p1_w7')
            a('s_waitcnt vmcnt(0) lgkmcnt(0)')
            a('s_branch L_p1_w')
            a.label('L_p1_w7')
            a('s_waitcnt vmcnt(16) lgkmcnt(0)')
            a.label('L_p1_w')
        else:
            a('s_waitcnt vmcnt(2) lgkmcnt(0)')
        qrows()
    else:
        a('s_cmp_eq_u32 s%d, %d' % (S_W, CTRL))
        a('s_cbranch_scc1 L_p1_w7')
        a('s_waitcnt vmcnt(9) lgkmcnt(0)')
        a('s_branch L_p1_w')
        a.label('L_p1_w7')
        a('s_waitcnt vmcnt(2) lgkmcnt(0)')
        a.label('L_p1_w')
    a('s_mul_i32 s%d, s%d, 0x9E3779B1' % (S_TAG, S_E1))
    a('s_add_u32 s%d, s%d, 0x7F4A7C15' % (S_TAG, S_TAG))
    a('s_and_b32 s%d, s%d, 0xFFFFFFF0' % (S_TAG, S_TAG))
    a('s_or_b32 s%d, s%d, s%d' % (S_F1V, S_F1V, S_TAG))
    a('s_add_u32 s%d, s%d, 1' % (S_E1, S_E1))
    stamp(a, 2)
    SB = 72
    ln_stats(a, [XR, XR + 4], TS, TQ, SB)
    def xstore(sr, v):
        a('s_lshl_b32 s3, s%d, 10' % sr)
        a('s_and_b32 s43, s%d, 15' % sr)
        a('s_lshl_b32 s43, s43, 4')
        a('s_add_u32 s3, s3, s43')
        a('s_add_u32 s3, s3, %d' % L_X)
        a('v_xor_b32 v7, s3, v2')
        a('ds_write_b128 v7, %s' % vr(v, 4))
    for i in range(2):
        ln_apply(a, XR + 4 * i, SB + 2 * i, TT)
        xstore(88 + i, XR + 4 * i)
    a('s_cmp_eq_u32 s%d, %d' % (S_W, CTRL))
    a('s_cbranch_scc1 L_p1_w7b')
    a('s_waitcnt vmcnt(7) lgkmcnt(0)')
    stamp(a, 3)
    a('s_barrier')
    stamp(a, 4)
    a('s_lshl_b32 s49, s%d, 13' % S_W)
    a('s_lshl_b32 s43, s%d, 7' % S_J)
    a('s_add_u32 s49, s49, s43')
    a('s_lshl_b32 s50, s%d, 10' % S_W)
    a('s_add_u32 s50, s50, %d' % L_WQ)
    nq = [0]
    def wq(n=1):
        for _ in range(n):
            a('s_mov_b32 m0, s50')
            a('s_add_u32 s50, s50, %d' % (7 * 1024))
            a('buffer_load_dwordx4 v5, %s, s49 offen lds' % srd(S_WQ))
            a('s_add_u32 s49, s49, %d' % (7 * 8192))
            nq[0] += 1
    wq(2)
    a('s_waitcnt vmcnt(5)')
    rows = [XQ + 4 * t for t in range(7)]
    ln_stats(a, rows[0:4], TS, TQ, SB)
    wq(2)
    for t in range(4):
        ln_apply(a, rows[t], SB + 2 * t, TT)
        xstore(QR[t], rows[t])
        if t % 2 == 1: wq(1)
    a('s_waitcnt vmcnt(6)')
    ln_stats(a, [rows[4], rows[5], rows[6], rows[3]], TS, TQ, SB)
    wq(2)
    for t in range(4, 7):
        ln_apply(a, rows[t], SB + 2 * (t - 4), TT)
        xstore(QR[t], rows[t])
        if t == 4: wq(1)
    assert nq[0] == 9
    a('s_cmp_lg_u32 s%d, 0' % S_W)
    a('s_cbranch_scc1 L_p1_wq9')
    wq(1)
    a.label('L_p1_wq9')
    stamp(a, 7)
    a('s_waitcnt vmcnt(0) lgkmcnt(0)')
    stamp(a, 8)
    a('s_barrier')
    stamp(a, 9)
    a('s_cmp_ge_u32 s%d, 4' % S_W)
    a('s_cbranch_scc1 L_q_done')
    a('s_and_b32 s48, s%d, 1' % S_W)
    a('s_lshr_b32 s49, s%d, 1' % S_W)
    a('v_lshrrev_b32 v8, 5, v1')
    a('v_bfe_u32 v9, v1, 4, 1')
    a('v_bfe_u32 v10, v1, 2, 2')
    a('v_and_b32 v11, 3, v1')
    a('v_lshrrev_b32 v12, 1, v11')
    a('v_lshl_add_u32 v12, v9, 1, v12')
    a('v_lshrrev_b32 v13, 1, v10')
    a('v_lshlrev_b32 v13, 2, v13')
    a('v_xor_b32 v12, v12, v13')
    a('v_lshlrev_b32 v12, 4, v12')
    a('v_and_b32 v11, 1, v11')
    a('v_lshl_add_u32 v12, v11, 3, v12')
    a('v_lshl_add_u32 v13, v8, 3, v10')
    a('v_lshl_add_u32 v13, v13, 7, v12')
    a('s_lshl_b32 s43, s48, 6')
    a('v_xor_b32 v13, s43, v13')
    a('v_add_u32 v13, %d, v13' % L_WQ)
    a('v_and_b32 v16, 31, v1')
    a('v_and_b32 v17, 15, v1')
    a('v_xor_b32 v17, v17, v8')
    a('v_lshlrev_b32 v17, 4, v17')
    a('v_lshl_add_u32 v17, v16, 10, v17')
    a('s_lshl_b32 s3, s49, 15')
    a('s_add_u32 s3, s3, %d' % L_X)
    a('v_add_u32 v24, s3, v17')
    for q in range(1, 8):
        a('v_xor_b32 v%d, %d, v24' % (24 + q, 32 * q))
    QA, QB, QD, NR, PF = 64, 128, 32, 8, 4
    def qload(s):
        a('ds_read_b64_tr_b16 %s, v13 offset:%d' % (vr(QA + 4 * (s % NR), 2), 2048 * s))
        a('ds_read_b64_tr_b16 %s, v13 offset:%d' % (vr(QA + 4 * (s % NR) + 2, 2), 2048 * s + 512))
        a('ds_read_b128 %s, v%d offset:%d' % (vr(QB + 4 * (s % NR), 4), 24 + s % 8, (s // 8) * 256))
    for s in range(PF): qload(s)
    for s in range(32):
        if s + PF < 32: qload(s + PF)
        rem = min(32, s + PF + 1) - (s + 1)
        a('s_waitcnt lgkmcnt(%d)' % min(15, 3 * rem))
        a('v_mfma_f32_32x32x16_bf16 %s, %s, %s, %s' % (vr(QD, 16), vr(QA + 4 * (s % NR), 4), vr(QB + 4 * (s % NR), 4), '0' if s == 0 else vr(QD, 16)))
    a('s_mov_b32 s3, 0x%x' % f2u(0.25 * LOG2E))
    a('s_lshl_b32 s43, s%d, 10' % S_W)
    a('v_add_u32 v8, s43, v2')
    a.fence(12)
    for k in range(16):
        a('v_mul_f32 v%d, s3, v%d' % (QD + k, QD + k))
    for k in range(4):
        a('v_cvt_pk_bf16_f32 v%d, v%d, v%d' % (8 + 4 + k, QD + 8 + 2 * k, QD + 9 + 2 * k))
    a('ds_write_b128 v8, v[12:15] offset:%d' % L_QX)
    for k in range(4):
        a('v_cvt_pk_bf16_f32 v%d, v%d, v%d' % (R_Q + k, QD + 2 * k, QD + 2 * k + 1))
    a.label('L_q_done')
    a('s_waitcnt lgkmcnt(0)')
    stamp(a, 11)
    a('s_barrier')
    a('s_branch L_p1_end')
    a.label('L_p1_w7b')
    a.fence(4)
    a('s_waitcnt vmcnt(0) lgkmcnt(0)')
    if not KVP:
        stamp(a, 3)
        a('s_barrier')
        stamp(a, 4)
    KW, KX = 64, 128
    a('v_lshrrev_b32 v8, 4, v1')
    a('v_and_b32 v9, 15, v1')
    a('v_lshlrev_b32 v10, 8, v8')
    a('v_lshl_add_u32 v10, v9, 3, v10')
    a('v_xor_b32 v11, v8, v9')
    a('v_lshlrev_b32 v11, 4, v11')
    a('v_add_u32 v12, s47, v9')
    a('v_lshlrev_b32 v12, 10, v12')
    a('v_add_u32 v12, %d, v12' % L_X)
    a('v_add_u32 v12, v12, v11')
    a('v_xor_b32 v13, 64, v12')
    a('v_xor_b32 v14, 0x80, v12')
    a('v_xor_b32 v15, 0xc0, v12')
    def kvload(ks):
        if not KVP:
            a('ds_read_b64_tr_b16 %s, v10 offset:%d' % (vr(KW + 4 * ks, 2), 1024 * ks))
            a('ds_read_b64_tr_b16 %s, v10 offset:%d' % (vr(KW + 4 * ks + 2, 2), 1024 * ks + 128))
        a('ds_read_b128 %s, v%d offset:%d' % (vr(KX + 4 * ks, 4), 12 + ks % 4, (ks // 4) * 256))
    KPF = 8 if KVP else 4
    if KVP:
        for ks in range(16):
            a('ds_read_b64_tr_b16 %s, v10 offset:%d' % (vr(KW + 4 * ks, 2), 1024 * ks))
            a('ds_read_b64_tr_b16 %s, v10 offset:%d' % (vr(KW + 4 * ks + 2, 2), 1024 * ks + 128))
            if ks % 4 == 3: a('s_waitcnt lgkmcnt(4)')
        a('s_waitcnt lgkmcnt(0)')
        stamp(a, 3)
        a('s_barrier')
        stamp(a, 4)
    for ks in range(KPF): kvload(ks)
    a('s_bitcmp1_b32 s%d, 0' % S_J)
    a('s_cbranch_scc1 L_kv_v')
    for var in (0, 1):
        if var: a.label('L_kv_v'); a.fence(4)
        for ks in range(16):
            if ks + KPF < 16: kvload(ks + KPF)
            a('s_waitcnt lgkmcnt(%d)' % ((1 if KVP else 3) * (min(16, ks + KPF + 1) - (ks + 1))))
            acc = 16 + 4 * (ks % 2)
            A, B = (KW + 4 * ks, KX + 4 * ks) if var == 0 else (KX + 4 * ks, KW + 4 * ks)
            a('v_mfma_f32_16x16x32_bf16 %s, %s, %s, %s' % (vr(acc, 4), vr(A, 4), vr(B, 4), '0' if ks < 2 else vr(acc, 4)))
        for k in range(4):
            a('v_add_f32 v%d, v%d, v%d' % (16 + k, 16 + k, 20 + k))
        a('v_cvt_pk_bf16_f32 v16, v16, v17')
        a('v_cvt_pk_bf16_f32 v17, v18, v19')
        a('v_and_b32 v18, 1, v8')
        a('v_lshlrev_b32 v18, %d, v18' % (9 if var == 0 else 8))
        a('v_lshl_add_u32 v18, v9, 4, v18')
        a('v_lshrrev_b32 v19, 1, v8')
        a('v_lshl_add_u32 v18, v19, 3, v18')
        a('s_lshl_b32 s3, s%d, 1' % S_RB)
        a('s_lshr_b32 s43, s47, 5')
        a('s_add_u32 s3, s3, s43')
        a('s_lshl_b32 s3, s3, 11')
        a('s_and_b32 s43, s47, 16')
        if var == 0:
            a('s_lshl_b32 s43, s43, 4')
        else:
            a('s_lshl_b32 s43, s43, 5')
            a('s_add_u32 s43, s43, 1024')
        a('s_add_u32 s3, s3, s43')
        a('buffer_store_dwordx2 v[16:17], v18, %s, s3 offen sc1' % srd(S_WS))
        if var == 0:
            a('v_dot2_f32_bf16 v20, v16, v16, 0')
            a('v_dot2_f32_bf16 v20, v17, v17, v20')
            a('v_mov_b32 v21, v20')
            a('v_permlane32_swap_b32 v20, v21')
            a('v_add_f32 v20, v20, v21')
            a('v_mov_b32 v21, v20')
            a('v_permlane16_swap_b32 v20, v21')
            a('v_add_f32 v20, v20, v21')
            for sh in (8, 4, 2, 1):
                a('v_max_f32_dpp v20, v20, v20 row_ror:%d row_mask:0xf bank_mask:0xf' % sh)
            a('s_lshl_b32 s3, s%d, 2' % S_RB)
            a('s_lshr_b32 s43, s%d, 1' % S_J)
            a('s_add_u32 s3, s3, s43')
            a('s_lshl_b32 s3, s3, 2')
            a('s_add_u32 s3, s3, 0x%x' % WS_KMAX)
            a('s_mov_b64 exec, 1')
            a('buffer_store_dword v20, off, %s, s3 sc1' % srd(S_WS))
            a('s_mov_b64 exec, -1')
            a('s_branch L_kv_done')
    a.label('L_kv_done')
    a.fence(4)
    stamp(a, 5)
    a('s_lshl_b32 s3, s%d, 3' % S_RB)
    a('s_add_u32 s3, s3, s%d' % S_J)
    a('s_lshl_b32 s3, s3, 2')
    a('s_add_u32 s3, s3, 0x%x' % WS_F1)
    a('s_waitcnt vmcnt(0)')
    stamp(a, 6)
    flag_store(a, 's3', S_F1V, ' sc1', 8)
    a('s_barrier')
    stamp(a, 8)
    poll256(a, WS_F1, 56)
    stamp(a, 7)
    a('v_and_b32 v8, 7, v1')
    a('v_lshlrev_b32 v8, 2, v8')
    a('s_lshl_b32 s3, s%d, 5' % S_RB)
    a('s_add_u32 s3, s3, 0x%x' % WS_F1)
    a('buffer_load_dword v12, v8, %s, s3 offen sc1' % srd(S_WS))
    a('v_lshlrev_b32 v8, 3, v1')
    a('s_mov_b32 s3, 0x%x' % WS_KMAX)
    a('buffer_load_dwordx2 v[10:11], v8, %s, s3 offen sc1' % srd(S_WS))
    a('s_mov_b32 s3, 0')
    a('s_mov_b32 s43, %d' % KVB)
    for t in range(8):
        a('s_mov_b32 m0, s43')
        a('s_add_u32 s43, s43, %d' % TS_)
        a('buffer_load_dwordx4 v2, %s, s3 offen sc1 lds' % srd(S_WS))
        a('buffer_load_dwordx4 v2, %s, s3 offen offset:1024 sc1 lds' % srd(S_WS))
        if t < 7: a('s_add_u32 s3, s3, 2048')
    a('s_waitcnt vmcnt(16)')
    a('v_cmp_ne_u32 vcc, s%d, v12' % S_F1V)
    a('s_cmp_eq_u64 vcc, 0')
    a('s_cselect_b32 s3, 1, 0')
    a('v_max_f32 v10, v10, v11')
    a('v_mov_b32 v11, v10')
    a('v_permlane32_swap_b32 v10, v11')
    a('v_max_f32 v10, v10, v11')
    a('v_mov_b32 v11, v10')
    a('v_permlane16_swap_b32 v10, v11')
    a('v_max_f32 v10, v10, v11')
    for sh in (8, 4, 2, 1):
        a('v_max_f32_dpp v10, v10, v10 row_ror:%d row_mask:0xf bank_mask:0xf' % sh)
    a('v_mov_b32 v11, s3')
    a('v_mov_b32 v12, 0')
    a('v_mov_b32 v13, 0')
    a('v_mov_b32 v8, %d' % L_BC)
    a('s_mov_b64 exec, 1')
    a('ds_write_b128 v8, v[10:13]')
    a('ds_write_b32 v8, v12 offset:16')
    a('s_mov_b64 exec, -1')
    a('s_waitcnt vmcnt(0) lgkmcnt(0)')
    stamp(a, 11)
    a('s_barrier')
    a.label('L_p1_end')
    a.fence(4)
    stamp(a, 12)


R_Q, R_S0, R_S1, R_O, R_P0, R_P1 = 4, 8, 24, 40, 56, 60
R_V0, R_V1, R_K = 64, 72, 80
R_KAD, R_VA0, R_VA1, R_ROW, R_XRES = 88, 3, 89, 90, 92
R_WO, R_W1 = 192, 96


def prefetch_list(a):
    L = []
    def wo_addr():
        a('s_lshr_b32 s51, s%d, 1' % S_W)
        a('s_lshl_b32 s51, s51, 3')
        a('s_lshl_b32 s52, s%d, 6' % S_J)
        a('s_add_u32 s51, s51, s52')
        a('s_lshl_b32 s51, s51, 10')
        a('s_add_u32 s51, s51, 0x%x' % WS_WO)
        a('s_add_u32 s52, s51, %d' % (32 * 1024))
    def wo(nt, s):
        def f():
            if nt == 0 and s == 0: wo_addr()
            if s == 4: a('s_add_u32 s%d, s%d, 4096' % (51 + nt, 51 + nt))
            a('buffer_load_dwordx4 %s, v2, %s, s%d offen offset:%d sc1' % (vr(R_WO + 32 * nt + 4 * s, 4), srd(S_WS), 51 + nt, (s % 4) * 1024))
        return f
    for s in range(8):
        for nt in range(2): L.append(wo(nt, s))
    def xres():
        a('s_and_b32 s3, s%d, 1' % S_W)
        a('s_lshl_b32 s43, s%d, 1' % S_RB)
        a('s_add_u32 s3, s3, s43')
        a('s_lshl_b32 s3, s3, 15')
        a('s_lshl_b32 s43, s%d, 7' % S_J)
        a('s_add_u32 s3, s3, s43')
        a('s_lshr_b32 s43, s%d, 1' % S_W)
        a('s_lshl_b32 s43, s43, 5')
        a('s_add_u32 s53, s3, s43')
        a('buffer_load_dwordx4 %s, v%d, %s, s53 offen' % (vr(R_XRES, 4), R_ROW, srd(S_X)))
    L.append(xres)
    def w1_addr():
        a('s_mul_i32 s54, s%d, 7' % S_J)
        a('s_add_u32 s54, s54, s%d' % S_W)
        a('s_lshl_b32 s54, s54, 15')
        a('s_add_u32 s54, s54, 0x%x' % WS_W1)
        w2_base(a, 's55')
        a('s_add_u32 s56, s55, %d' % (8 * 1024))
        a('s_cmp_eq_u32 s%d, 7' % S_W)
        a('s_cselect_b32 s57, s56, s54')
        a('s_cselect_b32 s58, %d, 0' % ((112 - 14) * 1024))
    def w1(i):
        def f():
            if i == 0: w1_addr()
            if i < 6:
                if i == 4: a('s_add_u32 s57, s57, 4096')
                off = (i % 4) * 1024
            else:
                if i == 6:
                    a('s_add_u32 s57, s57, 2048'); a('s_add_u32 s57, s57, s58')
                elif (i - 6) % 4 == 0:
                    a('s_add_u32 s57, s57, 4096')
                off = ((i - 6) % 4) * 1024
            a('buffer_load_dwordx4 %s, v2, %s, s57 offen offset:%d sc1' % (vr(R_W1 + 4 * i, 4), srd(S_WS), off))
        return f
    for i in range(24): L.append(w1(i))
    return L


def w2_base(a, dst):
    a('s_mul_i32 %s, s%d, %d' % (dst, S_J, 2 * 112))
    a('s_mul_i32 s43, s%d, 14' % S_W)
    a('s_add_u32 %s, %s, s43' % (dst, dst))
    a('s_lshl_b32 %s, %s, 10' % (dst, dst))
    a('s_add_u32 %s, %s, 0x%x' % (dst, dst, WS_W2))


def w2_slot_reg(q):
    return 224 + 4 * q if q < 8 else 96 + 4 * (q - 8)


def attn_tile(a, u, extra=()):
    c, n = u % 2, (u + 1) % 2
    a0 = a
    def a(t):
        if OPT.get('xnods') and t.startswith('ds_read'): return
        if OPT.get('xnomf') and t.startswith('v_mfma'): return
        if OPT.get('xnocv') and t.startswith('v_cvt_pk'): return
        if OPT.get('xnoexp') and t.startswith('v_exp'): return
        if OPT.get('xhalfexp') and t.startswith('v_exp') and int(t.split()[1][1:-1]) % 2: return
        a0(t)
    S = [R_S0, R_S1]
    K = lambda b: R_K + 4 * b
    V0 = lambda b: R_V0 + 4 * b
    V1 = lambda b: R_V1 + 4 * b
    ex = list(extra)
    def E(k): a('v_exp_f32 v%d, v%d' % (S[c] + k, S[c] + k))
    def X():
        if ex: ex.pop(0)()
    def CV(d, x, y):
        if OPT.get('perm'): a('v_perm_b32 v%d, v%d, v%d, s63' % (d, y, x))
        else: a('v_cvt_pk_bf16_f32 v%d, v%d, v%d' % (d, x, y))
    a('s_waitcnt lgkmcnt(0)')
    if OPT.get('sched', 1) == 0:
        E(0)
        a('ds_read_b128 %s, v%d offset:%d' % (vr(K(c), 4), R_KAD, (u + 2) * TS_))
        E(1)
        a('ds_read_b128 %s, v%d offset:%d' % (vr(V0(n), 4), R_VA0, (u + 1) * TS_))
        E(2)
        a('ds_read_b128 %s, v%d offset:%d' % (vr(V1(c), 4), R_VA1, u * TS_))
        E(3)
        a('v_mfma_f32_32x32x16_bf16 %s, %s, %s, 0' % (vr(S[n], 16), vr(K(n), 4), vr(R_Q, 4)))
        E(4); X(); E(5); X(); E(6); X(); E(7)
        for k in range(4): a('v_cvt_pk_bf16_f32 v%d, v%d, v%d' % (R_P0 + k, S[c] + 2 * k, S[c] + 2 * k + 1))
        a('v_mfma_f32_32x32x16_bf16 %s, %s, %s, %s' % (vr(R_O, 16), vr(V1(n), 4), vr(R_P1, 4), vr(R_O, 16)))
        E(8); X(); E(9); X(); E(10); X(); E(11)
        a('v_mfma_f32_32x32x16_bf16 %s, %s, %s, %s' % (vr(R_O, 16), vr(V0(c), 4), vr(R_P0, 4), vr(R_O, 16)))
        for k in range(12, 16): E(k)
        for k in range(4): a('v_cvt_pk_bf16_f32 v%d, v%d, v%d' % (R_P1 + k, S[c] + 8 + 2 * k, S[c] + 9 + 2 * k))
    else:
        a('v_mfma_f32_32x32x16_bf16 %s, %s, %s, 0' % (vr(S[n], 16), vr(K(n), 4), vr(R_Q, 4)))
        a('ds_read_b128 %s, v%d offset:%d' % (vr(K(c), 4), R_KAD, (u + 2) * TS_))
        a('ds_read_b128 %s, v%d offset:%d' % (vr(V0(n), 4), R_VA0, (u + 1) * TS_))
        a('ds_read_b128 %s, v%d offset:%d' % (vr(V1(c), 4), R_VA1, u * TS_))
        E(0); E(1); X(); E(2); E(3); X(); E(4); E(5); X(); E(6); E(7)
        a('v_mfma_f32_32x32x16_bf16 %s, %s, %s, %s' % (vr(R_O, 16), vr(V1(n), 4), vr(R_P1, 4), vr(R_O, 16)))
        for k in range(4): CV(R_P0 + k, S[c] + 2 * k, S[c] + 2 * k + 1)
        E(8); X(); E(9); X(); E(10); X(); E(11)
        a('v_mfma_f32_32x32x16_bf16 %s, %s, %s, %s' % (vr(R_O, 16), vr(V0(c), 4), vr(R_P0, 4), vr(R_O, 16)))
        for k in range(12, 16): E(k)
        for k in range(4): CV(R_P1 + k, S[c] + 8 + 2 * k, S[c] + 9 + 2 * k)
    while ex: ex.pop(0)()


def attn_advance(a):
    for r in (R_KAD, R_VA0, R_VA1):
        a('v_add_u32 v%d, 0x%x, v%d' % (r, 8 * TS_, r))


def early_dma_list(a):
    L = []
    def kv(i):
        def f():
            a('s_mov_b32 m0, s19')
            a('s_add_u32 s19, s19, %d' % (8 * TS_))
            a('buffer_load_dwordx4 v2, %s, s18 offen sc1 lds' % srd(S_WS))
            a('buffer_load_dwordx4 v2, %s, s18 offen offset:1024 sc1 lds' % srd(S_WS))
            a('s_add_u32 s18, s18, 16384')
        return f
    for i in range(1, 8): L.append(kv(i))
    def tb(k):
        def f():
            a('s_mov_b32 m0, s60')
            a('s_add_u32 s60, s60, 1024')
            a('buffer_load_dwordx4 v99, s[52:55], s57 offen lds')
            if k == 0:
                a('s_lshl_b32 s61, s56, 3')
                a('s_add_u32 s57, s57, s61')
        return f
    L += [tb(0), tb(1)]
    return L


def tb_read_list(a):
    def rd(nt):
        def f():
            a('ds_read_b64_tr_b16 %s, v%d' % (vr(104 + 4 * nt, 2), 100 + nt))
            a('ds_read_b64_tr_b16 %s, v%d offset:1024' % (vr(106 + 4 * nt, 2), 100 + nt))
        return f
    return [rd(0), rd(1)]


def tb_store_list(a):
    def st(nt):
        def f():
            a('buffer_store_dwordx4 %s, v2, %s, s58 offen sc1' % (vr(104 + 4 * nt, 4), srd(S_WS)))
            if nt == 0: a('s_add_u32 s58, s58, s59')
        return f
    return [st(0), st(1)]


def f2_publish(a):
    sk = uid('L_f2')
    a('s_cmp_lg_u32 s%d, %d' % (S_W, CTRL))
    a('s_cbranch_scc1 %s' % sk)
    a('s_lshl_b32 s18, s2, 2')
    a('s_add_u32 s18, s18, 0x%x' % WS_F2)
    flag_store(a, 's18', S_TAG, ' sc1', 96)
    a.label(sk)


def f2_count(a):
    sk = uid('L_f2n')
    a('v_mov_b32 v96, %d' % (L_BC + 16))
    a('v_mov_b32 v97, 1')
    a('s_waitcnt vmcnt(0)')
    a('s_mov_b64 exec, 1')
    a('ds_add_rtn_u32 v97, v96, v97')
    a('s_waitcnt lgkmcnt(0)')
    a('s_mov_b64 exec, -1')
    a('v_readfirstlane_b32 s18, v97')
    a('s_cmp_lg_u32 s18, 7')
    a('s_cbranch_scc1 %s' % sk)
    a('s_lshl_b32 s18, s2, 2')
    a('s_add_u32 s18, s18, 0x%x' % WS_F2)
    flag_store(a, 's18', S_TAG, ' sc1', 96)
    a.label(sk)


def fair_prio(a):
    if not OPT.get('fair'): return
    d = uid('L_fp')
    lv = {1: [(5, 3), (3, 2), (2, 1), (0, 0)], 2: [(6, 3), (5, 2), (3, 1), (0, 0)], 3: [(5, 3), (4, 2), (2, 1), (0, 0)]}[OPT['fair']]
    for (th, pr) in lv:
        a('s_setprio %d' % pr)
        if th:
            a('s_cmp_ge_u32 s62, %d' % th)
            a('s_cbranch_scc1 %s' % d)
    a.label(d)


def attention_fast(a):
    if OPT.get('fair'): a('s_setprio 3')
    if OPT.get('perm'): a('s_mov_b32 s63, 0x07060302')
    if OPT.get('prio') in (1, 2):
        a('s_cmp_lt_u32 s%d, 4' % S_W)
        a('s_cbranch_scc1 L_prio0')
        a('s_setprio 1')
        a.label('L_prio0')
    a('ds_read_b128 %s, v%d' % (vr(R_K, 4), R_KAD))
    a('ds_read_b128 %s, v%d offset:%d' % (vr(R_K + 4, 4), R_KAD, TS_))
    a('ds_read_b128 %s, v%d' % (vr(R_V0, 4), R_VA0))
    for k in range(16): a('v_mov_b32 v%d, 0' % (R_O + k))
    for k in range(4): a('v_mov_b32 v%d, 0' % (R_P1 + k))
    for k in range(4): a('v_mov_b32 v%d, 0' % (R_V1 + 4 + k))
    a('s_waitcnt lgkmcnt(2)')
    a('v_mfma_f32_32x32x16_bf16 %s, %s, %s, 0' % (vr(R_S0, 16), vr(R_K, 4), vr(R_Q, 4)))
    a.fence(12)
    E = early_dma_list(a)
    tbw = lambda: a('s_waitcnt vmcnt(8)')
    TB2 = OPT.get('tb2', 0)
    if TB2:
        ex0 = [[E[0]], [E[1]], [E[7], E[8]], [E[2]], [E[3]], [E[4]], [E[5]], [E[6]]]
        w10 = lambda: a('s_waitcnt vmcnt(10)')
        ex1 = [[w10] + tb_read_list(a), tb_store_list(a), [], [], [], [], [], []]
    else:
        ex0 = [[E[0], E[7]], [E[8], E[1]], [E[2]], [E[3]], [E[4]], [tbw] + tb_read_list(a), tb_store_list(a) + [E[5]], [E[6]]]
        ex1 = [[] for _ in range(8)]
    for u in range(8):
        if u == 6:
            stamp(a, 15)
            if TB2: a('s_waitcnt vmcnt(10)')
            a('s_barrier')
            stamp(a, 16)
        attn_tile(a, u, ex0[u])
    attn_advance(a)
    for u in range(8):
        if u == 6:
            if TB2 == 2:
                a('s_waitcnt vmcnt(2)')
                a('s_barrier')
            else:
                a('s_waitcnt vmcnt(0)')
                a('s_barrier')
                f2_publish(a)
            stamp(a, 13)
        attn_tile(a, u, ex1[u])
    if TB2 == 2: f2_count(a)
    attn_advance(a)
    a('s_mov_b32 s62, 6')
    if OPT.get('stag'):
        a('s_lshr_b32 s63, s%d, 2' % S_W)
    if OPT.get('late'):
        a('s_cmp_lt_u32 s%d, 4' % S_W)
        a('s_cselect_b32 s63, 1, 0')
        a('s_cbranch_scc1 L_attn_b')
    a('s_mov_b32 s3, 0x%x' % WS_F2)
    a.raw('.p2align 6')
    a.label('L_attn_a')
    fair_prio(a)
    f2ld = lambda: a('buffer_load_dwordx4 %s, v2, %s, s3 offen sc1' % (vr(R_WO, 4), srd(S_WS)))
    for u in range(8): attn_tile(a, u, [f2ld] if u == OPT.get('f2u', 0) else [])
    attn_advance(a)
    a('s_sub_u32 s62, s62, 1')
    stamp(a, 10)
    a('s_waitcnt vmcnt(0)')
    check256(a, R_WO)
    if OPT.get('xnof2'): a('s_branch L_attn_p')
    if OPT.get('stag'):
        a('s_cbranch_vccnz L_attn_nf')
        a('s_cmp_eq_u32 s63, 0')
        a('s_cbranch_scc1 L_attn_p')
        a('s_mov_b32 s63, 0')
        a('s_cmp_gt_u32 s62, %d' % OPT.get('lim', 3))
        a('s_cbranch_scc1 L_attn_a')
        a('s_branch L_attn_p')
        a.label('L_attn_nf')
    else:
        a('s_cbranch_vccz L_attn_p')
    a('s_cmp_gt_u32 s62, %d' % OPT.get('lim', 3))
    a('s_cbranch_scc1 L_attn_a')
    poll256(a, WS_F2, R_WO)
    a.label('L_attn_p')
    stamp(a, 30)
    if OPT.get('prio') == 2: a('s_setprio 0')
    fair_prio(a)
    L = prefetch_list(a)
    per = [L[(len(L) * u) // 8:(len(L) * (u + 1)) // 8] for u in range(8)]
    a.fence(2)
    for u in range(8): attn_tile(a, u, per[u])
    attn_advance(a)
    a('s_sub_u32 s62, s62, 1')
    a.raw('.p2align 6')
    a.label('L_attn_b')
    fair_prio(a)
    for u in range(8): attn_tile(a, u)
    attn_advance(a)
    a('s_sub_u32 s62, s62, 1')
    a('s_cmp_lg_u32 s62, 0')
    a('s_cbranch_scc1 L_attn_b')
    if OPT.get('prio') or OPT.get('fair'): a('s_setprio 0')
    a('s_waitcnt lgkmcnt(0)')
    a('v_mfma_f32_32x32x16_bf16 %s, %s, %s, %s' % (vr(R_O, 16), vr(R_V1 + 4, 4), vr(R_P1, 4), vr(R_O, 16)))


def attention_slow(a):
    Q, O, P = R_Q, R_O, R_P0
    S = R_S0; K = R_K; V = R_V0
    M, MN, AL, T = R_S1, R_S1 + 1, R_S1 + 2, R_S1 + 3
    for f in early_dma_list(a): f()
    a('s_waitcnt vmcnt(0)')
    for f in tb_read_list(a): f()
    a('s_waitcnt lgkmcnt(0)')
    for f in tb_store_list(a): f()
    a('s_barrier')
    a('s_waitcnt vmcnt(0)')
    a('s_barrier')
    if OPT.get('tb2') == 2: f2_count(a)
    else: f2_publish(a)
    for k in range(16): a('v_mov_b32 v%d, 0' % (O + k))
    a('v_mov_b32 v%d, 0xff7fffff' % M)
    a('s_mov_b32 s62, 64')
    a.fence(4)
    a.label('L_attn_slow')
    a('ds_read_b128 %s, v%d' % (vr(K, 4), R_KAD))
    a('ds_read_b128 %s, v%d' % (vr(V, 4), R_VA0))
    a('ds_read_b128 %s, v%d' % (vr(V + 4, 4), R_VA1))
    for r in (R_KAD, R_VA0, R_VA1):
        a('v_add_u32 v%d, 0x%x, v%d' % (r, TS_, r))
    a('s_waitcnt lgkmcnt(0)')
    a('v_mfma_f32_32x32x16_bf16 %s, %s, %s, 0' % (vr(S, 16), vr(K, 4), vr(Q, 4)))
    a('v_max_f32 v%d, v%d, v%d' % (MN, S, S + 1))
    for k in range(2, 16, 2):
        a('v_max3_f32 v%d, v%d, v%d, v%d' % (MN, MN, S + k, S + k + 1))
    a('v_mov_b32 v%d, v%d' % (T, MN))
    a('v_permlane32_swap_b32 v%d, v%d' % (MN, T))
    a('v_max3_f32 v%d, v%d, v%d, v%d' % (MN, MN, T, M))
    a('v_sub_f32 v%d, v%d, v%d' % (AL, M, MN))
    a('v_exp_f32 v%d, v%d' % (AL, AL))
    a('v_mov_b32 v%d, v%d' % (M, MN))
    for k in range(16):
        a('v_sub_f32 v%d, v%d, v%d' % (S + k, S + k, MN))
    for k in range(16):
        a('v_exp_f32 v%d, v%d' % (S + k, S + k))
    for k in range(16):
        a('v_mul_f32 v%d, v%d, v%d' % (O + k, O + k, AL))
    for k in range(8):
        a('v_cvt_pk_bf16_f32 v%d, v%d, v%d' % (P + k, S + 2 * k, S + 2 * k + 1))
    a('v_mfma_f32_32x32x16_bf16 %s, %s, %s, %s' % (vr(O, 16), vr(V, 4), vr(P, 4), vr(O, 16)))
    a('v_mfma_f32_32x32x16_bf16 %s, %s, %s, %s' % (vr(O, 16), vr(V + 4, 4), vr(P + 4, 4), vr(O, 16)))
    a('s_sub_u32 s62, s62, 1')
    a('s_cmp_lg_u32 s62, 0')
    a('s_nop 7'); a('s_nop 7')
    a('s_cbranch_scc1 L_attn_slow')
    poll256(a, WS_F2, R_WO)
    for f in prefetch_list(a): f()


def phase2(a, force_slow=False):
    a('s_and_b32 s48, s%d, 1' % S_W)
    a('s_bfe_u32 s49, s%d, 0x10001' % S_W)
    a('s_lshr_b32 s50, s%d, 2' % S_W)
    a('v_mov_b32 v8, %d' % L_BC)
    a('ds_read_b64 v[10:11], v8')
    a('s_cmp_eq_u32 s50, 0')
    a('s_cbranch_scc1 L_q_have')
    a('s_and_b32 s3, s%d, 3' % S_W)
    a('s_lshl_b32 s3, s3, 10')
    a('v_add_u32 v9, s3, v2')
    a('ds_read_b128 %s, v9 offset:%d' % (vr(R_Q, 4), L_QX))
    a.label('L_q_have')
    a.fence(2)
    a('v_mov_b32 v16, 0x3f803f80')
    for k in range(1, 4): a('v_mov_b32 v%d, v16' % (16 + k))
    a('s_movk_i32 s3, %d' % TS_)
    a('v_mul_lo_u32 v20, v1, s3')
    a('v_add_u32 v20, %d, v20' % (KVB + 2048))
    a('ds_write_b128 v20, v[16:19]')
    a('v_lshrrev_b32 v8, 5, v1')
    a('v_and_b32 v9, 15, v1')
    a('v_lshl_add_u32 v8, v8, 4, v9')
    a('v_lshlrev_b32 v8, 4, v8')
    a('v_add_u32 v8, %d, v8' % (KVB + 1024))
    a('v_add_u32 v9, 512, v8')
    a('v_and_b32 v13, 16, v1')
    a('v_cmp_eq_u32 vcc, 0, v13')
    a('v_mov_b32 v13, %d' % (KVB + 2048))
    a('v_cndmask_b32 v%d, v13, v8, vcc' % R_VA0)
    a('v_cndmask_b32 v%d, v13, v9, vcc' % R_VA1)
    a('v_add_u32 v%d, %d, v2' % (R_KAD, KVB))
    a('v_and_b32 v13, 31, v1')
    a('v_lshrrev_b32 v14, 5, v1')
    a('v_lshlrev_b32 v13, 10, v13')
    a('v_lshl_add_u32 v%d, v14, 4, v13' % R_ROW)
    swz_off(a, 96, 97)
    a('v_mul_lo_u32 v99, v96, s56')
    a('v_add_u32 v99, v99, v97')
    a('v_bfe_u32 v21, v1, 4, 1')
    a('v_bfe_u32 v22, v1, 2, 2')
    a('v_and_b32 v23, 3, v1')
    a('v_lshrrev_b32 v24, 1, v23')
    a('v_lshl_add_u32 v24, v21, 1, v24')
    a('v_lshrrev_b32 v25, 1, v22')
    a('v_lshlrev_b32 v25, 2, v25')
    a('v_xor_b32 v24, v24, v25')
    a('v_lshlrev_b32 v24, 4, v24')
    a('v_and_b32 v23, 1, v23')
    a('v_lshl_add_u32 v24, v23, 3, v24')
    a('v_lshl_add_u32 v25, v14, 2, v22')
    a('v_lshl_add_u32 v25, v25, 7, v24')
    a('v_add_u32 v100, s60, v25')
    a('v_xor_b32 v101, 64, v100')
    a('s_lshl_b32 s18, s%d, 11' % S_W)
    a('s_add_u32 s18, s18, 16384')
    a('s_mul_i32 s19, s%d, %d' % (S_W, TS_))
    a('s_add_u32 s19, s19, %d' % (KVB + 8 * TS_))
    a('s_waitcnt lgkmcnt(1)')
    a('v_readfirstlane_b32 s%d, v11' % S_FAST)
    a('v_dot2_f32_bf16 v14, v%d, v%d, 0' % (R_Q, R_Q))
    for k in range(1, 4): a('v_dot2_f32_bf16 v14, v%d, v%d, v14' % (R_Q + k, R_Q + k))
    a('v_mov_b32 v13, v14')
    a('v_permlane32_swap_b32 v14, v13')
    a('v_add_f32 v14, v14, v13')
    a('v_mul_f32 v14, v14, v10')
    a('s_mov_b32 s3, 0x%x' % f2u(-1.0 if force_slow else LIMIT2))
    a('v_cmp_nle_f32 vcc, v14, s3')
    a('s_waitcnt lgkmcnt(0)')
    stamp(a, 14)
    if OPT.get('late'): a('s_mov_b32 s63, 0')
    a('s_cbranch_vccnz L_attn_fb')
    attention_fast(a)
    a('s_branch L_attn_fin')
    a.label('L_attn_fb')
    a.fence(4)
    attention_slow(a)
    a.label('L_attn_fin')
    a.fence(12)
    stamp(a, 17)
    O = R_O
    a('v_rcp_f32 v8, v%d' % (O + 8))
    for k in range(8): a('v_mul_f32 v%d, v%d, v8' % (O + k, O + k))
    for k in range(4): a('v_cvt_pk_bf16_f32 v%d, v%d, v%d' % (O + k, O + 2 * k, O + 2 * k + 1))
    G.q_frag_off(a, WS_O, 's48', 's49', 's50', 's3')
    both(a, lambda m: a('buffer_store_dwordx4 %s, v2, %s, s3 offen%s' % (vr(O, 4), srd(S_WS), m)))
    a('s_lshl_b32 s3, s%d, 1' % S_RB)
    a('s_add_u32 s3, s3, s49')
    a('s_lshl_b32 s3, s3, 3')
    a('s_add_u32 s3, s3, s%d' % S_J)
    a('s_lshl_b32 s3, s3, 1')
    a('s_add_u32 s3, s3, s50')
    a('s_lshl_b32 s3, s3, 1')
    a('s_add_u32 s3, s3, s48')
    a('s_lshl_b32 s3, s3, 2')
    a('s_add_u32 s3, s3, 0x%x' % WS_F3)
    a('s_waitcnt vmcnt(0)')
    both(a, lambda m: flag_store(a, 's3', S_TAG, m, 8))
    stamp(a, 18)
    if OPT.get('late'):
        a('s_cmp_eq_u32 s63, 0')
        a('s_cbranch_scc1 L_late_skip')
        poll256(a, WS_F2, R_WO)
        for f in prefetch_list(a): f()
        a('s_waitcnt vmcnt(0)')
        a.label('L_late_skip')


def colsum(a, ks_list, regf, first):
    for ks in ks_list:
        for k in range(4):
            c = 80 + k
            a('v_dot2_f32_bf16 v%d, v%d, s44, %s' % (c, regf(ks) + k, '0' if (first and ks == ks_list[0]) else 'v%d' % c))


def w1reg(ks):
    return R_W1 + 4 * ks if ks < 24 else 192 + 4 * (ks - 24)


def phase3(a):
    A, B = R_WO, 8
    D = [40, 64]
    a('s_and_b32 s48, s%d, 1' % S_W)
    a('s_lshr_b32 s49, s%d, 1' % S_W)
    a('s_mov_b32 s44, 0x3f803f80')
    a('s_cmp_eq_u32 s%d, 7' % S_W)
    a('s_cbranch_scc1 L_cs_skip')
    colsum(a, list(range(24)), w1reg, True)
    a.label('L_cs_skip')
    a('s_lshl_b32 s3, s%d, 1' % S_RB)
    a('s_add_u32 s3, s3, s48')
    a('s_lshl_b32 s50, s3, 5')
    a('s_lshl_b32 s3, s49, 3')
    a('s_add_u32 s3, s3, s50')
    a('s_lshl_b32 s18, s3, 10')
    a('s_add_u32 s18, s18, 0x%x' % WS_O)
    a('s_lshl_b32 s3, s3, 2')
    a('s_add_u32 s3, s3, 0x%x' % WS_F3)
    poll8(a, 's3', 72)
    stamp(a, 19)
    for s in range(8):
        if s == 4: a('s_add_u32 s18, s18, 4096')
        a('buffer_load_dwordx4 %s, v2, %s, s18 offen offset:%d sc1' % (vr(B + 4 * s, 4), srd(S_WS), (s % 4) * 1024))
    for s in range(8):
        a('s_waitcnt vmcnt(%d)' % (7 - s))
        for nt in range(2):
            a('v_mfma_f32_32x32x16_bf16 %s, %s, %s, %s' % (vr(D[nt], 16), vr(A + 32 * nt + 4 * s, 4), vr(B + 4 * s, 4),
                                                          '0' if s == 0 else vr(D[nt], 16)))
    stamp(a, 20)
    a('s_barrier')
    a('s_lshl_b32 s3, s48, 15')
    a('s_lshl_b32 s43, s49, 11')
    a('s_add_u32 s3, s3, s43')
    a('v_add_u32 v84, s3, v2')
    a.fence(8)
    for q in range(4):
        r = D[q // 2] + 8 * (q % 2)
        a('s_cmp_eq_u32 s49, %d' % q)
        a('s_cbranch_scc1 L_o_skip%d' % q)
        a('ds_write_b128 v84, %s offset:%d' % (vr(r, 4), q * 8192))
        a('ds_write_b128 v84, %s offset:%d' % (vr(r + 4, 4), q * 8192 + 1024))
        a('s_branch L_o_nxt%d' % q)
        a.label('L_o_skip%d' % q)
        for k in range(8): a('v_mov_b32 v%d, v%d' % (56 + k, r + k))
        a.label('L_o_nxt%d' % q)
    a('s_waitcnt lgkmcnt(0)')
    a('s_barrier')
    a('s_lshl_b32 s3, s48, 15')
    a('s_lshl_b32 s43, s49, 13')
    a('s_add_u32 s3, s3, s43')
    for d in range(1, 4):
        a('s_add_u32 s43, s49, %d' % d)
        a('s_and_b32 s43, s43, 3')
        a('s_lshl_b32 s43, s43, 11')
        a('s_add_u32 s43, s43, s3')
        a('v_add_u32 v%d, s43, v2' % (83 + d))
        a('ds_read_b128 %s, v%d' % (vr(8 + 8 * (d - 1), 4), 83 + d))
        a('ds_read_b128 %s, v%d offset:1024' % (vr(12 + 8 * (d - 1), 4), 83 + d))
    X = R_XRES
    a('v_permlane32_swap_b32 v%d, v%d' % (X, X + 2))
    a('v_permlane32_swap_b32 v%d, v%d' % (X + 1, X + 3))
    for k in range(4):
        a('v_lshlrev_b32 v%d, 16, v%d' % (32 + 2 * k, X + k))
        a('v_and_b32 v%d, 0xffff0000, v%d' % (33 + 2 * k, X + k))
    a('s_waitcnt lgkmcnt(0)')
    for k in range(8):
        a('v_add_f32 v%d, v%d, v%d' % (56 + k, 56 + k, 8 + k))
        a('v_add_f32 v%d, v%d, v%d' % (16 + k, 16 + k, 24 + k))
    for k in range(8):
        a('v_add_f32 v%d, v%d, v%d' % (56 + k, 56 + k, 16 + k))
    for k in range(8):
        a('v_add_f32 v%d, v%d, v%d' % (56 + k, 56 + k, 32 + k))
    for k in range(4):
        a('v_cvt_pk_bf16_f32 v%d, v%d, v%d' % (4 + k, 56 + 2 * k, 57 + 2 * k))
    a('s_lshl_b32 s3, s%d, 2' % S_J)
    a('s_add_u32 s3, s3, s49')
    a('s_add_u32 s3, s3, s50')
    a('s_lshl_b32 s3, s3, 10')
    a('s_add_u32 s3, s3, 0x%x' % WS_H)
    both(a, lambda m: a('buffer_store_dwordx4 v[4:7], v2, %s, s3 offen%s' % (srd(S_WS), m)))
    a('s_lshl_b32 s3, s%d, 3' % S_RB)
    a('s_add_u32 s3, s3, s%d' % S_J)
    a('s_lshl_b32 s3, s3, 3')
    a('s_add_u32 s3, s3, s%d' % S_W)
    a('s_lshl_b32 s3, s3, 2')
    a('s_add_u32 s3, s3, 0x%x' % WS_F4)
    a('s_waitcnt vmcnt(0)')
    both(a, lambda m: flag_store(a, 's3', S_TAG, m, 72))
    stamp(a, 21)


L_H, L_ACT, L_ST, L_CS = 65536, 131072, 159744, 160256


def phase45(a):
    D1 = 32
    BB = 8
    G1 = OPT.get('g1', 0)
    w2_base(a, 's55')
    a('s_add_u32 s56, s55, %d' % (112 * 1024))
    def w1rest():
        a('s_add_u32 s54, s54, %d' % (24 * 1024))
        for ks in range(24, 32):
            if ks == 28: a('s_add_u32 s54, s54, 4096')
            a('buffer_load_dwordx4 %s, v2, %s, s54 offen offset:%d sc1' % (vr(w1reg(ks), 4), srd(S_WS), (ks % 4) * 1024))
        a('s_mul_i32 s48, s%d, 7' % S_J)
        a('s_add_u32 s48, s48, s%d' % S_W)
        a('v_lshrrev_b32 v3, 5, v1')
        a('v_lshlrev_b32 v3, 3, v3')
        a('s_lshl_b32 s50, s48, 6')
        for q in range(4):
            a('buffer_load_dwordx2 %s, v3, %s, s50 offen offset:%d' % (vr(64 + 2 * q, 2), srd(S_B1), 16 * q))
    def w2load(q):
        nt, s = q // 14, q % 14
        base = 's55' if nt == 0 else 's56'
        hi = (s // 4) * 4096
        if hi:
            a('s_add_u32 s57, %s, %d' % (base, hi)); base = 's57'
        a('buffer_load_dwordx4 %s, v2, %s, %s offen offset:%d sc1' % (vr(w2_slot_reg(q), 4), srd(S_WS), base, (s % 4) * 1024))
    if G1:
        a('s_cmp_eq_u32 s%d, 7' % S_W)
        a('s_cbranch_scc1 L_g1_now1')
        w1rest()
        a.label('L_g1_now1')
    a('s_lshl_b32 s3, s%d, 3' % S_RB)
    a('s_add_u32 s3, s3, s%d' % S_W)
    a('s_lshl_b32 s3, s3, 5')
    a('s_add_u32 s3, s3, 0x%x' % WS_F4)
    poll8(a, 's3', 72)
    stamp(a, 22)
    a('s_lshl_b32 s43, s%d, 16' % S_RB)
    a('s_lshl_b32 s3, s%d, 12' % S_W)
    a('s_add_u32 s43, s43, s3')
    a('s_add_u32 s43, s43, 0x%x' % WS_H)
    a('s_add_u32 s3, s3, %d' % L_H)
    for mt in range(2):
        a('s_mov_b32 m0, s3')
        a('s_nop 0')
        for k in range(4):
            a('buffer_load_dwordx4 v2, %s, s43 offen offset:%d sc1 lds' % (srd(S_WS), k * 1024))
        if mt == 0:
            a('s_add_u32 s3, s3, 32768'); a('s_add_u32 s43, s43, 32768')
    a('s_cmp_eq_u32 s%d, 7' % S_W)
    a('s_cbranch_scc1 L_g1_stats')
    if G1:
        a('s_waitcnt vmcnt(0)')
    else:
        w1rest()
        for q in range(8): w2load(q)
        a('s_waitcnt vmcnt(20)')
    stamp(a, 23)
    a('s_barrier')
    seq = [(ks, mt) for ks in range(32) for mt in range(2)]
    NB = 6
    def bload(i):
        ks, mt = seq[i]
        a('ds_read_b128 %s, v92 offset:%d' % (vr(BB + 4 * (i % NB), 4), (mt * 32 + ks) * 1024))
    a('v_add_u32 v92, %d, v2' % L_H)
    PF = 5
    for i in range(PF): bload(i)
    nw2 = 0
    for i, (ks, mt) in enumerate(seq):
        if i + PF < len(seq): bload(i + PF)
        rem = min(len(seq), i + PF + 1) - (i + 1)
        if ks == 24 and mt == 0 and not G1:
            a('s_waitcnt vmcnt(%d) lgkmcnt(%d)' % (12 + nw2, rem))
        else:
            a('s_waitcnt lgkmcnt(%d)' % rem)
        a('v_mfma_f32_32x32x16_bf16 %s, %s, %s, %s' % (vr(D1 + 16 * mt, 16), vr(w1reg(ks), 4), vr(BB + 4 * (i % NB), 4),
                                                      '0' if ks == 0 else vr(D1 + 16 * mt, 16)))
        if G1:
            if mt == 1 and ks < 28:
                order = list(range(8)) + list(range(8, 28))
                w2load(order[ks])
        elif mt == 1 and 1 <= ks <= 20:
            w2load(8 + ks - 1); nw2 += 1
        if mt == 1 and ks >= 25:
            colsum(a, [ks - 1], w1reg, False)
    colsum(a, [31], w1reg, False)
    a('v_add_f32 v80, v80, v81')
    a('v_add_f32 v82, v82, v83')
    a('v_add_f32 v80, v80, v82')
    a('v_mov_b32 v81, v80')
    a('v_permlane32_swap_b32 v80, v81')
    a('v_add_f32 v80, v80, v81')
    a('s_lshl_b32 s3, s%d, 7' % S_W)
    a('s_add_u32 s3, s3, %d' % L_CS)
    a('v_and_b32 v93, 31, v1')
    a('v_lshlrev_b32 v93, 2, v93')
    a('v_add_u32 v93, s3, v93')
    a('ds_write_b32 v93, v80')
    a('v_lshrrev_b32 v93, 5, v1')
    a('v_lshlrev_b32 v93, 4, v93')
    a('v_add_u32 v93, s3, v93')
    a('s_waitcnt lgkmcnt(0)')
    for q in range(4):
        a('ds_read_b128 %s, v93 offset:%d' % (vr(72 + 4 * q, 4), 32 * q))
    a('s_branch L_g1_epi')
    a.label('L_g1_stats')
    a.fence(4)
    if G1:
        a('s_waitcnt vmcnt(0)')
        a('s_barrier')
        for q in range(8): w2load(q)
    else:
        for q in range(8): w2load(q)
        a('s_waitcnt vmcnt(8)')
        a('s_barrier')
    a('v_add_u32 v92, %d, v2' % L_H)
    for mt in range(2):
        SA, QA = 64 + 8 * mt, 68 + 8 * mt
        for ks0 in range(0, 32, 4):
            for u in range(4):
                a('ds_read_b128 %s, v92 offset:%d' % (vr(BB + 4 * u, 4), (mt * 32 + ks0 + u) * 1024))
            for u in range(4):
                a('s_waitcnt lgkmcnt(%d)' % (3 - u))
                for k in range(4):
                    first = (ks0 == 0 and u == 0)
                    a('v_dot2_f32_bf16 v%d, v%d, s44, %s' % (SA + k, BB + 4 * u + k, '0' if first else 'v%d' % (SA + k)))
                    a('v_dot2_f32_bf16 v%d, v%d, v%d, %s' % (QA + k, BB + 4 * u + k, BB + 4 * u + k, '0' if first else 'v%d' % (QA + k)))
        for base in (SA, QA):
            a('v_add_f32 v%d, v%d, v%d' % (base, base, base + 1))
            a('v_add_f32 v%d, v%d, v%d' % (base + 2, base + 2, base + 3))
            a('v_add_f32 v%d, v%d, v%d' % (base, base, base + 2))
    for (x, y) in ((64, 72), (68, 76)):
        a('v_permlane32_swap_b32 v%d, v%d' % (x, y))
        a('v_add_f32 v%d, v%d, v%d' % (x, x, y))
    a('s_mov_b32 s45, 0x%x' % f2u(1.0 / 512))
    a('s_mov_b32 s46, 0x%x' % f2u(1e-5))
    a('v_mul_f32 v64, s45, v64')
    a('v_mul_f32 v65, v64, v64')
    a('v_fma_f32 v68, v68, s45, -v65')
    a('v_add_f32 v68, s46, v68')
    a('v_rsq_f32 v68, v68')
    a('s_mov_b32 s45, 0x%x' % f2u(LOG2E))
    a('v_mul_f32 v68, s45, v68')
    a('v_mul_f32_e64 v69, -v64, v68')
    a('v_lshlrev_b32 v93, 3, v1')
    a('v_add_u32 v93, %d, v93' % L_ST)
    a('ds_write_b64 v93, v[68:69]')
    if OPT.get('wb'):
        if OPT['wb'] == 1:
            a('s_cmp_ge_u32 s2, 8')
            a('s_cbranch_scc1 L_g1_epi')
        a('buffer_wbl2 sc1')
    a.label('L_g1_epi')
    a.fence(12)
    stamp(a, 24)
    a('s_waitcnt lgkmcnt(0)')
    a('s_barrier')
    a('s_cmp_eq_u32 s%d, 7' % S_W)
    a('s_cbranch_scc1 L_g1_done')
    a('v_and_b32 v88, 31, v1')
    a('v_lshlrev_b32 v88, 3, v88')
    a('v_add_u32 v88, %d, v88' % L_ST)
    a('ds_read_b64 v[90:91], v88 offset:256')
    a('ds_read_b64 v[88:89], v88')
    a('s_waitcnt vmcnt(28)')
    for q in range(4):
        for e in range(2):
            a('v_lshlrev_b32 v%d, 16, v%d' % (8 + 4 * q + 2 * e, 64 + 2 * q + e))
            a('v_and_b32 v%d, 0xffff0000, v%d' % (8 + 4 * q + 2 * e + 1, 64 + 2 * q + e))
    a('s_mov_b32 s58, 0x%x' % f2u(LOG2E))
    a('s_mov_b32 s59, s58')
    for k in range(8):
        a('v_pk_mul_f32 v[%d:%d], v[%d:%d], s[58:59]' % (8 + 2 * k, 9 + 2 * k, 8 + 2 * k, 9 + 2 * k))
    a('s_lshl_b32 s3, s%d, 3' % S_RB)
    a('s_add_u32 s3, s3, s%d' % S_J)
    a('s_mul_i32 s3, s3, 28')
    a('s_lshl_b32 s43, s%d, 1' % S_W)
    a('s_add_u32 s3, s3, s43')
    a('s_lshl_b32 s3, s3, 10')
    a('s_add_u32 s48, s3, 0x%x' % WS_P)
    a('s_add_u32 s49, s48, %d' % (14 * 1024))
    a('s_mov_b32 s60, 0.5'); a('s_mov_b32 s61, 0.5')
    a('s_waitcnt lgkmcnt(0)')
    P2 = lambda r: 'v[%d:%d]' % (r, r + 1)
    for mt in range(2):
        RS = 88 + 2 * mt
        for g in range(0, 16, 8):
            d = D1 + 16 * mt + g
            T, U = 24, 64
            for k in range(4):
                a('v_pk_fma_f32 %s, %s, %s, %s op_sel:[0,1,0] op_sel_hi:[1,1,1]' % (P2(T + 2 * k), P2(72 + g + 2 * k), P2(RS), P2(8 + g + 2 * k)))
            for k in range(4):
                a('v_pk_fma_f32 %s, %s, %s, %s op_sel:[0,0,0] op_sel_hi:[1,0,1]' % (P2(d + 2 * k), P2(d + 2 * k), P2(RS), P2(T + 2 * k)))
            for k in range(8): a('v_exp_f32 v%d, v%d' % (T + k, d + k))
            for k in range(4):
                a('v_pk_fma_f32 %s, %s, s[60:61], 1.0 op_sel_hi:[1,1,0]' % (P2(U + 2 * k), P2(T + 2 * k)))
            for k in range(4):
                a('v_pk_fma_f32 %s, %s, %s, 1.0 op_sel_hi:[1,1,0]' % (P2(U + 2 * k), P2(T + 2 * k), P2(U + 2 * k)))
            for k in range(8): a('v_rcp_f32 v%d, v%d' % (U + k, U + k))
            for k in range(4):
                a('v_pk_fma_f32 %s, %s, %s, %s neg_lo:[1,0,0] neg_hi:[1,0,0]' % (P2(d + 2 * k), P2(d + 2 * k), P2(U + 2 * k), P2(d + 2 * k)))
            TO = 72 + 8 * mt + 4 * (g // 8)
            TO = 176 + 8 * mt + 4 * (g // 8)
            for k in range(4):
                a('v_cvt_pk_bf16_f32 v%d, v%d, v%d' % (TO + k, d + 2 * k, d + 2 * k + 1))
            st = lambda m, TO=TO, mt=mt, g=g: a('buffer_store_dwordx4 %s, v2, %s, s%d offen offset:%d%s' % (vr(TO, 4), srd(S_WS), 48 + mt, (g // 8) * 1024, m))
            if OPT.get('asc1') == 2: both(a, lambda m: st(m + ' nt'))
            elif OPT.get('asc1') == 3: st(' sc1 nt')
            elif OPT.get('asc1') == 4: both(a, lambda m: st(' sc1' if m else ' sc0'))
            elif OPT.get('asc1'): st(' sc1')
            else: both(a, st)
    a.label('L_g1_done')
    a.fence(4)
    stamp(a, 25)
    a('s_lshl_b32 s3, s%d, 3' % S_RB)
    a('s_add_u32 s3, s3, s%d' % S_J)
    a('s_lshl_b32 s3, s3, 3')
    a('s_add_u32 s3, s3, s%d' % S_W)
    a('s_lshl_b32 s3, s3, 2')
    a('s_add_u32 s3, s3, 0x%x' % WS_F5)
    fm = lambda f: both(a, f)
    if OPT.get('split'):
        a('s_waitcnt vmcnt(2)')
        fm(lambda m: flag_store(a, 's3', S_TAG, m, 72))
        a('s_add_u32 s3, s3, 0x%x' % (WS_F5B - WS_F5))
        a('s_waitcnt vmcnt(1)')
        fm(lambda m: flag_store(a, 's3', S_TAG, m, 72))
    else:
        a('s_waitcnt vmcnt(0)')
        both(a, lambda m: flag_store(a, 's3', S_TAG, m, 72))
    stamp(a, 26)
    a('s_lshl_b32 s3, s%d, 3' % S_RB)
    a('s_add_u32 s3, s3, s%d' % S_W)
    a('s_mul_i32 s18, s3, %d' % (28 * 1024))
    a('s_add_u32 s18, s18, 0x%x' % WS_P)
    a('s_add_u32 s19, s18, %d' % (14 * 1024))
    a('s_lshl_b32 s3, s3, 5')
    a('s_add_u32 s3, s3, 0x%x' % WS_F5)
    poll8(a, 's3', 72)
    stamp(a, 27)
    D2, B2, NB2 = 8, 176, 12
    seq = [(s_, mt) for s_ in range(14) for mt in range(2)]
    if OPT.get('split'): seq = [(s_, mt) for mt in range(2) for s_ in range(14)]
    def bload2(i):
        s_, mt = seq[i]
        base = 18 + mt
        if s_ in (4, 8, 12): a('s_add_u32 s%d, s%d, 4096' % (base, base))
        a('buffer_load_dwordx4 %s, v2, %s, s%d offen offset:%d sc1' % (vr(B2 + 4 * (i % NB2), 4), srd(S_WS), base, (s_ % 4) * 1024))
    if OPT.get('split'): a('s_add_u32 s50, s3, 0x%x' % (WS_F5B - WS_F5))
    for i in range(NB2): bload2(i)
    if OPT.get('split'): poll8(a, 's50', 72)
    W2B = OPT.get('wb2', 0)
    for i, (s_, mt) in enumerate(seq):
        issued = min(len(seq), i + NB2)
        if W2B and i == len(seq) - NB2:
            lw = uid('L_wb2')
            a('s_cmp_lg_u32 s%d, %d' % (S_W, 7 if W2B != 3 else 0))
            a('s_cbranch_scc1 %s' % lw)
            if W2B in (1, 3):
                a('s_cmp_ge_u32 s2, 8')
            else:
                a('s_cmp_lg_u32 s%d, 0' % S_J)
            a('s_cbranch_scc1 %s' % lw)
            a('buffer_wbl2 sc1')
            for i2 in range(i, len(seq)):
                s2_, mt2 = seq[i2]
                a('s_waitcnt vmcnt(%d)' % (len(seq) - (i2 + 1) + 1))
                for nt in range(2):
                    acc = D2 + 16 * (2 * nt + mt2)
                    a('v_mfma_f32_32x32x16_bf16 %s, %s, %s, %s' % (vr(acc, 16), vr(w2_slot_reg(nt * 14 + s2_), 4), vr(B2 + 4 * (i2 % NB2), 4), vr(acc, 16)))
            a('s_branch L_g2_done')
            a.label(lw)
        a('s_waitcnt vmcnt(%d)' % (issued - (i + 1)))
        for nt in range(2):
            acc = D2 + 16 * (2 * nt + mt)
            a('v_mfma_f32_32x32x16_bf16 %s, %s, %s, %s' % (vr(acc, 16), vr(w2_slot_reg(nt * 14 + s_), 4), vr(B2 + 4 * (i % NB2), 4),
                                                          '0' if s_ == 0 else vr(acc, 16)))
        if i + NB2 < len(seq): bload2(i + NB2)
    a.label('L_g2_done')
    a.fence(2)
    stamp(a, 28)
    a('s_lshr_b32 s48, s%d, 2' % S_W)
    a('s_lshl_b32 s48, s48, 2')
    a('s_and_b32 s49, s%d, 1' % S_W)
    a('s_lshl_b32 s49, s49, 1')
    a('s_bfe_u32 s50, s%d, 0x10001' % S_W)
    a('s_add_u32 s48, s48, s49')
    a('s_add_u32 s48, s48, s50')
    a('s_lshl_b32 s3, s%d, 11' % S_W)
    a('v_add_u32 v72, s3, v2')
    a('v_add_u32 v73, 0x10000, v72')
    a.fence(12)
    for p_ in range(8):
        nt, mt, hf = p_ >> 2, (p_ >> 1) & 1, p_ & 1
        r = D2 + 16 * (2 * nt + mt) + 8 * hf
        lo, ln = uid('L_own'), uid('L_nx')
        a('s_cmp_eq_u32 s48, %d' % p_)
        a('s_cbranch_scc1 %s' % lo)
        vb, off = (72, p_ * 16384) if p_ < 4 else (73, (p_ - 4) * 16384)
        a('ds_write_b128 v%d, %s offset:%d' % (vb, vr(r, 4), off))
        a('ds_write_b128 v%d, %s offset:%d' % (vb, vr(r + 4, 4), off + 1024))
        a('s_branch %s' % ln)
        a.label(lo)
        for k in range(8): a('v_mov_b32 v%d, v%d' % (80 + k, r + k))
        a.label(ln)
    a('s_lshl_b32 s3, s48, 14')
    a('v_add_u32 v74, s3, v2')
    for k in range(4):
        a('v_lshlrev_b32 v%d, 16, v%d' % (88 + 2 * k, 4 + k))
        a('v_and_b32 v%d, 0xffff0000, v%d' % (89 + 2 * k, 4 + k))
    a('s_waitcnt lgkmcnt(0)')
    a('s_barrier')
    stamp(a, 29)
    for d in range(1, 8):
        a('s_add_u32 s3, s%d, %d' % (S_W, d))
        a('s_and_b32 s3, s3, 7')
        a('s_lshl_b32 s3, s3, 11')
        a('v_add_u32 v75, s3, v74')
        a('ds_read_b128 %s, v75' % vr(8 + 8 * (d - 1), 4))
        a('ds_read_b128 %s, v75 offset:1024' % vr(12 + 8 * (d - 1), 4))
    P2 = lambda r: 'v[%d:%d]' % (r, r + 1)
    for d in range(1, 8):
        a('s_waitcnt lgkmcnt(%d)' % (2 * (7 - d)))
        for k in range(4):
            a('v_pk_add_f32 %s, %s, %s' % (P2(80 + 2 * k), P2(80 + 2 * k), P2(8 + 8 * (d - 1) + 2 * k)))
    a('s_mov_b32 s3, 0x%x' % f2u(1.0 / LOG2E))
    for k in range(8): a('v_fma_f32 v%d, v%d, s3, v%d' % (80 + k, 80 + k, 88 + k))
    for k in range(4): a('v_cvt_pk_bf16_f32 v%d, v%d, v%d' % (8 + k, 80 + 2 * k, 81 + 2 * k))
    a('v_permlane32_swap_b32 v8, v10')
    a('v_permlane32_swap_b32 v9, v11')
    a('v_and_b32 v13, 31, v1')
    a('v_lshrrev_b32 v14, 5, v1')
    a('v_lshlrev_b32 v13, 10, v13')
    a('v_lshl_add_u32 v13, v14, 4, v13')
    a('buffer_store_dwordx4 v[8:11], v13, %s, s53 offen%s' % (srd(S_OUT), {0: '', 1: ' sc1', 2: ' nt', 3: ' sc1 nt'}[OPT.get('osc1', 0)]))
    a('s_cmp_lg_u32 s2, 0')
    a('s_cbranch_scc1 L_ep_done')
    a('s_cmp_lg_u32 s%d, 0' % S_W)
    a('s_cbranch_scc1 L_ep_done')
    a('s_mov_b32 s3, 0x%x' % WS_EPOCH)
    flag_store(a, 's3', S_E1, ' sc1', 72)
    a.label('L_ep_done')


def gen_fused(force_slow=False):
    n = NAME + '_kernel'
    text = HEADER + '; @launch grid=(256,1,1) block=(512,1,1) lds=163840\n'
    text += '.amdgcn_target "amdgcn-amd-amdhsa--gfx950"\n.text\n'
    a = Asm()
    end = 'L_end'
    setup(a, end)
    if STAMPS: a('v_mov_b32 v%d, 0' % STAMP_V)
    stamp(a, 0)
    phase1(a)
    phase2(a, force_slow)
    phase3(a)
    phase45(a)
    if STAMPS:
        a('s_waitcnt vmcnt(0)')
        stamp(a, 31)
        stamp_flush(a)
    if not OPT.get('noend'): a('s_waitcnt vmcnt(0)')
    a.label(end)
    a('s_endpgm')
    text += G.kernel_wrap(n, a.text())
    text += '.section .rodata,"a"\n.p2align 6\n' + G.desc(n)
    return text


if __name__ == '__main__':
    out = sys.argv[1] if len(sys.argv) > 1 else 'cdna_kernels/%s.s' % NAME
    for t in sys.argv[2:]:
        if '=' in t:
            k, v = t.split('='); OPT[k] = int(v)
        else:
            OPT[t] = 1
    STAMPS = 'stamps' in OPT
    t = gen_fused(force_slow='slow' in OPT)
    open(out, 'w').write(t)
    print('wrote', out, len(t))
```

```python
import sys, os
sys.path.insert(0, os.path.dirname(__file__))
from asmlib import Asm
import gen as G
from gen import (NAME, f2u, srd, vr, mk_srd, ln_stats, ln_apply, LOG2E, LIMIT2,
                 S_X, S_WQ, S_WKV, S_B1, S_OUT, S_WS, S_J, S_RB, S_W,
                 WS_KMAX, WS_WO, WS_W1, WS_W2, WS_O, WS_H, WS_P, WS_STAMP, WS_SIZE, HEADER)

WS_F1 = 0x30000
WS_F2 = 0x30400
WS_F3 = 0x31000
WS_F4 = 0x33000
WS_F5 = 0x35000
WS_EPOCH = 0x37000
WS_F5B = 0x38000
S_TAG, S_FAST, S_E1, S_F1V = 100, 101, 16, 17
OPT = {}
STAMPS = False
STAMP_V = 0
SPIN = 1 << 17
_uid = [0]


def uid(p):
    _uid[0] += 1
    return '%s_%d' % (p, _uid[0])


def stamp(a, idx):
    if not STAMPS: return
    a('s_waitcnt lgkmcnt(0)')
    a('s_memtime s[96:97]')
    a('s_memrealtime s[98:99]')
    a('s_waitcnt lgkmcnt(0)')
    a('v_writelane_b32 v%d, s96, %d' % (STAMP_V, idx))
    a('v_writelane_b32 v%d, s98, %d' % (STAMP_V, idx + 32))


def stamp_flush_dbg(a):
    sel = [(0, 1), (0, 0), (12, 0), (16, 0), (17, 0), (21, 0), (23, 0), (24, 0), (26, 0), (27, 0), (28, 0), (29, 0), (31, 0), (31, 1), (4, 0), (9, 0)]
    for i, (idx, neg) in enumerate(sel):
        a('v_readlane_b32 s3, v%d, %d' % (STAMP_V, idx + 32))
        if neg: a('s_not_b32 s3, s3')
        a('s_nop 3')
        a('v_writelane_b32 v4, s3, %d' % i)
    a('v_lshlrev_b32 v3, 2, v1')
    a('s_mov_b64 exec, 0xffff')
    a('global_atomic_umax v3, v4, s[22:23]')
    a('s_mov_b64 exec, -1')


def stamp_flush(a):
    if not STAMPS: return
    if OPT.get('dbg'):
        stamp_flush_dbg(a); return
    a('s_lshl_b32 s3, s2, 11')
    a('s_lshl_b32 s43, s%d, 8' % S_W)
    a('s_add_u32 s3, s3, s43')
    a('s_add_u32 s3, s3, 0x%x' % WS_STAMP)
    a('v_lshlrev_b32 v3, 2, v1')
    a('buffer_store_dword v%d, v3, %s, s3 offen' % (STAMP_V, srd(S_WS)))


def both(a, fn):
    if OPT.get('nofast'):
        fn(' sc1'); return
    ls, ld = uid('L_sl'), uid('L_dn')
    a('s_cmp_eq_u32 s%d, 0' % S_FAST)
    a('s_cbranch_scc1 %s' % ls)
    fn('')
    a('s_branch %s' % ld)
    a.label(ls)
    fn(' sc1')
    a.label(ld)


def flag_store(a, soff, val, mod, vt):
    a('v_mov_b32 v%d, s%d' % (vt, val))
    a('s_mov_b64 exec, 1')
    a('buffer_store_dword v%d, off, %s, %s%s' % (vt, srd(S_WS), soff, mod))
    a('s_mov_b64 exec, -1')


def poll8(a, soff, vt, sleep=True):
    l, d = uid('L_poll'), uid('L_pd')
    a('v_and_b32 v%d, 7, v1' % (vt + 1))
    a('v_lshlrev_b32 v%d, 2, v%d' % (vt + 1, vt + 1))
    a('s_mov_b32 s43, %d' % SPIN)
    a.label(l)
    a('buffer_load_dword v%d, v%d, %s, %s offen sc1' % (vt, vt + 1, srd(S_WS), soff))
    a('s_waitcnt vmcnt(0)')
    a('v_cmp_ne_u32 vcc, s%d, v%d' % (S_TAG, vt))
    a('s_cbranch_vccz %s' % d)
    a('s_sub_u32 s43, s43, 1')
    a('s_cmp_lg_u32 s43, 0')
    a('s_cbranch_scc1 %s' % l)
    a.label(d)


def check256(a, vt):
    for k in range(4):
        a('v_xor_b32 v%d, s%d, v%d' % (vt + k, S_TAG, vt + k))
    a('v_or3_b32 v%d, v%d, v%d, v%d' % (vt, vt, vt + 1, vt + 2))
    a('v_or_b32 v%d, v%d, v%d' % (vt, vt, vt + 3))
    a('v_cmp_le_u32 vcc, 16, v%d' % vt)


def poll256(a, base, vt, first_loaded=False):
    l, d, c = uid('L_poll'), uid('L_pd'), uid('L_pc')
    a('s_mov_b32 s43, %d' % SPIN)
    a('s_mov_b32 s3, 0x%x' % base)
    if first_loaded:
        a('s_branch %s' % c)
    a.label(l)
    a('buffer_load_dwordx4 %s, v2, %s, s3 offen sc1' % (vr(vt, 4), srd(S_WS)))
    a.label(c)
    a('s_waitcnt vmcnt(0)')
    check256(a, vt)
    a('s_cbranch_vccz %s' % d)
    a('s_sub_u32 s43, s43, 1')
    a('s_cmp_lg_u32 s43, 0')
    a('s_sleep %d' % OPT.get('slp', 2))
    a('s_cbranch_scc1 %s' % l)
    a.label(d)


def setup(a, endlabel):
    a('s_cmp_ge_u32 s2, 256')
    a('s_cbranch_scc1 %s' % endlabel)
    a('s_load_dwordx16 s[64:79], s[0:1], 0')
    a('s_load_dwordx8 s[80:87], s[0:1], 64')
    a('v_lshrrev_b32 v2, 6, v0')
    a('v_and_b32 v1, 63, v0')
    a('v_readfirstlane_b32 s%d, v2' % S_W)
    a('v_lshlrev_b32 v2, 4, v1')
    a('s_lshr_b32 s%d, s2, 3' % S_J)
    a('s_and_b32 s%d, s%d, 7' % (S_J, S_J))
    a('s_and_b32 s%d, s2, 7' % S_RB)
    a('s_lshl_b32 s%d, s%d, 2' % (S_RB, S_RB))
    a('s_lshr_b32 s3, s2, 6')
    a('s_add_u32 s%d, s%d, s3' % (S_RB, S_RB))
    a('s_getreg_b32 s%d, hwreg(HW_REG_XCC_ID, 0, 4)' % S_F1V)
    a('s_waitcnt lgkmcnt(0)')
    a('s_load_dword s%d, s[86:87], 0x%x' % (S_E1, WS_EPOCH))
    if OPT.get('dbg'):
        a('s_mov_b32 s22, s84'); a('s_mov_b32 s23, s85')
    mk_srd(a, S_X, 64, 2048 * 512 * 2)
    a('s_bitcmp1_b32 s%d, 0' % S_J)
    a('s_cselect_b32 s%d, s70, s68' % S_WKV)
    a('s_cselect_b32 s%d, s71, s69' % (S_WKV + 1))
    a('s_mov_b32 s%d, 0x%x' % (S_WKV + 2, 512 * 16 * 2))
    a('s_mov_b32 s%d, 0x20000' % (S_WKV + 3))
    mk_srd(a, S_WQ, 66, 512 * 512 * 2)
    mk_srd(a, S_WS, 86, WS_SIZE)
    mk_srd(a, S_B1, 78, 1792 * 2)
    mk_srd(a, S_OUT, 82, 2048 * 512 * 2)


L_WKV, L_X, L_WQ = 0, 32768, 98304
TS_ = 2064
KVB = 16256
L_QX = 0
L_BC = 16128
L_TBA, L_TBB = 148480, 4096
CTRL = 7


def tb_setup(a):
    a('s_cmp_lt_u32 s2, 112')
    a('s_cbranch_scc1 L_tb_w1')
    a('s_cmp_lt_u32 s2, 224')
    a('s_cbranch_scc1 L_tb_w2')
    a('s_sub_u32 s3, s2, 224')
    a('s_mov_b32 s52, s72'); a('s_mov_b32 s53, s73'); a('s_mov_b32 s54, 0x%x' % (512 * 512 * 2))
    a('s_mov_b32 s56, 1024')
    a('s_and_b32 s60, s3, 3'); a('s_lshr_b32 s61, s3, 2')
    a('s_mov_b32 s59, %d' % (32 * 1024))
    a('s_mov_b32 s62, 0x%x' % WS_WO)
    a('s_branch L_tb_go')
    a.label('L_tb_w1')
    a('s_mov_b32 s52, s76'); a('s_mov_b32 s53, s77'); a('s_mov_b32 s54, 0x%x' % (512 * 1792 * 2))
    a('s_mov_b32 s56, 3584')
    a('s_and_b32 s60, s2, 3'); a('s_lshr_b32 s61, s2, 2')
    a('s_mov_b32 s59, %d' % (32 * 1024))
    a('s_mov_b32 s62, 0x%x' % WS_W1)
    a('s_branch L_tb_go')
    a.label('L_tb_w2')
    a('s_sub_u32 s3, s2, 112')
    a('s_mov_b32 s52, s80'); a('s_mov_b32 s53, s81'); a('s_mov_b32 s54, 0x%x' % (1792 * 512 * 2))
    a('s_mov_b32 s56, 1024')
    a('s_lshr_b32 s60, s3, 3'); a('s_and_b32 s61, s3, 7')
    a('s_mov_b32 s59, %d' % (112 * 1024))
    a('s_mov_b32 s62, 0x%x' % WS_W2)
    a.label('L_tb_go')
    a('s_mov_b32 s55, 0x20000')
    a('s_lshl_b32 s3, s60, 7')
    a('s_lshl_b32 s43, s%d, 4' % S_W)
    a('s_add_u32 s3, s3, s43')
    a('s_mul_i32 s57, s3, s56')
    a('s_lshl_b32 s3, s61, 7')
    a('s_add_u32 s57, s57, s3')
    a('s_lshl_b32 s3, s61, 1')
    a('s_mul_i32 s58, s3, s59')
    a('s_add_u32 s58, s58, s62')
    a('s_lshl_b32 s3, s60, 3')
    a('s_add_u32 s3, s3, s%d' % S_W)
    a('s_lshl_b32 s3, s3, 10')
    a('s_add_u32 s58, s58, s3')
    a('s_lshl_b32 s60, s%d, 11' % S_W)
    a('s_cmp_lt_u32 s%d, 4' % S_W)
    a('s_mov_b32 s3, %d' % L_TBA)
    a('s_cselect_b32 s3, s3, 0x%x' % ((L_TBB - 4 * 2048) & 0xffffffff))
    a('s_add_u32 s60, s60, s3')


def swz_off(a, vr_, vp):
    a('v_lshrrev_b32 v%d, 3, v1' % vr_)
    a('v_and_b32 v%d, 7, v1' % vp)
    a('v_lshlrev_b32 v%d, 1, v%d' % (vp + 1, vr_))
    a('v_and_b32 v%d, 4, v%d' % (vp + 1, vp + 1))
    a('v_xor_b32 v%d, v%d, v%d' % (vp, vp, vp + 1))
    a('v_lshlrev_b32 v%d, 4, v%d' % (vp, vp))


def phase1(a):
    XR, XQ = 32, 40
    TS, TQ, TT = 8, 16, 24
    QR = [90, 91, 92, 93, 94, 95, 63]
    a('s_lshr_b32 s47, s%d, 1' % S_J)
    a('s_lshl_b32 s47, s47, 4')
    a('s_lshl_b32 s88, s%d, 1' % S_W)
    a('s_add_u32 s88, s88, s47')
    a('s_add_u32 s89, s88, 1')
    a('s_lshl_b32 s48, s%d, 16' % S_RB)
    def xload(sr, v):
        a('s_lshl_b32 s43, s%d, 10' % sr)
        a('s_add_u32 s43, s43, s48')
        a('buffer_load_dwordx4 %s, v2, %s, s43 offen' % (vr(v, 4), srd(S_X)))
    def ipf():
        a('s_getpc_b64 s[90:91]')
        a.label('L_pc')
        a('v_lshlrev_b32 v8, 7, v1')
        a('s_lshl_b32 s3, s%d, 13' % S_W)
        a('v_add_u32 v8, s3, v8')
        a('s_mov_b32 s3, L_end-L_pc-4')
        a('v_min_u32 v8, s3, v8')
        a('v_mov_b32 v9, s91')
        a('v_add_co_u32 v8, vcc, s90, v8')
        a('v_addc_co_u32 v9, vcc, 0, v9, vcc')
        lim = {1: 0, 3: 32, 4: 8, 5: 64}[OPT.get('ipf')]
        if lim:
            a('s_cmp_ge_u32 s2, %d' % lim)
            a('s_cbranch_scc1 L_ipf_skip')
        a('global_load_dword v10, v[8:9], off')
        if lim:
            a.label('L_ipf_skip')
    if OPT.get('ipf') in (1, 3, 4, 5): ipf()
    xload(88, XR); xload(89, XR + 4)
    KVP = OPT.get('kvpre', 0)
    if KVP:
        a('s_cmp_lg_u32 s%d, %d' % (S_W, CTRL))
        a('s_cbranch_scc1 L_p1_nowkv')
        for g in range(4):
            a('s_mov_b32 s43, %d' % (g * 4096))
            a('s_mov_b32 m0, s43')
            a('s_nop 0')
            for k in range(4):
                a('buffer_load_dwordx4 v2, %s, s43 offen offset:%d lds' % (srd(S_WKV), k * 1024))
        a.label('L_p1_nowkv')
    else:
        a('s_lshl_b32 s43, s%d, 11' % S_W)
        a('s_mov_b32 m0, s43')
        a('buffer_load_dwordx4 v2, %s, s43 offen lds' % srd(S_WKV))
        a('buffer_load_dwordx4 v2, %s, s43 offen offset:1024 lds' % srd(S_WKV))
    def qrows():
        a('s_cmp_eq_u32 s%d, %d' % (S_W, CTRL))
        a('s_cbranch_scc1 L_p1_noq')
        for t in range(7):
            r = QR[t]
            a('s_mul_i32 s%d, s%d, 7' % (r, S_W))
            a('s_add_u32 s%d, s%d, %d' % (r, r, t))
            if t == 6: a('s_min_u32 s%d, s%d, 47' % (r, r))
            a('s_add_u32 s43, s%d, 16' % r)
            a('s_cmp_lt_u32 s%d, s47' % r)
            a('s_cselect_b32 s%d, s%d, s43' % (r, r))
            xload(r, XQ + 4 * t)
        a.label('L_p1_noq')
    P1Q = OPT.get('p1q', 0)
    if not P1Q: qrows()
    a('s_mov_b32 s44, 0x3f803f80')
    a('s_mov_b32 s45, 0x%x' % f2u(1.0 / 512))
    a('s_mov_b32 s46, 0x%x' % f2u(1e-5))
    tb_setup(a)
    swz_off(a, 3, 4)
    a('v_lshl_add_u32 v5, v3, 10, v4')
    stamp(a, 1)
    if P1Q:
        if KVP:
            a('s_cmp_eq_u32 s%d, %d' % (S_W, CTRL))
            a('s_cbranch_scc1 L_p1_w7')
            a('s_waitcnt vmcnt(0) lgkmcnt(0)')
            a('s_branch L_p1_w')
            a.label('L_p1_w7')
            a('s_waitcnt vmcnt(16) lgkmcnt(0)')
            a.label('L_p1_w')
        else:
            a('s_waitcnt vmcnt(2) lgkmcnt(0)')
        qrows()
    else:
        a('s_cmp_eq_u32 s%d, %d' % (S_W, CTRL))
        a('s_cbranch_scc1 L_p1_w7')
        a('s_waitcnt vmcnt(9) lgkmcnt(0)')
        a('s_branch L_p1_w')
        a.label('L_p1_w7')
        a('s_waitcnt vmcnt(2) lgkmcnt(0)')
        a.label('L_p1_w')
    a('s_mul_i32 s%d, s%d, 0x9E3779B1' % (S_TAG, S_E1))
    a('s_add_u32 s%d, s%d, 0x7F4A7C15' % (S_TAG, S_TAG))
    a('s_and_b32 s%d, s%d, 0xFFFFFFF0' % (S_TAG, S_TAG))
    a('s_or_b32 s%d, s%d, s%d' % (S_F1V, S_F1V, S_TAG))
    a('s_add_u32 s%d, s%d, 1' % (S_E1, S_E1))
    stamp(a, 2)
    SB = 72
    ln_stats(a, [XR, XR + 4], TS, TQ, SB)
    def xstore(sr, v):
        a('s_lshl_b32 s3, s%d, 10' % sr)
        a('s_and_b32 s43, s%d, 15' % sr)
        a('s_lshl_b32 s43, s43, 4')
        a('s_add_u32 s3, s3, s43')
        a('s_add_u32 s3, s3, %d' % L_X)
        a('v_xor_b32 v7, s3, v2')
        a('ds_write_b128 v7, %s' % vr(v, 4))
    for i in range(2):
        ln_apply(a, XR + 4 * i, SB + 2 * i, TT)
        xstore(88 + i, XR + 4 * i)
    a('s_cmp_eq_u32 s%d, %d' % (S_W, CTRL))
    a('s_cbranch_scc1 L_p1_w7b')
    a('s_waitcnt vmcnt(7) lgkmcnt(0)')
    stamp(a, 3)
    a('s_barrier')
    stamp(a, 4)
    a('s_lshl_b32 s49, s%d, 13' % S_W)
    a('s_lshl_b32 s43, s%d, 7' % S_J)
    a('s_add_u32 s49, s49, s43')
    a('s_lshl_b32 s50, s%d, 10' % S_W)
    a('s_add_u32 s50, s50, %d' % L_WQ)
    nq = [0]
    def wq(n=1):
        for _ in range(n):
            a('s_mov_b32 m0, s50')
            a('s_add_u32 s50, s50, %d' % (7 * 1024))
            a('buffer_load_dwordx4 v5, %s, s49 offen lds' % srd(S_WQ))
            a('s_add_u32 s49, s49, %d' % (7 * 8192))
            nq[0] += 1
    wq(2)
    a('s_waitcnt vmcnt(5)')
    rows = [XQ + 4 * t for t in range(7)]
    ln_stats(a, rows[0:4], TS, TQ, SB)
    wq(2)
    for t in range(4):
        ln_apply(a, rows[t], SB + 2 * t, TT)
        xstore(QR[t], rows[t])
        if t % 2 == 1: wq(1)
    a('s_waitcnt vmcnt(6)')
    ln_stats(a, [rows[4], rows[5], rows[6], rows[3]], TS, TQ, SB)
    wq(2)
    for t in range(4, 7):
        ln_apply(a, rows[t], SB + 2 * (t - 4), TT)
        xstore(QR[t], rows[t])
        if t == 4: wq(1)
    assert nq[0] == 9
    a('s_cmp_lg_u32 s%d, 0' % S_W)
    a('s_cbranch_scc1 L_p1_wq9')
    wq(1)
    a.label('L_p1_wq9')
    stamp(a, 7)
    a('s_waitcnt vmcnt(0) lgkmcnt(0)')
    stamp(a, 8)
    a('s_barrier')
    stamp(a, 9)
    a('s_cmp_ge_u32 s%d, 4' % S_W)
    a('s_cbranch_scc1 L_q_done')
    a('s_and_b32 s48, s%d, 1' % S_W)
    a('s_lshr_b32 s49, s%d, 1' % S_W)
    a('v_lshrrev_b32 v8, 5, v1')
    a('v_bfe_u32 v9, v1, 4, 1')
    a('v_bfe_u32 v10, v1, 2, 2')
    a('v_and_b32 v11, 3, v1')
    a('v_lshrrev_b32 v12, 1, v11')
    a('v_lshl_add_u32 v12, v9, 1, v12')
    a('v_lshrrev_b32 v13, 1, v10')
    a('v_lshlrev_b32 v13, 2, v13')
    a('v_xor_b32 v12, v12, v13')
    a('v_lshlrev_b32 v12, 4, v12')
    a('v_and_b32 v11, 1, v11')
    a('v_lshl_add_u32 v12, v11, 3, v12')
    a('v_lshl_add_u32 v13, v8, 3, v10')
    a('v_lshl_add_u32 v13, v13, 7, v12')
    a('s_lshl_b32 s43, s48, 6')
    a('v_xor_b32 v13, s43, v13')
    a('v_add_u32 v13, %d, v13' % L_WQ)
    a('v_and_b32 v16, 31, v1')
    a('v_and_b32 v17, 15, v1')
    a('v_xor_b32 v17, v17, v8')
    a('v_lshlrev_b32 v17, 4, v17')
    a('v_lshl_add_u32 v17, v16, 10, v17')
    a('s_lshl_b32 s3, s49, 15')
    a('s_add_u32 s3, s3, %d' % L_X)
    a('v_add_u32 v24, s3, v17')
    for q in range(1, 8):
        a('v_xor_b32 v%d, %d, v24' % (24 + q, 32 * q))
    QA, QB, QD, NR, PF = 64, 128, 32, 8, 4
    def qload(s):
        a('ds_read_b64_tr_b16 %s, v13 offset:%d' % (vr(QA + 4 * (s % NR), 2), 2048 * s))
        a('ds_read_b64_tr_b16 %s, v13 offset:%d' % (vr(QA + 4 * (s % NR) + 2, 2), 2048 * s + 512))
        a('ds_read_b128 %s, v%d offset:%d' % (vr(QB + 4 * (s % NR), 4), 24 + s % 8, (s // 8) * 256))
    for s in range(PF): qload(s)
    for s in range(32):
        if s + PF < 32: qload(s + PF)
        rem = min(32, s + PF + 1) - (s + 1)
        a('s_waitcnt lgkmcnt(%d)' % min(15, 3 * rem))
        a('v_mfma_f32_32x32x16_bf16 %s, %s, %s, %s' % (vr(QD, 16), vr(QA + 4 * (s % NR), 4), vr(QB + 4 * (s % NR), 4), '0' if s == 0 else vr(QD, 16)))
    a('s_mov_b32 s3, 0x%x' % f2u(0.25 * LOG2E))
    a('s_lshl_b32 s43, s%d, 10' % S_W)
    a('v_add_u32 v8, s43, v2')
    a.fence(12)
    for k in range(16):
        a('v_mul_f32 v%d, s3, v%d' % (QD + k, QD + k))
    for k in range(4):
        a('v_cvt_pk_bf16_f32 v%d, v%d, v%d' % (8 + 4 + k, QD + 8 + 2 * k, QD + 9 + 2 * k))
    a('ds_write_b128 v8, v[12:15] offset:%d' % L_QX)
    for k in range(4):
        a('v_cvt_pk_bf16_f32 v%d, v%d, v%d' % (R_Q + k, QD + 2 * k, QD + 2 * k + 1))
    a.label('L_q_done')
    a('s_waitcnt lgkmcnt(0)')
    stamp(a, 11)
    a('s_barrier')
    a('s_branch L_p1_end')
    a.label('L_p1_w7b')
    a.fence(4)
    a('s_waitcnt vmcnt(0) lgkmcnt(0)')
    if not KVP:
        stamp(a, 3)
        a('s_barrier')
        stamp(a, 4)
    KW, KX = 64, 128
    a('v_lshrrev_b32 v8, 4, v1')
    a('v_and_b32 v9, 15, v1')
    a('v_lshlrev_b32 v10, 8, v8')
    a('v_lshl_add_u32 v10, v9, 3, v10')
    a('v_xor_b32 v11, v8, v9')
    a('v_lshlrev_b32 v11, 4, v11')
    a('v_add_u32 v12, s47, v9')
    a('v_lshlrev_b32 v12, 10, v12')
    a('v_add_u32 v12, %d, v12' % L_X)
    a('v_add_u32 v12, v12, v11')
    a('v_xor_b32 v13, 64, v12')
    a('v_xor_b32 v14, 0x80, v12')
    a('v_xor_b32 v15, 0xc0, v12')
    def kvload(ks):
        if not KVP:
            a('ds_read_b64_tr_b16 %s, v10 offset:%d' % (vr(KW + 4 * ks, 2), 1024 * ks))
            a('ds_read_b64_tr_b16 %s, v10 offset:%d' % (vr(KW + 4 * ks + 2, 2), 1024 * ks + 128))
        a('ds_read_b128 %s, v%d offset:%d' % (vr(KX + 4 * ks, 4), 12 + ks % 4, (ks // 4) * 256))
    KPF = 8 if KVP else 4
    if KVP:
        for ks in range(16):
            a('ds_read_b64_tr_b16 %s, v10 offset:%d' % (vr(KW + 4 * ks, 2), 1024 * ks))
            a('ds_read_b64_tr_b16 %s, v10 offset:%d' % (vr(KW + 4 * ks + 2, 2), 1024 * ks + 128))
            if ks % 4 == 3: a('s_waitcnt lgkmcnt(4)')
        a('s_waitcnt lgkmcnt(0)')
        stamp(a, 3)
        a('s_barrier')
        stamp(a, 4)
    for ks in range(KPF): kvload(ks)
    a('s_bitcmp1_b32 s%d, 0' % S_J)
    a('s_cbranch_scc1 L_kv_v')
    for var in (0, 1):
        if var: a.label('L_kv_v'); a.fence(4)
        for ks in range(16):
            if ks + KPF < 16: kvload(ks + KPF)
            a('s_waitcnt lgkmcnt(%d)' % ((1 if KVP else 3) * (min(16, ks + KPF + 1) - (ks + 1))))
            acc = 16 + 4 * (ks % 2)
            A, B = (KW + 4 * ks, KX + 4 * ks) if var == 0 else (KX + 4 * ks, KW + 4 * ks)
            a('v_mfma_f32_16x16x32_bf16 %s, %s, %s, %s' % (vr(acc, 4), vr(A, 4), vr(B, 4), '0' if ks < 2 else vr(acc, 4)))
        for k in range(4):
            a('v_add_f32 v%d, v%d, v%d' % (16 + k, 16 + k, 20 + k))
        a('v_cvt_pk_bf16_f32 v16, v16, v17')
        a('v_cvt_pk_bf16_f32 v17, v18, v19')
        a('v_and_b32 v18, 1, v8')
        a('v_lshlrev_b32 v18, %d, v18' % (9 if var == 0 else 8))
        a('v_lshl_add_u32 v18, v9, 4, v18')
        a('v_lshrrev_b32 v19, 1, v8')
        a('v_lshl_add_u32 v18, v19, 3, v18')
        a('s_lshl_b32 s3, s%d, 1' % S_RB)
        a('s_lshr_b32 s43, s47, 5')
        a('s_add_u32 s3, s3, s43')
        a('s_lshl_b32 s3, s3, 11')
        a('s_and_b32 s43, s47, 16')
        if var == 0:
            a('s_lshl_b32 s43, s43, 4')
        else:
            a('s_lshl_b32 s43, s43, 5')
            a('s_add_u32 s43, s43, 1024')
        a('s_add_u32 s3, s3, s43')
        a('buffer_store_dwordx2 v[16:17], v18, %s, s3 offen sc1' % srd(S_WS))
        if var == 0:
            a('v_dot2_f32_bf16 v20, v16, v16, 0')
            a('v_dot2_f32_bf16 v20, v17, v17, v20')
            a('v_mov_b32 v21, v20')
            a('v_permlane32_swap_b32 v20, v21')
            a('v_add_f32 v20, v20, v21')
            a('v_mov_b32 v21, v20')
            a('v_permlane16_swap_b32 v20, v21')
            a('v_add_f32 v20, v20, v21')
            for sh in (8, 4, 2, 1):
                a('v_max_f32_dpp v20, v20, v20 row_ror:%d row_mask:0xf bank_mask:0xf' % sh)
            a('s_lshl_b32 s3, s%d, 2' % S_RB)
            a('s_lshr_b32 s43, s%d, 1' % S_J)
            a('s_add_u32 s3, s3, s43')
            a('s_lshl_b32 s3, s3, 2')
            a('s_add_u32 s3, s3, 0x%x' % WS_KMAX)
            a('s_mov_b64 exec, 1')
            a('buffer_store_dword v20, off, %s, s3 sc1' % srd(S_WS))
            a('s_mov_b64 exec, -1')
            a('s_branch L_kv_done')
    a.label('L_kv_done')
    a.fence(4)
    stamp(a, 5)
    a('s_lshl_b32 s3, s%d, 3' % S_RB)
    a('s_add_u32 s3, s3, s%d' % S_J)
    a('s_lshl_b32 s3, s3, 2')
    a('s_add_u32 s3, s3, 0x%x' % WS_F1)
    a('s_waitcnt vmcnt(0)')
    stamp(a, 6)
    flag_store(a, 's3', S_F1V, ' sc1', 8)
    a('s_barrier')
    stamp(a, 8)
    poll256(a, WS_F1, 56)
    stamp(a, 7)
    a('v_and_b32 v8, 7, v1')
    a('v_lshlrev_b32 v8, 2, v8')
    a('s_lshl_b32 s3, s%d, 5' % S_RB)
    a('s_add_u32 s3, s3, 0x%x' % WS_F1)
    a('buffer_load_dword v12, v8, %s, s3 offen sc1' % srd(S_WS))
    a('v_lshlrev_b32 v8, 3, v1')
    a('s_mov_b32 s3, 0x%x' % WS_KMAX)
    a('buffer_load_dwordx2 v[10:11], v8, %s, s3 offen sc1' % srd(S_WS))
    a('s_mov_b32 s3, 0')
    a('s_mov_b32 s43, %d' % KVB)
    for t in range(8):
        a('s_mov_b32 m0, s43')
        a('s_add_u32 s43, s43, %d' % TS_)
        a('buffer_load_dwordx4 v2, %s, s3 offen sc1 lds' % srd(S_WS))
        a('buffer_load_dwordx4 v2, %s, s3 offen offset:1024 sc1 lds' % srd(S_WS))
        if t < 7: a('s_add_u32 s3, s3, 2048')
    a('s_waitcnt vmcnt(16)')
    a('v_cmp_ne_u32 vcc, s%d, v12' % S_F1V)
    a('s_cmp_eq_u64 vcc, 0')
    a('s_cselect_b32 s3, 1, 0')
    a('v_max_f32 v10, v10, v11')
    a('v_mov_b32 v11, v10')
    a('v_permlane32_swap_b32 v10, v11')
    a('v_max_f32 v10, v10, v11')
    a('v_mov_b32 v11, v10')
    a('v_permlane16_swap_b32 v10, v11')
    a('v_max_f32 v10, v10, v11')
    for sh in (8, 4, 2, 1):
        a('v_max_f32_dpp v10, v10, v10 row_ror:%d row_mask:0xf bank_mask:0xf' % sh)
    a('v_mov_b32 v11, s3')
    a('v_mov_b32 v12, 0')
    a('v_mov_b32 v13, 0')
    a('v_mov_b32 v8, %d' % L_BC)
    a('s_mov_b64 exec, 1')
    a('ds_write_b128 v8, v[10:13]')
    a('ds_write_b32 v8, v12 offset:16')
    a('s_mov_b64 exec, -1')
    a('s_waitcnt vmcnt(0) lgkmcnt(0)')
    stamp(a, 11)
    a('s_barrier')
    a.label('L_p1_end')
    a.fence(4)
    stamp(a, 12)


R_Q, R_S0, R_S1, R_O, R_P0, R_P1 = 4, 8, 24, 40, 56, 60
R_V0, R_V1, R_K = 64, 72, 80
R_KAD, R_VA0, R_VA1, R_ROW, R_XRES = 88, 3, 89, 90, 92
R_WO, R_W1 = 192, 96


def prefetch_list(a):
    L = []
    def wo_addr():
        a('s_lshr_b32 s51, s%d, 1' % S_W)
        a('s_lshl_b32 s51, s51, 3')
        a('s_lshl_b32 s52, s%d, 6' % S_J)
        a('s_add_u32 s51, s51, s52')
        a('s_lshl_b32 s51, s51, 10')
        a('s_add_u32 s51, s51, 0x%x' % WS_WO)
        a('s_add_u32 s52, s51, %d' % (32 * 1024))
    def wo(nt, s):
        def f():
            if nt == 0 and s == 0: wo_addr()
            if s == 4: a('s_add_u32 s%d, s%d, 4096' % (51 + nt, 51 + nt))
            a('buffer_load_dwordx4 %s, v2, %s, s%d offen offset:%d sc1' % (vr(R_WO + 32 * nt + 4 * s, 4), srd(S_WS), 51 + nt, (s % 4) * 1024))
        return f
    for s in range(8):
        for nt in range(2): L.append(wo(nt, s))
    def xres():
        a('s_and_b32 s3, s%d, 1' % S_W)
        a('s_lshl_b32 s43, s%d, 1' % S_RB)
        a('s_add_u32 s3, s3, s43')
        a('s_lshl_b32 s3, s3, 15')
        a('s_lshl_b32 s43, s%d, 7' % S_J)
        a('s_add_u32 s3, s3, s43')
        a('s_lshr_b32 s43, s%d, 1' % S_W)
        a('s_lshl_b32 s43, s43, 5')
        a('s_add_u32 s53, s3, s43')
        a('buffer_load_dwordx4 %s, v%d, %s, s53 offen' % (vr(R_XRES, 4), R_ROW, srd(S_X)))
    L.append(xres)
    def w1_addr():
        a('s_mul_i32 s54, s%d, 7' % S_J)
        a('s_add_u32 s54, s54, s%d' % S_W)
        a('s_lshl_b32 s54, s54, 15')
        a('s_add_u32 s54, s54, 0x%x' % WS_W1)
        w2_base(a, 's55')
        a('s_add_u32 s56, s55, %d' % (8 * 1024))
        a('s_cmp_eq_u32 s%d, 7' % S_W)
        a('s_cselect_b32 s57, s56, s54')
        a('s_cselect_b32 s58, %d, 0' % ((112 - 14) * 1024))
    def w1(i):
        def f():
            if i == 0: w1_addr()
            if i < 6:
                if i == 4: a('s_add_u32 s57, s57, 4096')
                off = (i % 4) * 1024
            else:
                if i == 6:
                    a('s_add_u32 s57, s57, 2048'); a('s_add_u32 s57, s57, s58')
                elif (i - 6) % 4 == 0:
                    a('s_add_u32 s57, s57, 4096')
                off = ((i - 6) % 4) * 1024
            a('buffer_load_dwordx4 %s, v2, %s, s57 offen offset:%d sc1' % (vr(R_W1 + 4 * i, 4), srd(S_WS), off))
        return f
    for i in range(24): L.append(w1(i))
    return L


def w2_base(a, dst):
    a('s_mul_i32 %s, s%d, %d' % (dst, S_J, 2 * 112))
    a('s_mul_i32 s43, s%d, 14' % S_W)
    a('s_add_u32 %s, %s, s43' % (dst, dst))
    a('s_lshl_b32 %s, %s, 10' % (dst, dst))
    a('s_add_u32 %s, %s, 0x%x' % (dst, dst, WS_W2))


def w2_slot_reg(q):
    return 224 + 4 * q if q < 8 else 96 + 4 * (q - 8)


def attn_tile(a, u, extra=()):
    c, n = u % 2, (u + 1) % 2
    a0 = a
    def a(t):
        if OPT.get('xnods') and t.startswith('ds_read'): return
        if OPT.get('xnomf') and t.startswith('v_mfma'): return
        if OPT.get('xnocv') and t.startswith('v_cvt_pk'): return
        if OPT.get('xnoexp') and t.startswith('v_exp'): return
        if OPT.get('xhalfexp') and t.startswith('v_exp') and int(t.split()[1][1:-1]) % 2: return
        a0(t)
    S = [R_S0, R_S1]
    K = lambda b: R_K + 4 * b
    V0 = lambda b: R_V0 + 4 * b
    V1 = lambda b: R_V1 + 4 * b
    ex = list(extra)
    def E(k): a('v_exp_f32 v%d, v%d' % (S[c] + k, S[c] + k))
    def X():
        if ex: ex.pop(0)()
    def CV(d, x, y):
        if OPT.get('perm'): a('v_perm_b32 v%d, v%d, v%d, s63' % (d, y, x))
        else: a('v_cvt_pk_bf16_f32 v%d, v%d, v%d' % (d, x, y))
    a('s_waitcnt lgkmcnt(0)')
    if OPT.get('sched', 1) == 0:
        E(0)
        a('ds_read_b128 %s, v%d offset:%d' % (vr(K(c), 4), R_KAD, (u + 2) * TS_))
        E(1)
        a('ds_read_b128 %s, v%d offset:%d' % (vr(V0(n), 4), R_VA0, (u + 1) * TS_))
        E(2)
        a('ds_read_b128 %s, v%d offset:%d' % (vr(V1(c), 4), R_VA1, u * TS_))
        E(3)
        a('v_mfma_f32_32x32x16_bf16 %s, %s, %s, 0' % (vr(S[n], 16), vr(K(n), 4), vr(R_Q, 4)))
        E(4); X(); E(5); X(); E(6); X(); E(7)
        for k in range(4): a('v_cvt_pk_bf16_f32 v%d, v%d, v%d' % (R_P0 + k, S[c] + 2 * k, S[c] + 2 * k + 1))
        a('v_mfma_f32_32x32x16_bf16 %s, %s, %s, %s' % (vr(R_O, 16), vr(V1(n), 4), vr(R_P1, 4), vr(R_O, 16)))
        E(8); X(); E(9); X(); E(10); X(); E(11)
        a('v_mfma_f32_32x32x16_bf16 %s, %s, %s, %s' % (vr(R_O, 16), vr(V0(c), 4), vr(R_P0, 4), vr(R_O, 16)))
        for k in range(12, 16): E(k)
        for k in range(4): a('v_cvt_pk_bf16_f32 v%d, v%d, v%d' % (R_P1 + k, S[c] + 8 + 2 * k, S[c] + 9 + 2 * k))
    else:
        a('v_mfma_f32_32x32x16_bf16 %s, %s, %s, 0' % (vr(S[n], 16), vr(K(n), 4), vr(R_Q, 4)))
        a('ds_read_b128 %s, v%d offset:%d' % (vr(K(c), 4), R_KAD, (u + 2) * TS_))
        a('ds_read_b128 %s, v%d offset:%d' % (vr(V0(n), 4), R_VA0, (u + 1) * TS_))
        a('ds_read_b128 %s, v%d offset:%d' % (vr(V1(c), 4), R_VA1, u * TS_))
        E(0); E(1); X(); E(2); E(3); X(); E(4); E(5); X(); E(6); E(7)
        a('v_mfma_f32_32x32x16_bf16 %s, %s, %s, %s' % (vr(R_O, 16), vr(V1(n), 4), vr(R_P1, 4), vr(R_O, 16)))
        for k in range(4): CV(R_P0 + k, S[c] + 2 * k, S[c] + 2 * k + 1)
        E(8); X(); E(9); X(); E(10); X(); E(11)
        a('v_mfma_f32_32x32x16_bf16 %s, %s, %s, %s' % (vr(R_O, 16), vr(V0(c), 4), vr(R_P0, 4), vr(R_O, 16)))
        for k in range(12, 16): E(k)
        for k in range(4): CV(R_P1 + k, S[c] + 8 + 2 * k, S[c] + 9 + 2 * k)
    while ex: ex.pop(0)()


def attn_advance(a):
    for r in (R_KAD, R_VA0, R_VA1):
        a('v_add_u32 v%d, 0x%x, v%d' % (r, 8 * TS_, r))


def early_dma_list(a):
    L = []
    def kv(i):
        def f():
            a('s_mov_b32 m0, s19')
            a('s_add_u32 s19, s19, %d' % (8 * TS_))
            a('buffer_load_dwordx4 v2, %s, s18 offen sc1 lds' % srd(S_WS))
            a('buffer_load_dwordx4 v2, %s, s18 offen offset:1024 sc1 lds' % srd(S_WS))
            a('s_add_u32 s18, s18, 16384')
        return f
    for i in range(1, 8): L.append(kv(i))
    def tb(k):
        def f():
            a('s_mov_b32 m0, s60')
            a('s_add_u32 s60, s60, 1024')
            a('buffer_load_dwordx4 v99, s[52:55], s57 offen lds')
            if k == 0:
                a('s_lshl_b32 s61, s56, 3')
                a('s_add_u32 s57, s57, s61')
        return f
    L += [tb(0), tb(1)]
    return L


def tb_read_list(a):
    def rd(nt):
        def f():
            a('ds_read_b64_tr_b16 %s, v%d' % (vr(104 + 4 * nt, 2), 100 + nt))
            a('ds_read_b64_tr_b16 %s, v%d offset:1024' % (vr(106 + 4 * nt, 2), 100 + nt))
        return f
    return [rd(0), rd(1)]


def tb_store_list(a):
    def st(nt):
        def f():
            a('buffer_store_dwordx4 %s, v2, %s, s58 offen sc1' % (vr(104 + 4 * nt, 4), srd(S_WS)))
            if nt == 0: a('s_add_u32 s58, s58, s59')
        return f
    return [st(0), st(1)]


def f2_publish(a):
    sk = uid('L_f2')
    a('s_cmp_lg_u32 s%d, %d' % (S_W, CTRL))
    a('s_cbranch_scc1 %s' % sk)
    a('s_lshl_b32 s18, s2, 2')
    a('s_add_u32 s18, s18, 0x%x' % WS_F2)
    flag_store(a, 's18', S_TAG, ' sc1', 96)
    a.label(sk)


def f2_count(a):
    sk = uid('L_f2n')
    a('v_mov_b32 v96, %d' % (L_BC + 16))
    a('v_mov_b32 v97, 1')
    a('s_waitcnt vmcnt(0)')
    a('s_mov_b64 exec, 1')
    a('ds_add_rtn_u32 v97, v96, v97')
    a('s_waitcnt lgkmcnt(0)')
    a('s_mov_b64 exec, -1')
    a('v_readfirstlane_b32 s18, v97')
    a('s_cmp_lg_u32 s18, 7')
    a('s_cbranch_scc1 %s' % sk)
    a('s_lshl_b32 s18, s2, 2')
    a('s_add_u32 s18, s18, 0x%x' % WS_F2)
    flag_store(a, 's18', S_TAG, ' sc1', 96)
    a.label(sk)


def fair_prio(a):
    if not OPT.get('fair'): return
    d = uid('L_fp')
    lv = {1: [(5, 3), (3, 2), (2, 1), (0, 0)], 2: [(6, 3), (5, 2), (3, 1), (0, 0)], 3: [(5, 3), (4, 2), (2, 1), (0, 0)]}[OPT['fair']]
    for (th, pr) in lv:
        a('s_setprio %d' % pr)
        if th:
            a('s_cmp_ge_u32 s62, %d' % th)
            a('s_cbranch_scc1 %s' % d)
    a.label(d)


def attention_fast(a):
    if OPT.get('fair'): a('s_setprio 3')
    if OPT.get('perm'): a('s_mov_b32 s63, 0x07060302')
    if OPT.get('prio') in (1, 2):
        a('s_cmp_lt_u32 s%d, 4' % S_W)
        a('s_cbranch_scc1 L_prio0')
        a('s_setprio 1')
        a.label('L_prio0')
    a('ds_read_b128 %s, v%d' % (vr(R_K, 4), R_KAD))
    a('ds_read_b128 %s, v%d offset:%d' % (vr(R_K + 4, 4), R_KAD, TS_))
    a('ds_read_b128 %s, v%d' % (vr(R_V0, 4), R_VA0))
    for k in range(16): a('v_mov_b32 v%d, 0' % (R_O + k))
    for k in range(4): a('v_mov_b32 v%d, 0' % (R_P1 + k))
    for k in range(4): a('v_mov_b32 v%d, 0' % (R_V1 + 4 + k))
    a('s_waitcnt lgkmcnt(2)')
    a('v_mfma_f32_32x32x16_bf16 %s, %s, %s, 0' % (vr(R_S0, 16), vr(R_K, 4), vr(R_Q, 4)))
    a.fence(12)
    E = early_dma_list(a)
    tbw = lambda: a('s_waitcnt vmcnt(8)')
    TB2 = OPT.get('tb2', 0)
    if TB2:
        ex0 = [[E[0]], [E[1]], [E[7], E[8]], [E[2]], [E[3]], [E[4]], [E[5]], [E[6]]]
        w10 = lambda: a('s_waitcnt vmcnt(10)')
        ex1 = [[w10] + tb_read_list(a), tb_store_list(a), [], [], [], [], [], []]
    else:
        ex0 = [[E[0], E[7]], [E[8], E[1]], [E[2]], [E[3]], [E[4]], [tbw] + tb_read_list(a), tb_store_list(a) + [E[5]], [E[6]]]
        ex1 = [[] for _ in range(8)]
    for u in range(8):
        if u == 6:
            stamp(a, 15)
            if TB2: a('s_waitcnt vmcnt(10)')
            a('s_barrier')
            stamp(a, 16)
        attn_tile(a, u, ex0[u])
    attn_advance(a)
    for u in range(8):
        if u == 6:
            if TB2 == 2:
                a('s_waitcnt vmcnt(2)')
                a('s_barrier')
            else:
                a('s_waitcnt vmcnt(0)')
                a('s_barrier')
                f2_publish(a)
            stamp(a, 13)
        attn_tile(a, u, ex1[u])
    if TB2 == 2: f2_count(a)
    attn_advance(a)
    a('s_mov_b32 s62, 6')
    if OPT.get('stag'):
        a('s_lshr_b32 s63, s%d, 2' % S_W)
    if OPT.get('late'):
        a('s_cmp_lt_u32 s%d, 4' % S_W)
        a('s_cselect_b32 s63, 1, 0')
        a('s_cbranch_scc1 L_attn_b')
    a('s_mov_b32 s3, 0x%x' % WS_F2)
    a.raw('.p2align 6')
    a.label('L_attn_a')
    fair_prio(a)
    f2ld = lambda: a('buffer_load_dwordx4 %s, v2, %s, s3 offen sc1' % (vr(R_WO, 4), srd(S_WS)))
    for u in range(8): attn_tile(a, u, [f2ld] if u == OPT.get('f2u', 0) else [])
    attn_advance(a)
    a('s_sub_u32 s62, s62, 1')
    stamp(a, 10)
    a('s_waitcnt vmcnt(0)')
    check256(a, R_WO)
    if OPT.get('xnof2'): a('s_branch L_attn_p')
    if OPT.get('stag'):
        a('s_cbranch_vccnz L_attn_nf')
        a('s_cmp_eq_u32 s63, 0')
        a('s_cbranch_scc1 L_attn_p')
        a('s_mov_b32 s63, 0')
        a('s_cmp_gt_u32 s62, %d' % OPT.get('lim', 3))
        a('s_cbranch_scc1 L_attn_a')
        a('s_branch L_attn_p')
        a.label('L_attn_nf')
    else:
        a('s_cbranch_vccz L_attn_p')
    a('s_cmp_gt_u32 s62, %d' % OPT.get('lim', 3))
    a('s_cbranch_scc1 L_attn_a')
    poll256(a, WS_F2, R_WO)
    a.label('L_attn_p')
    stamp(a, 30)
    if OPT.get('prio') == 2: a('s_setprio 0')
    fair_prio(a)
    L = prefetch_list(a)
    per = [L[(len(L) * u) // 8:(len(L) * (u + 1)) // 8] for u in range(8)]
    a.fence(2)
    for u in range(8): attn_tile(a, u, per[u])
    attn_advance(a)
    a('s_sub_u32 s62, s62, 1')
    a.raw('.p2align 6')
    a.label('L_attn_b')
    fair_prio(a)
    for u in range(8): attn_tile(a, u)
    attn_advance(a)
    a('s_sub_u32 s62, s62, 1')
    a('s_cmp_lg_u32 s62, 0')
    a('s_cbranch_scc1 L_attn_b')
    if OPT.get('prio') or OPT.get('fair'): a('s_setprio 0')
    a('s_waitcnt lgkmcnt(0)')
    a('v_mfma_f32_32x32x16_bf16 %s, %s, %s, %s' % (vr(R_O, 16), vr(R_V1 + 4, 4), vr(R_P1, 4), vr(R_O, 16)))


def attention_slow(a):
    Q, O, P = R_Q, R_O, R_P0
    S = R_S0; K = R_K; V = R_V0
    M, MN, AL, T = R_S1, R_S1 + 1, R_S1 + 2, R_S1 + 3
    for f in early_dma_list(a): f()
    a('s_waitcnt vmcnt(0)')
    for f in tb_read_list(a): f()
    a('s_waitcnt lgkmcnt(0)')
    for f in tb_store_list(a): f()
    a('s_barrier')
    a('s_waitcnt vmcnt(0)')
    a('s_barrier')
    if OPT.get('tb2') == 2: f2_count(a)
    else: f2_publish(a)
    for k in range(16): a('v_mov_b32 v%d, 0' % (O + k))
    a('v_mov_b32 v%d, 0xff7fffff' % M)
    a('s_mov_b32 s62, 64')
    a.fence(4)
    a.label('L_attn_slow')
    a('ds_read_b128 %s, v%d' % (vr(K, 4), R_KAD))
    a('ds_read_b128 %s, v%d' % (vr(V, 4), R_VA0))
    a('ds_read_b128 %s, v%d' % (vr(V + 4, 4), R_VA1))
    for r in (R_KAD, R_VA0, R_VA1):
        a('v_add_u32 v%d, 0x%x, v%d' % (r, TS_, r))
    a('s_waitcnt lgkmcnt(0)')
    a('v_mfma_f32_32x32x16_bf16 %s, %s, %s, 0' % (vr(S, 16), vr(K, 4), vr(Q, 4)))
    a('v_max_f32 v%d, v%d, v%d' % (MN, S, S + 1))
    for k in range(2, 16, 2):
        a('v_max3_f32 v%d, v%d, v%d, v%d' % (MN, MN, S + k, S + k + 1))
    a('v_mov_b32 v%d, v%d' % (T, MN))
    a('v_permlane32_swap_b32 v%d, v%d' % (MN, T))
    a('v_max3_f32 v%d, v%d, v%d, v%d' % (MN, MN, T, M))
    a('v_sub_f32 v%d, v%d, v%d' % (AL, M, MN))
    a('v_exp_f32 v%d, v%d' % (AL, AL))
    a('v_mov_b32 v%d, v%d' % (M, MN))
    for k in range(16):
        a('v_sub_f32 v%d, v%d, v%d' % (S + k, S + k, MN))
    for k in range(16):
        a('v_exp_f32 v%d, v%d' % (S + k, S + k))
    for k in range(16):
        a('v_mul_f32 v%d, v%d, v%d' % (O + k, O + k, AL))
    for k in range(8):
        a('v_cvt_pk_bf16_f32 v%d, v%d, v%d' % (P + k, S + 2 * k, S + 2 * k + 1))
    a('v_mfma_f32_32x32x16_bf16 %s, %s, %s, %s' % (vr(O, 16), vr(V, 4), vr(P, 4), vr(O, 16)))
    a('v_mfma_f32_32x32x16_bf16 %s, %s, %s, %s' % (vr(O, 16), vr(V + 4, 4), vr(P + 4, 4), vr(O, 16)))
    a('s_sub_u32 s62, s62, 1')
    a('s_cmp_lg_u32 s62, 0')
    a('s_nop 7'); a('s_nop 7')
    a('s_cbranch_scc1 L_attn_slow')
    poll256(a, WS_F2, R_WO)
    for f in prefetch_list(a): f()


def phase2(a, force_slow=False):
    a('s_and_b32 s48, s%d, 1' % S_W)
    a('s_bfe_u32 s49, s%d, 0x10001' % S_W)
    a('s_lshr_b32 s50, s%d, 2' % S_W)
    a('v_mov_b32 v8, %d' % L_BC)
    a('ds_read_b64 v[10:11], v8')
    a('s_cmp_eq_u32 s50, 0')
    a('s_cbranch_scc1 L_q_have')
    a('s_and_b32 s3, s%d, 3' % S_W)
    a('s_lshl_b32 s3, s3, 10')
    a('v_add_u32 v9, s3, v2')
    a('ds_read_b128 %s, v9 offset:%d' % (vr(R_Q, 4), L_QX))
    a.label('L_q_have')
    a.fence(2)
    a('v_mov_b32 v16, 0x3f803f80')
    for k in range(1, 4): a('v_mov_b32 v%d, v16' % (16 + k))
    a('s_movk_i32 s3, %d' % TS_)
    a('v_mul_lo_u32 v20, v1, s3')
    a('v_add_u32 v20, %d, v20' % (KVB + 2048))
    a('ds_write_b128 v20, v[16:19]')
    a('v_lshrrev_b32 v8, 5, v1')
    a('v_and_b32 v9, 15, v1')
    a('v_lshl_add_u32 v8, v8, 4, v9')
    a('v_lshlrev_b32 v8, 4, v8')
    a('v_add_u32 v8, %d, v8' % (KVB + 1024))
    a('v_add_u32 v9, 512, v8')
    a('v_and_b32 v13, 16, v1')
    a('v_cmp_eq_u32 vcc, 0, v13')
    a('v_mov_b32 v13, %d' % (KVB + 2048))
    a('v_cndmask_b32 v%d, v13, v8, vcc' % R_VA0)
    a('v_cndmask_b32 v%d, v13, v9, vcc' % R_VA1)
    a('v_add_u32 v%d, %d, v2' % (R_KAD, KVB))
    a('v_and_b32 v13, 31, v1')
    a('v_lshrrev_b32 v14, 5, v1')
    a('v_lshlrev_b32 v13, 10, v13')
    a('v_lshl_add_u32 v%d, v14, 4, v13' % R_ROW)
    swz_off(a, 96, 97)
    a('v_mul_lo_u32 v99, v96, s56')
    a('v_add_u32 v99, v99, v97')
    a('v_bfe_u32 v21, v1, 4, 1')
    a('v_bfe_u32 v22, v1, 2, 2')
    a('v_and_b32 v23, 3, v1')
    a('v_lshrrev_b32 v24, 1, v23')
    a('v_lshl_add_u32 v24, v21, 1, v24')
    a('v_lshrrev_b32 v25, 1, v22')
    a('v_lshlrev_b32 v25, 2, v25')
    a('v_xor_b32 v24, v24, v25')
    a('v_lshlrev_b32 v24, 4, v24')
    a('v_and_b32 v23, 1, v23')
    a('v_lshl_add_u32 v24, v23, 3, v24')
    a('v_lshl_add_u32 v25, v14, 2, v22')
    a('v_lshl_add_u32 v25, v25, 7, v24')
    a('v_add_u32 v100, s60, v25')
    a('v_xor_b32 v101, 64, v100')
    a('s_lshl_b32 s18, s%d, 11' % S_W)
    a('s_add_u32 s18, s18, 16384')
    a('s_mul_i32 s19, s%d, %d' % (S_W, TS_))
    a('s_add_u32 s19, s19, %d' % (KVB + 8 * TS_))
    a('s_waitcnt lgkmcnt(1)')
    a('v_readfirstlane_b32 s%d, v11' % S_FAST)
    a('v_dot2_f32_bf16 v14, v%d, v%d, 0' % (R_Q, R_Q))
    for k in range(1, 4): a('v_dot2_f32_bf16 v14, v%d, v%d, v14' % (R_Q + k, R_Q + k))
    a('v_mov_b32 v13, v14')
    a('v_permlane32_swap_b32 v14, v13')
    a('v_add_f32 v14, v14, v13')
    a('v_mul_f32 v14, v14, v10')
    a('s_mov_b32 s3, 0x%x' % f2u(-1.0 if force_slow else LIMIT2))
    a('v_cmp_nle_f32 vcc, v14, s3')
    a('s_waitcnt lgkmcnt(0)')
    stamp(a, 14)
    if OPT.get('late'): a('s_mov_b32 s63, 0')
    a('s_cbranch_vccnz L_attn_fb')
    attention_fast(a)
    a('s_branch L_attn_fin')
    a.label('L_attn_fb')
    a.fence(4)
    attention_slow(a)
    a.label('L_attn_fin')
    a.fence(12)
    stamp(a, 17)
    O = R_O
    a('v_rcp_f32 v8, v%d' % (O + 8))
    for k in range(8): a('v_mul_f32 v%d, v%d, v8' % (O + k, O + k))
    for k in range(4): a('v_cvt_pk_bf16_f32 v%d, v%d, v%d' % (O + k, O + 2 * k, O + 2 * k + 1))
    G.q_frag_off(a, WS_O, 's48', 's49', 's50', 's3')
    both(a, lambda m: a('buffer_store_dwordx4 %s, v2, %s, s3 offen%s' % (vr(O, 4), srd(S_WS), m)))
    a('s_lshl_b32 s3, s%d, 1' % S_RB)
    a('s_add_u32 s3, s3, s49')
    a('s_lshl_b32 s3, s3, 3')
    a('s_add_u32 s3, s3, s%d' % S_J)
    a('s_lshl_b32 s3, s3, 1')
    a('s_add_u32 s3, s3, s50')
    a('s_lshl_b32 s3, s3, 1')
    a('s_add_u32 s3, s3, s48')
    a('s_lshl_b32 s3, s3, 2')
    a('s_add_u32 s3, s3, 0x%x' % WS_F3)
    a('s_waitcnt vmcnt(0)')
    both(a, lambda m: flag_store(a, 's3', S_TAG, m, 8))
    stamp(a, 18)
    if OPT.get('late'):
        a('s_cmp_eq_u32 s63, 0')
        a('s_cbranch_scc1 L_late_skip')
        poll256(a, WS_F2, R_WO)
        for f in prefetch_list(a): f()
        a('s_waitcnt vmcnt(0)')
        a.label('L_late_skip')


def colsum(a, ks_list, regf, first):
    for ks in ks_list:
        for k in range(4):
            c = 80 + k
            a('v_dot2_f32_bf16 v%d, v%d, s44, %s' % (c, regf(ks) + k, '0' if (first and ks == ks_list[0]) else 'v%d' % c))


def w1reg(ks):
    return R_W1 + 4 * ks if ks < 24 else 192 + 4 * (ks - 24)


def phase3(a):
    A, B = R_WO, 8
    D = [40, 64]
    a('s_and_b32 s48, s%d, 1' % S_W)
    a('s_lshr_b32 s49, s%d, 1' % S_W)
    a('s_mov_b32 s44, 0x3f803f80')
    a('s_cmp_eq_u32 s%d, 7' % S_W)
    a('s_cbranch_scc1 L_cs_skip')
    colsum(a, list(range(24)), w1reg, True)
    a.label('L_cs_skip')
    a('s_lshl_b32 s3, s%d, 1' % S_RB)
    a('s_add_u32 s3, s3, s48')
    a('s_lshl_b32 s50, s3, 5')
    a('s_lshl_b32 s3, s49, 3')
    a('s_add_u32 s3, s3, s50')
    a('s_lshl_b32 s18, s3, 10')
    a('s_add_u32 s18, s18, 0x%x' % WS_O)
    a('s_lshl_b32 s3, s3, 2')
    a('s_add_u32 s3, s3, 0x%x' % WS_F3)
    poll8(a, 's3', 72)
    stamp(a, 19)
    for s in range(8):
        if s == 4: a('s_add_u32 s18, s18, 4096')
        a('buffer_load_dwordx4 %s, v2, %s, s18 offen offset:%d sc1' % (vr(B + 4 * s, 4), srd(S_WS), (s % 4) * 1024))
    for s in range(8):
        a('s_waitcnt vmcnt(%d)' % (7 - s))
        for nt in range(2):
            a('v_mfma_f32_32x32x16_bf16 %s, %s, %s, %s' % (vr(D[nt], 16), vr(A + 32 * nt + 4 * s, 4), vr(B + 4 * s, 4),
                                                          '0' if s == 0 else vr(D[nt], 16)))
    stamp(a, 20)
    a('s_barrier')
    a('s_lshl_b32 s3, s48, 15')
    a('s_lshl_b32 s43, s49, 11')
    a('s_add_u32 s3, s3, s43')
    a('v_add_u32 v84, s3, v2')
    a.fence(8)
    for q in range(4):
        r = D[q // 2] + 8 * (q % 2)
        a('s_cmp_eq_u32 s49, %d' % q)
        a('s_cbranch_scc1 L_o_skip%d' % q)
        a('ds_write_b128 v84, %s offset:%d' % (vr(r, 4), q * 8192))
        a('ds_write_b128 v84, %s offset:%d' % (vr(r + 4, 4), q * 8192 + 1024))
        a('s_branch L_o_nxt%d' % q)
        a.label('L_o_skip%d' % q)
        for k in range(8): a('v_mov_b32 v%d, v%d' % (56 + k, r + k))
        a.label('L_o_nxt%d' % q)
    a('s_waitcnt lgkmcnt(0)')
    a('s_barrier')
    a('s_lshl_b32 s3, s48, 15')
    a('s_lshl_b32 s43, s49, 13')
    a('s_add_u32 s3, s3, s43')
    for d in range(1, 4):
        a('s_add_u32 s43, s49, %d' % d)
        a('s_and_b32 s43, s43, 3')
        a('s_lshl_b32 s43, s43, 11')
        a('s_add_u32 s43, s43, s3')
        a('v_add_u32 v%d, s43, v2' % (83 + d))
        a('ds_read_b128 %s, v%d' % (vr(8 + 8 * (d - 1), 4), 83 + d))
        a('ds_read_b128 %s, v%d offset:1024' % (vr(12 + 8 * (d - 1), 4), 83 + d))
    X = R_XRES
    a('v_permlane32_swap_b32 v%d, v%d' % (X, X + 2))
    a('v_permlane32_swap_b32 v%d, v%d' % (X + 1, X + 3))
    for k in range(4):
        a('v_lshlrev_b32 v%d, 16, v%d' % (32 + 2 * k, X + k))
        a('v_and_b32 v%d, 0xffff0000, v%d' % (33 + 2 * k, X + k))
    a('s_waitcnt lgkmcnt(0)')
    for k in range(8):
        a('v_add_f32 v%d, v%d, v%d' % (56 + k, 56 + k, 8 + k))
        a('v_add_f32 v%d, v%d, v%d' % (16 + k, 16 + k, 24 + k))
    for k in range(8):
        a('v_add_f32 v%d, v%d, v%d' % (56 + k, 56 + k, 16 + k))
    for k in range(8):
        a('v_add_f32 v%d, v%d, v%d' % (56 + k, 56 + k, 32 + k))
    for k in range(4):
        a('v_cvt_pk_bf16_f32 v%d, v%d, v%d' % (4 + k, 56 + 2 * k, 57 + 2 * k))
    a('s_lshl_b32 s3, s%d, 2' % S_J)
    a('s_add_u32 s3, s3, s49')
    a('s_add_u32 s3, s3, s50')
    a('s_lshl_b32 s3, s3, 10')
    a('s_add_u32 s3, s3, 0x%x' % WS_H)
    both(a, lambda m: a('buffer_store_dwordx4 v[4:7], v2, %s, s3 offen%s' % (srd(S_WS), m)))
    a('s_lshl_b32 s3, s%d, 3' % S_RB)
    a('s_add_u32 s3, s3, s%d' % S_J)
    a('s_lshl_b32 s3, s3, 3')
    a('s_add_u32 s3, s3, s%d' % S_W)
    a('s_lshl_b32 s3, s3, 2')
    a('s_add_u32 s3, s3, 0x%x' % WS_F4)
    a('s_waitcnt vmcnt(0)')
    both(a, lambda m: flag_store(a, 's3', S_TAG, m, 72))
    stamp(a, 21)


L_H, L_ACT, L_ST, L_CS = 65536, 131072, 159744, 160256


def phase45(a):
    D1 = 32
    BB = 8
    G1 = OPT.get('g1', 0)
    w2_base(a, 's55')
    a('s_add_u32 s56, s55, %d' % (112 * 1024))
    def w1rest():
        a('s_add_u32 s54, s54, %d' % (24 * 1024))
        for ks in range(24, 32):
            if ks == 28: a('s_add_u32 s54, s54, 4096')
            a('buffer_load_dwordx4 %s, v2, %s, s54 offen offset:%d sc1' % (vr(w1reg(ks), 4), srd(S_WS), (ks % 4) * 1024))
        a('s_mul_i32 s48, s%d, 7' % S_J)
        a('s_add_u32 s48, s48, s%d' % S_W)
        a('v_lshrrev_b32 v3, 5, v1')
        a('v_lshlrev_b32 v3, 3, v3')
        a('s_lshl_b32 s50, s48, 6')
        for q in range(4):
            a('buffer_load_dwordx2 %s, v3, %s, s50 offen offset:%d' % (vr(64 + 2 * q, 2), srd(S_B1), 16 * q))
    def w2load(q):
        nt, s = q // 14, q % 14
        base = 's55' if nt == 0 else 's56'
        hi = (s // 4) * 4096
        if hi:
            a('s_add_u32 s57, %s, %d' % (base, hi)); base = 's57'
        a('buffer_load_dwordx4 %s, v2, %s, %s offen offset:%d sc1' % (vr(w2_slot_reg(q), 4), srd(S_WS), base, (s % 4) * 1024))
    if G1:
        a('s_cmp_eq_u32 s%d, 7' % S_W)
        a('s_cbranch_scc1 L_g1_now1')
        w1rest()
        a.label('L_g1_now1')
    a('s_lshl_b32 s3, s%d, 3' % S_RB)
    a('s_add_u32 s3, s3, s%d' % S_W)
    a('s_lshl_b32 s3, s3, 5')
    a('s_add_u32 s3, s3, 0x%x' % WS_F4)
    poll8(a, 's3', 72)
    stamp(a, 22)
    a('s_lshl_b32 s43, s%d, 16' % S_RB)
    a('s_lshl_b32 s3, s%d, 12' % S_W)
    a('s_add_u32 s43, s43, s3')
    a('s_add_u32 s43, s43, 0x%x' % WS_H)
    a('s_add_u32 s3, s3, %d' % L_H)
    for mt in range(2):
        a('s_mov_b32 m0, s3')
        a('s_nop 0')
        for k in range(4):
            a('buffer_load_dwordx4 v2, %s, s43 offen offset:%d sc1 lds' % (srd(S_WS), k * 1024))
        if mt == 0:
            a('s_add_u32 s3, s3, 32768'); a('s_add_u32 s43, s43, 32768')
    a('s_cmp_eq_u32 s%d, 7' % S_W)
    a('s_cbranch_scc1 L_g1_stats')
    if G1:
        a('s_waitcnt vmcnt(0)')
    else:
        w1rest()
        for q in range(8): w2load(q)
        a('s_waitcnt vmcnt(20)')
    stamp(a, 23)
    a('s_barrier')
    seq = [(ks, mt) for ks in range(32) for mt in range(2)]
    NB = 6
    def bload(i):
        ks, mt = seq[i]
        a('ds_read_b128 %s, v92 offset:%d' % (vr(BB + 4 * (i % NB), 4), (mt * 32 + ks) * 1024))
    a('v_add_u32 v92, %d, v2' % L_H)
    PF = 5
    for i in range(PF): bload(i)
    nw2 = 0
    for i, (ks, mt) in enumerate(seq):
        if i + PF < len(seq): bload(i + PF)
        rem = min(len(seq), i + PF + 1) - (i + 1)
        if ks == 24 and mt == 0 and not G1:
            a('s_waitcnt vmcnt(%d) lgkmcnt(%d)' % (12 + nw2, rem))
        else:
            a('s_waitcnt lgkmcnt(%d)' % rem)
        a('v_mfma_f32_32x32x16_bf16 %s, %s, %s, %s' % (vr(D1 + 16 * mt, 16), vr(w1reg(ks), 4), vr(BB + 4 * (i % NB), 4),
                                                      '0' if ks == 0 else vr(D1 + 16 * mt, 16)))
        if G1:
            if mt == 1 and ks < 28:
                order = list(range(8)) + list(range(8, 28))
                w2load(order[ks])
        elif mt == 1 and 1 <= ks <= 20:
            w2load(8 + ks - 1); nw2 += 1
        if mt == 1 and ks >= 25:
            colsum(a, [ks - 1], w1reg, False)
    colsum(a, [31], w1reg, False)
    a('v_add_f32 v80, v80, v81')
    a('v_add_f32 v82, v82, v83')
    a('v_add_f32 v80, v80, v82')
    a('v_mov_b32 v81, v80')
    a('v_permlane32_swap_b32 v80, v81')
    a('v_add_f32 v80, v80, v81')
    a('s_lshl_b32 s3, s%d, 7' % S_W)
    a('s_add_u32 s3, s3, %d' % L_CS)
    a('v_and_b32 v93, 31, v1')
    a('v_lshlrev_b32 v93, 2, v93')
    a('v_add_u32 v93, s3, v93')
    a('ds_write_b32 v93, v80')
    a('v_lshrrev_b32 v93, 5, v1')
    a('v_lshlrev_b32 v93, 4, v93')
    a('v_add_u32 v93, s3, v93')
    a('s_waitcnt lgkmcnt(0)')
    for q in range(4):
        a('ds_read_b128 %s, v93 offset:%d' % (vr(72 + 4 * q, 4), 32 * q))
    a('s_branch L_g1_epi')
    a.label('L_g1_stats')
    a.fence(4)
    if G1:
        a('s_waitcnt vmcnt(0)')
        a('s_barrier')
        for q in range(8): w2load(q)
    else:
        for q in range(8): w2load(q)
        a('s_waitcnt vmcnt(8)')
        a('s_barrier')
    a('v_add_u32 v92, %d, v2' % L_H)
    for mt in range(2):
        SA, QA = 64 + 8 * mt, 68 + 8 * mt
        for ks0 in range(0, 32, 4):
            for u in range(4):
                a('ds_read_b128 %s, v92 offset:%d' % (vr(BB + 4 * u, 4), (mt * 32 + ks0 + u) * 1024))
            for u in range(4):
                a('s_waitcnt lgkmcnt(%d)' % (3 - u))
                for k in range(4):
                    first = (ks0 == 0 and u == 0)
                    a('v_dot2_f32_bf16 v%d, v%d, s44, %s' % (SA + k, BB + 4 * u + k, '0' if first else 'v%d' % (SA + k)))
                    a('v_dot2_f32_bf16 v%d, v%d, v%d, %s' % (QA + k, BB + 4 * u + k, BB + 4 * u + k, '0' if first else 'v%d' % (QA + k)))
        for base in (SA, QA):
            a('v_add_f32 v%d, v%d, v%d' % (base, base, base + 1))
            a('v_add_f32 v%d, v%d, v%d' % (base + 2, base + 2, base + 3))
            a('v_add_f32 v%d, v%d, v%d' % (base, base, base + 2))
    for (x, y) in ((64, 72), (68, 76)):
        a('v_permlane32_swap_b32 v%d, v%d' % (x, y))
        a('v_add_f32 v%d, v%d, v%d' % (x, x, y))
    a('s_mov_b32 s45, 0x%x' % f2u(1.0 / 512))
    a('s_mov_b32 s46, 0x%x' % f2u(1e-5))
    a('v_mul_f32 v64, s45, v64')
    a('v_mul_f32 v65, v64, v64')
    a('v_fma_f32 v68, v68, s45, -v65')
    a('v_add_f32 v68, s46, v68')
    a('v_rsq_f32 v68, v68')
    a('s_mov_b32 s45, 0x%x' % f2u(LOG2E))
    a('v_mul_f32 v68, s45, v68')
    a('v_mul_f32_e64 v69, -v64, v68')
    a('v_lshlrev_b32 v93, 3, v1')
    a('v_add_u32 v93, %d, v93' % L_ST)
    a('ds_write_b64 v93, v[68:69]')
    if OPT.get('wb'):
        if OPT['wb'] == 1:
            a('s_cmp_ge_u32 s2, 8')
            a('s_cbranch_scc1 L_g1_epi')
        a('buffer_wbl2 sc1')
    a.label('L_g1_epi')
    a.fence(12)
    stamp(a, 24)
    a('s_waitcnt lgkmcnt(0)')
    a('s_barrier')
    a('s_cmp_eq_u32 s%d, 7' % S_W)
    a('s_cbranch_scc1 L_g1_done')
    a('v_and_b32 v88, 31, v1')
    a('v_lshlrev_b32 v88, 3, v88')
    a('v_add_u32 v88, %d, v88' % L_ST)
    a('ds_read_b64 v[90:91], v88 offset:256')
    a('ds_read_b64 v[88:89], v88')
    a('s_waitcnt vmcnt(28)')
    for q in range(4):
        for e in range(2):
            a('v_lshlrev_b32 v%d, 16, v%d' % (8 + 4 * q + 2 * e, 64 + 2 * q + e))
            a('v_and_b32 v%d, 0xffff0000, v%d' % (8 + 4 * q + 2 * e + 1, 64 + 2 * q + e))
    a('s_mov_b32 s58, 0x%x' % f2u(LOG2E))
    a('s_mov_b32 s59, s58')
    for k in range(8):
        a('v_pk_mul_f32 v[%d:%d], v[%d:%d], s[58:59]' % (8 + 2 * k, 9 + 2 * k, 8 + 2 * k, 9 + 2 * k))
    a('s_lshl_b32 s3, s%d, 3' % S_RB)
    a('s_add_u32 s3, s3, s%d' % S_J)
    a('s_mul_i32 s3, s3, 28')
    a('s_lshl_b32 s43, s%d, 1' % S_W)
    a('s_add_u32 s3, s3, s43')
    a('s_lshl_b32 s3, s3, 10')
    a('s_add_u32 s48, s3, 0x%x' % WS_P)
    a('s_add_u32 s49, s48, %d' % (14 * 1024))
    a('s_mov_b32 s60, 0.5'); a('s_mov_b32 s61, 0.5')
    a('s_waitcnt lgkmcnt(0)')
    P2 = lambda r: 'v[%d:%d]' % (r, r + 1)
    for mt in range(2):
        RS = 88 + 2 * mt
        for g in range(0, 16, 8):
            d = D1 + 16 * mt + g
            T, U = 24, 64
            for k in range(4):
                a('v_pk_fma_f32 %s, %s, %s, %s op_sel:[0,1,0] op_sel_hi:[1,1,1]' % (P2(T + 2 * k), P2(72 + g + 2 * k), P2(RS), P2(8 + g + 2 * k)))
            for k in range(4):
                a('v_pk_fma_f32 %s, %s, %s, %s op_sel:[0,0,0] op_sel_hi:[1,0,1]' % (P2(d + 2 * k), P2(d + 2 * k), P2(RS), P2(T + 2 * k)))
            for k in range(8): a('v_exp_f32 v%d, v%d' % (T + k, d + k))
            for k in range(4):
                a('v_pk_fma_f32 %s, %s, s[60:61], 1.0 op_sel_hi:[1,1,0]' % (P2(U + 2 * k), P2(T + 2 * k)))
            for k in range(4):
                a('v_pk_fma_f32 %s, %s, %s, 1.0 op_sel_hi:[1,1,0]' % (P2(U + 2 * k), P2(T + 2 * k), P2(U + 2 * k)))
            for k in range(8): a('v_rcp_f32 v%d, v%d' % (U + k, U + k))
            for k in range(4):
                a('v_pk_fma_f32 %s, %s, %s, %s neg_lo:[1,0,0] neg_hi:[1,0,0]' % (P2(d + 2 * k), P2(d + 2 * k), P2(U + 2 * k), P2(d + 2 * k)))
            TO = 72 + 8 * mt + 4 * (g // 8)
            TO = 176 + 8 * mt + 4 * (g // 8)
            for k in range(4):
                a('v_cvt_pk_bf16_f32 v%d, v%d, v%d' % (TO + k, d + 2 * k, d + 2 * k + 1))
            st = lambda m, TO=TO, mt=mt, g=g: a('buffer_store_dwordx4 %s, v2, %s, s%d offen offset:%d%s' % (vr(TO, 4), srd(S_WS), 48 + mt, (g // 8) * 1024, m))
            if OPT.get('asc1') == 2: both(a, lambda m: st(m + ' nt'))
            elif OPT.get('asc1') == 3: st(' sc1 nt')
            elif OPT.get('asc1') == 4: both(a, lambda m: st(' sc1' if m else ' sc0'))
            elif OPT.get('asc1'): st(' sc1')
            else: both(a, st)
    a.label('L_g1_done')
    a.fence(4)
    stamp(a, 25)
    a('s_lshl_b32 s3, s%d, 3' % S_RB)
    a('s_add_u32 s3, s3, s%d' % S_J)
    a('s_lshl_b32 s3, s3, 3')
    a('s_add_u32 s3, s3, s%d' % S_W)
    a('s_lshl_b32 s3, s3, 2')
    a('s_add_u32 s3, s3, 0x%x' % WS_F5)
    fm = lambda f: both(a, f)
    if OPT.get('split'):
        a('s_waitcnt vmcnt(2)')
        fm(lambda m: flag_store(a, 's3', S_TAG, m, 72))
        a('s_add_u32 s3, s3, 0x%x' % (WS_F5B - WS_F5))
        a('s_waitcnt vmcnt(1)')
        fm(lambda m: flag_store(a, 's3', S_TAG, m, 72))
    else:
        a('s_waitcnt vmcnt(0)')
        both(a, lambda m: flag_store(a, 's3', S_TAG, m, 72))
    stamp(a, 26)
    a('s_lshl_b32 s3, s%d, 3' % S_RB)
    a('s_add_u32 s3, s3, s%d' % S_W)
    a('s_mul_i32 s18, s3, %d' % (28 * 1024))
    a('s_add_u32 s18, s18, 0x%x' % WS_P)
    a('s_add_u32 s19, s18, %d' % (14 * 1024))
    a('s_lshl_b32 s3, s3, 5')
    a('s_add_u32 s3, s3, 0x%x' % WS_F5)
    poll8(a, 's3', 72)
    stamp(a, 27)
    D2, B2, NB2 = 8, 176, 12
    seq = [(s_, mt) for s_ in range(14) for mt in range(2)]
    if OPT.get('split'): seq = [(s_, mt) for mt in range(2) for s_ in range(14)]
    def bload2(i):
        s_, mt = seq[i]
        base = 18 + mt
        if s_ in (4, 8, 12): a('s_add_u32 s%d, s%d, 4096' % (base, base))
        a('buffer_load_dwordx4 %s, v2, %s, s%d offen offset:%d sc1' % (vr(B2 + 4 * (i % NB2), 4), srd(S_WS), base, (s_ % 4) * 1024))
    if OPT.get('split'): a('s_add_u32 s50, s3, 0x%x' % (WS_F5B - WS_F5))
    for i in range(NB2): bload2(i)
    if OPT.get('split'): poll8(a, 's50', 72)
    W2B = OPT.get('wb2', 0)
    for i, (s_, mt) in enumerate(seq):
        issued = min(len(seq), i + NB2)
        if W2B and i == len(seq) - NB2:
            lw = uid('L_wb2')
            a('s_cmp_lg_u32 s%d, %d' % (S_W, 7 if W2B != 3 else 0))
            a('s_cbranch_scc1 %s' % lw)
            if W2B in (1, 3):
                a('s_cmp_ge_u32 s2, 8')
            else:
                a('s_cmp_lg_u32 s%d, 0' % S_J)
            a('s_cbranch_scc1 %s' % lw)
            a('buffer_wbl2 sc1')
            for i2 in range(i, len(seq)):
                s2_, mt2 = seq[i2]
                a('s_waitcnt vmcnt(%d)' % (len(seq) - (i2 + 1) + 1))
                for nt in range(2):
                    acc = D2 + 16 * (2 * nt + mt2)
                    a('v_mfma_f32_32x32x16_bf16 %s, %s, %s, %s' % (vr(acc, 16), vr(w2_slot_reg(nt * 14 + s2_), 4), vr(B2 + 4 * (i2 % NB2), 4), vr(acc, 16)))
            a('s_branch L_g2_done')
            a.label(lw)
        a('s_waitcnt vmcnt(%d)' % (issued - (i + 1)))
        for nt in range(2):
            acc = D2 + 16 * (2 * nt + mt)
            a('v_mfma_f32_32x32x16_bf16 %s, %s, %s, %s' % (vr(acc, 16), vr(w2_slot_reg(nt * 14 + s_), 4), vr(B2 + 4 * (i % NB2), 4),
                                                          '0' if s_ == 0 else vr(acc, 16)))
        if i + NB2 < len(seq): bload2(i + NB2)
    a.label('L_g2_done')
    a.fence(2)
    stamp(a, 28)
    a('s_lshr_b32 s48, s%d, 2' % S_W)
    a('s_lshl_b32 s48, s48, 2')
    a('s_and_b32 s49, s%d, 1' % S_W)
    a('s_lshl_b32 s49, s49, 1')
    a('s_bfe_u32 s50, s%d, 0x10001' % S_W)
    a('s_add_u32 s48, s48, s49')
    a('s_add_u32 s48, s48, s50')
    a('s_lshl_b32 s3, s%d, 11' % S_W)
    a('v_add_u32 v72, s3, v2')
    a('v_add_u32 v73, 0x10000, v72')
    a.fence(12)
    for p_ in range(8):
        nt, mt, hf = p_ >> 2, (p_ >> 1) & 1, p_ & 1
        r = D2 + 16 * (2 * nt + mt) + 8 * hf
        lo, ln = uid('L_own'), uid('L_nx')
        a('s_cmp_eq_u32 s48, %d' % p_)
        a('s_cbranch_scc1 %s' % lo)
        vb, off = (72, p_ * 16384) if p_ < 4 else (73, (p_ - 4) * 16384)
        a('ds_write_b128 v%d, %s offset:%d' % (vb, vr(r, 4), off))
        a('ds_write_b128 v%d, %s offset:%d' % (vb, vr(r + 4, 4), off + 1024))
        a('s_branch %s' % ln)
        a.label(lo)
        for k in range(8): a('v_mov_b32 v%d, v%d' % (80 + k, r + k))
        a.label(ln)
    a('s_lshl_b32 s3, s48, 14')
    a('v_add_u32 v74, s3, v2')
    for k in range(4):
        a('v_lshlrev_b32 v%d, 16, v%d' % (88 + 2 * k, 4 + k))
        a('v_and_b32 v%d, 0xffff0000, v%d' % (89 + 2 * k, 4 + k))
    a('s_waitcnt lgkmcnt(0)')
    a('s_barrier')
    stamp(a, 29)
    for d in range(1, 8):
        a('s_add_u32 s3, s%d, %d' % (S_W, d))
        a('s_and_b32 s3, s3, 7')
        a('s_lshl_b32 s3, s3, 11')
        a('v_add_u32 v75, s3, v74')
        a('ds_read_b128 %s, v75' % vr(8 + 8 * (d - 1), 4))
        a('ds_read_b128 %s, v75 offset:1024' % vr(12 + 8 * (d - 1), 4))
    P2 = lambda r: 'v[%d:%d]' % (r, r + 1)
    for d in range(1, 8):
        a('s_waitcnt lgkmcnt(%d)' % (2 * (7 - d)))
        for k in range(4):
            a('v_pk_add_f32 %s, %s, %s' % (P2(80 + 2 * k), P2(80 + 2 * k), P2(8 + 8 * (d - 1) + 2 * k)))
    a('s_mov_b32 s3, 0x%x' % f2u(1.0 / LOG2E))
    for k in range(8): a('v_fma_f32 v%d, v%d, s3, v%d' % (80 + k, 80 + k, 88 + k))
    for k in range(4): a('v_cvt_pk_bf16_f32 v%d, v%d, v%d' % (8 + k, 80 + 2 * k, 81 + 2 * k))
    a('v_permlane32_swap_b32 v8, v10')
    a('v_permlane32_swap_b32 v9, v11')
    a('v_and_b32 v13, 31, v1')
    a('v_lshrrev_b32 v14, 5, v1')
    a('v_lshlrev_b32 v13, 10, v13')
    a('v_lshl_add_u32 v13, v14, 4, v13')
    a('buffer_store_dwordx4 v[8:11], v13, %s, s53 offen%s' % (srd(S_OUT), {0: '', 1: ' sc1', 2: ' nt', 3: ' sc1 nt'}[OPT.get('osc1', 0)]))
    a('s_cmp_lg_u32 s2, 0')
    a('s_cbranch_scc1 L_ep_done')
    a('s_cmp_lg_u32 s%d, 0' % S_W)
    a('s_cbranch_scc1 L_ep_done')
    a('s_mov_b32 s3, 0x%x' % WS_EPOCH)
    flag_store(a, 's3', S_E1, ' sc1', 72)
    a.label('L_ep_done')


def gen_fused(force_slow=False):
    n = NAME + '_kernel'
    text = HEADER + '; @launch grid=(256,1,1) block=(512,1,1) lds=163840\n'
    text += '.amdgcn_target "amdgcn-amd-amdhsa--gfx950"\n.text\n'
    a = Asm()
    end = 'L_end'
    setup(a, end)
    if STAMPS: a('v_mov_b32 v%d, 0' % STAMP_V)
    stamp(a, 0)
    phase1(a)
    phase2(a, force_slow)
    phase3(a)
    phase45(a)
    if STAMPS:
        a('s_waitcnt vmcnt(0)')
        stamp(a, 31)
        stamp_flush(a)
    if not OPT.get('noend'): a('s_waitcnt vmcnt(0)')
    a.label(end)
    a('s_endpgm')
    text += G.kernel_wrap(n, a.text())
    text += '.section .rodata,"a"\n.p2align 6\n' + G.desc(n)
    return text


if __name__ == '__main__':
    out = sys.argv[1] if len(sys.argv) > 1 else 'cdna_kernels/%s.s' % NAME
    for t in sys.argv[2:]:
        if '=' in t:
            k, v = t.split('='); OPT[k] = int(v)
        else:
            OPT[t] = 1
    STAMPS = 'stamps' in OPT
    t = gen_fused(force_slow='slow' in OPT)
    open(out, 'w').write(t)
    print('wrote', out, len(t))
```

```python
import sys, os
sys.path.insert(0, os.path.dirname(__file__))
from asmlib import Asm
import gen as G
from gen import (NAME, f2u, srd, vr, mk_srd, ln_stats, ln_apply, LOG2E, LIMIT2,
                 S_X, S_WQ, S_WKV, S_B1, S_OUT, S_WS, S_J, S_RB, S_W,
                 WS_KMAX, WS_WO, WS_W1, WS_W2, WS_O, WS_H, WS_P, WS_STAMP, WS_SIZE, HEADER)

WS_F1 = 0x30000
WS_F2 = 0x30400
WS_F3 = 0x31000
WS_F4 = 0x33000
WS_F5 = 0x35000
WS_EPOCH = 0x37000
WS_F5B = 0x38000
S_TAG, S_FAST, S_E1, S_F1V = 100, 101, 16, 17
OPT = {}
STAMPS = False
STAMP_V = 0
SPIN = 1 << 17
_uid = [0]


def uid(p):
    _uid[0] += 1
    return '%s_%d' % (p, _uid[0])


def stamp(a, idx):
    if not STAMPS: return
    a('s_waitcnt lgkmcnt(0)')
    a('s_memtime s[96:97]')
    a('s_memrealtime s[98:99]')
    a('s_waitcnt lgkmcnt(0)')
    a('v_writelane_b32 v%d, s96, %d' % (STAMP_V, idx))
    a('v_writelane_b32 v%d, s98, %d' % (STAMP_V, idx + 32))


def stamp_flush_dbg(a):
    sel = [(0, 1), (0, 0), (12, 0), (16, 0), (17, 0), (21, 0), (23, 0), (24, 0), (26, 0), (27, 0), (28, 0), (29, 0), (31, 0), (31, 1), (4, 0), (9, 0)]
    for i, (idx, neg) in enumerate(sel):
        a('v_readlane_b32 s3, v%d, %d' % (STAMP_V, idx + 32))
        if neg: a('s_not_b32 s3, s3')
        a('s_nop 3')
        a('v_writelane_b32 v4, s3, %d' % i)
    a('v_lshlrev_b32 v3, 2, v1')
    a('s_mov_b64 exec, 0xffff')
    a('global_atomic_umax v3, v4, s[22:23]')
    a('s_mov_b64 exec, -1')


def stamp_flush(a):
    if not STAMPS: return
    if OPT.get('dbg'):
        stamp_flush_dbg(a); return
    a('s_lshl_b32 s3, s2, 11')
    a('s_lshl_b32 s43, s%d, 8' % S_W)
    a('s_add_u32 s3, s3, s43')
    a('s_add_u32 s3, s3, 0x%x' % WS_STAMP)
    a('v_lshlrev_b32 v3, 2, v1')
    a('buffer_store_dword v%d, v3, %s, s3 offen' % (STAMP_V, srd(S_WS)))


def both(a, fn):
    if OPT.get('nofast'):
        fn(' sc1'); return
    ls, ld = uid('L_sl'), uid('L_dn')
    a('s_cmp_eq_u32 s%d, 0' % S_FAST)
    a('s_cbranch_scc1 %s' % ls)
    fn('')
    a('s_branch %s' % ld)
    a.label(ls)
    fn(' sc1')
    a.label(ld)


def flag_store(a, soff, val, mod, vt):
    a('v_mov_b32 v%d, s%d' % (vt, val))
    a('s_mov_b64 exec, 1')
    a('buffer_store_dword v%d, off, %s, %s%s' % (vt, srd(S_WS), soff, mod))
    a('s_mov_b64 exec, -1')


def poll8(a, soff, vt, sleep=True):
    l, d = uid('L_poll'), uid('L_pd')
    a('v_and_b32 v%d, 7, v1' % (vt + 1))
    a('v_lshlrev_b32 v%d, 2, v%d' % (vt + 1, vt + 1))
    a('s_mov_b32 s43, %d' % SPIN)
    a.label(l)
    a('buffer_load_dword v%d, v%d, %s, %s offen sc1' % (vt, vt + 1, srd(S_WS), soff))
    a('s_waitcnt vmcnt(0)')
    a('v_cmp_ne_u32 vcc, s%d, v%d' % (S_TAG, vt))
    a('s_cbranch_vccz %s' % d)
    a('s_sub_u32 s43, s43, 1')
    a('s_cmp_lg_u32 s43, 0')
    a('s_cbranch_scc1 %s' % l)
    a.label(d)


def check256(a, vt):
    for k in range(4):
        a('v_xor_b32 v%d, s%d, v%d' % (vt + k, S_TAG, vt + k))
    a('v_or3_b32 v%d, v%d, v%d, v%d' % (vt, vt, vt + 1, vt + 2))
    a('v_or_b32 v%d, v%d, v%d' % (vt, vt, vt + 3))
    a('v_cmp_le_u32 vcc, 16, v%d' % vt)


def poll256(a, base, vt, first_loaded=False):
    l, d, c = uid('L_poll'), uid('L_pd'), uid('L_pc')
    a('s_mov_b32 s43, %d' % SPIN)
    a('s_mov_b32 s3, 0x%x' % base)
    if first_loaded:
        a('s_branch %s' % c)
    a.label(l)
    a('buffer_load_dwordx4 %s, v2, %s, s3 offen sc1' % (vr(vt, 4), srd(S_WS)))
    a.label(c)
    a('s_waitcnt vmcnt(0)')
    check256(a, vt)
    a('s_cbranch_vccz %s' % d)
    a('s_sub_u32 s43, s43, 1')
    a('s_cmp_lg_u32 s43, 0')
    a('s_sleep %d' % OPT.get('slp', 2))
    a('s_cbranch_scc1 %s' % l)
    a.label(d)


def setup(a, endlabel):
    a('s_cmp_ge_u32 s2, 256')
    a('s_cbranch_scc1 %s' % endlabel)
    a('s_load_dwordx16 s[64:79], s[0:1], 0')
    a('s_load_dwordx8 s[80:87], s[0:1], 64')
    a('v_lshrrev_b32 v2, 6, v0')
    a('v_and_b32 v1, 63, v0')
    a('v_readfirstlane_b32 s%d, v2' % S_W)
    a('v_lshlrev_b32 v2, 4, v1')
    a('s_lshr_b32 s%d, s2, 3' % S_J)
    a('s_and_b32 s%d, s%d, 7' % (S_J, S_J))
    a('s_and_b32 s%d, s2, 7' % S_RB)
    a('s_lshl_b32 s%d, s%d, 2' % (S_RB, S_RB))
    a('s_lshr_b32 s3, s2, 6')
    a('s_add_u32 s%d, s%d, s3' % (S_RB, S_RB))
    a('s_getreg_b32 s%d, hwreg(HW_REG_XCC_ID, 0, 4)' % S_F1V)
    a('s_waitcnt lgkmcnt(0)')
    a('s_load_dword s%d, s[86:87], 0x%x' % (S_E1, WS_EPOCH))
    if OPT.get('dbg'):
        a('s_mov_b32 s22, s84'); a('s_mov_b32 s23, s85')
    mk_srd(a, S_X, 64, 2048 * 512 * 2)
    a('s_bitcmp1_b32 s%d, 0' % S_J)
    a('s_cselect_b32 s%d, s70, s68' % S_WKV)
    a('s_cselect_b32 s%d, s71, s69' % (S_WKV + 1))
    a('s_mov_b32 s%d, 0x%x' % (S_WKV + 2, 512 * 16 * 2))
    a('s_mov_b32 s%d, 0x20000' % (S_WKV + 3))
    mk_srd(a, S_WQ, 66, 512 * 512 * 2)
    mk_srd(a, S_WS, 86, WS_SIZE)
    mk_srd(a, S_B1, 78, 1792 * 2)
    mk_srd(a, S_OUT, 82, 2048 * 512 * 2)


L_WKV, L_X, L_WQ = 0, 32768, 98304
TS_ = 2064
KVB = 16256
L_QX = 0
L_BC = 16128
L_TBA, L_TBB = 148480, 4096
CTRL = 7


def tb_setup(a):
    a('s_cmp_lt_u32 s2, 112')
    a('s_cbranch_scc1 L_tb_w1')
    a('s_cmp_lt_u32 s2, 224')
    a('s_cbranch_scc1 L_tb_w2')
    a('s_sub_u32 s3, s2, 224')
    a('s_mov_b32 s52, s72'); a('s_mov_b32 s53, s73'); a('s_mov_b32 s54, 0x%x' % (512 * 512 * 2))
    a('s_mov_b32 s56, 1024')
    a('s_and_b32 s60, s3, 3'); a('s_lshr_b32 s61, s3, 2')
    a('s_mov_b32 s59, %d' % (32 * 1024))
    a('s_mov_b32 s62, 0x%x' % WS_WO)
    a('s_branch L_tb_go')
    a.label('L_tb_w1')
    a('s_mov_b32 s52, s76'); a('s_mov_b32 s53, s77'); a('s_mov_b32 s54, 0x%x' % (512 * 1792 * 2))
    a('s_mov_b32 s56, 3584')
    a('s_and_b32 s60, s2, 3'); a('s_lshr_b32 s61, s2, 2')
    a('s_mov_b32 s59, %d' % (32 * 1024))
    a('s_mov_b32 s62, 0x%x' % WS_W1)
    a('s_branch L_tb_go')
    a.label('L_tb_w2')
    a('s_sub_u32 s3, s2, 112')
    a('s_mov_b32 s52, s80'); a('s_mov_b32 s53, s81'); a('s_mov_b32 s54, 0x%x' % (1792 * 512 * 2))
    a('s_mov_b32 s56, 1024')
    a('s_lshr_b32 s60, s3, 3'); a('s_and_b32 s61, s3, 7')
    a('s_mov_b32 s59, %d' % (112 * 1024))
    a('s_mov_b32 s62, 0x%x' % WS_W2)
    a.label('L_tb_go')
    a('s_mov_b32 s55, 0x20000')
    a('s_lshl_b32 s3, s60, 7')
    a('s_lshl_b32 s43, s%d, 4' % S_W)
    a('s_add_u32 s3, s3, s43')
    a('s_mul_i32 s57, s3, s56')
    a('s_lshl_b32 s3, s61, 7')
    a('s_add_u32 s57, s57, s3')
    a('s_lshl_b32 s3, s61, 1')
    a('s_mul_i32 s58, s3, s59')
    a('s_add_u32 s58, s58, s62')
    a('s_lshl_b32 s3, s60, 3')
    a('s_add_u32 s3, s3, s%d' % S_W)
    a('s_lshl_b32 s3, s3, 10')
    a('s_add_u32 s58, s58, s3')
    a('s_lshl_b32 s60, s%d, 11' % S_W)
    a('s_cmp_lt_u32 s%d, 4' % S_W)
    a('s_mov_b32 s3, %d' % L_TBA)
    a('s_cselect_b32 s3, s3, 0x%x' % ((L_TBB - 4 * 2048) & 0xffffffff))
    a('s_add_u32 s60, s60, s3')


def swz_off(a, vr_, vp):
    a('v_lshrrev_b32 v%d, 3, v1' % vr_)
    a('v_and_b32 v%d, 7, v1' % vp)
    a('v_lshlrev_b32 v%d, 1, v%d' % (vp + 1, vr_))
    a('v_and_b32 v%d, 4, v%d' % (vp + 1, vp + 1))
    a('v_xor_b32 v%d, v%d, v%d' % (vp, vp, vp + 1))
    a('v_lshlrev_b32 v%d, 4, v%d' % (vp, vp))


def phase1(a):
    XR, XQ = 32, 40
    TS, TQ, TT = 8, 16, 24
    QR = [90, 91, 92, 93, 94, 95, 63]
    a('s_lshr_b32 s47, s%d, 1' % S_J)
    a('s_lshl_b32 s47, s47, 4')
    a('s_lshl_b32 s88, s%d, 1' % S_W)
    a('s_add_u32 s88, s88, s47')
    a('s_add_u32 s89, s88, 1')
    a('s_lshl_b32 s48, s%d, 16' % S_RB)
    def xload(sr, v):
        a('s_lshl_b32 s43, s%d, 10' % sr)
        a('s_add_u32 s43, s43, s48')
        a('buffer_load_dwordx4 %s, v2, %s, s43 offen' % (vr(v, 4), srd(S_X)))
    def ipf():
        a('s_getpc_b64 s[90:91]')
        a.label('L_pc')
        a('v_lshlrev_b32 v8, 7, v1')
        a('s_lshl_b32 s3, s%d, 13' % S_W)
        a('v_add_u32 v8, s3, v8')
        a('s_mov_b32 s3, L_end-L_pc-4')
        a('v_min_u32 v8, s3, v8')
        a('v_mov_b32 v9, s91')
        a('v_add_co_u32 v8, vcc, s90, v8')
        a('v_addc_co_u32 v9, vcc, 0, v9, vcc')
        lim = {1: 0, 3: 32, 4: 8, 5: 64}[OPT.get('ipf')]
        if lim:
            a('s_cmp_ge_u32 s2, %d' % lim)
            a('s_cbranch_scc1 L_ipf_skip')
        a('global_load_dword v10, v[8:9], off')
        if lim:
            a.label('L_ipf_skip')
    if OPT.get('ipf') in (1, 3, 4, 5): ipf()
    xload(88, XR); xload(89, XR + 4)
    KVP = OPT.get('kvpre', 0)
    if KVP:
        a('s_cmp_lg_u32 s%d, %d' % (S_W, CTRL))
        a('s_cbranch_scc1 L_p1_nowkv')
        for g in range(4):
            a('s_mov_b32 s43, %d' % (g * 4096))
            a('s_mov_b32 m0, s43')
            a('s_nop 0')
            for k in range(4):
                a('buffer_load_dwordx4 v2, %s, s43 offen offset:%d lds' % (srd(S_WKV), k * 1024))
        a.label('L_p1_nowkv')
    else:
        a('s_lshl_b32 s43, s%d, 11' % S_W)
        a('s_mov_b32 m0, s43')
        a('buffer_load_dwordx4 v2, %s, s43 offen lds' % srd(S_WKV))
        a('buffer_load_dwordx4 v2, %s, s43 offen offset:1024 lds' % srd(S_WKV))
    def qrows():
        a('s_cmp_eq_u32 s%d, %d' % (S_W, CTRL))
        a('s_cbranch_scc1 L_p1_noq')
        for t in range(7):
            r = QR[t]
            a('s_mul_i32 s%d, s%d, 7' % (r, S_W))
            a('s_add_u32 s%d, s%d, %d' % (r, r, t))
            if t == 6: a('s_min_u32 s%d, s%d, 47' % (r, r))
            a('s_add_u32 s43, s%d, 16' % r)
            a('s_cmp_lt_u32 s%d, s47' % r)
            a('s_cselect_b32 s%d, s%d, s43' % (r, r))
            xload(r, XQ + 4 * t)
        a.label('L_p1_noq')
    P1Q = OPT.get('p1q', 0)
    if not P1Q: qrows()
    a('s_mov_b32 s44, 0x3f803f80')
    a('s_mov_b32 s45, 0x%x' % f2u(1.0 / 512))
    a('s_mov_b32 s46, 0x%x' % f2u(1e-5))
    tb_setup(a)
    swz_off(a, 3, 4)
    a('v_lshl_add_u32 v5, v3, 10, v4')
    stamp(a, 1)
    if P1Q:
        if KVP:
            a('s_cmp_eq_u32 s%d, %d' % (S_W, CTRL))
            a('s_cbranch_scc1 L_p1_w7')
            a('s_waitcnt vmcnt(0) lgkmcnt(0)')
            a('s_branch L_p1_w')
            a.label('L_p1_w7')
            a('s_waitcnt vmcnt(16) lgkmcnt(0)')
            a.label('L_p1_w')
        else:
            a('s_waitcnt vmcnt(2) lgkmcnt(0)')
        qrows()
    else:
        a('s_cmp_eq_u32 s%d, %d' % (S_W, CTRL))
        a('s_cbranch_scc1 L_p1_w7')
        a('s_waitcnt vmcnt(9) lgkmcnt(0)')
        a('s_branch L_p1_w')
        a.label('L_p1_w7')
        a('s_waitcnt vmcnt(2) lgkmcnt(0)')
        a.label('L_p1_w')
    a('s_mul_i32 s%d, s%d, 0x9E3779B1' % (S_TAG, S_E1))
    a('s_add_u32 s%d, s%d, 0x7F4A7C15' % (S_TAG, S_TAG))
    a('s_and_b32 s%d, s%d, 0xFFFFFFF0' % (S_TAG, S_TAG))
    a('s_or_b32 s%d, s%d, s%d' % (S_F1V, S_F1V, S_TAG))
    a('s_add_u32 s%d, s%d, 1' % (S_E1, S_E1))
    stamp(a, 2)
    SB = 72
    ln_stats(a, [XR, XR + 4], TS, TQ, SB)
    def xstore(sr, v):
        a('s_lshl_b32 s3, s%d, 10' % sr)
        a('s_and_b32 s43, s%d, 15' % sr)
        a('s_lshl_b32 s43, s43, 4')
        a('s_add_u32 s3, s3, s43')
        a('s_add_u32 s3, s3, %d' % L_X)
        a('v_xor_b32 v7, s3, v2')
        a('ds_write_b128 v7, %s' % vr(v, 4))
    for i in range(2):
        ln_apply(a, XR + 4 * i, SB + 2 * i, TT)
        xstore(88 + i, XR + 4 * i)
    a('s_cmp_eq_u32 s%d, %d' % (S_W, CTRL))
    a('s_cbranch_scc1 L_p1_w7b')
    a('s_waitcnt vmcnt(7) lgkmcnt(0)')
    stamp(a, 3)
    a('s_barrier')
    stamp(a, 4)
    a('s_lshl_b32 s49, s%d, 13' % S_W)
    a('s_lshl_b32 s43, s%d, 7' % S_J)
    a('s_add_u32 s49, s49, s43')
    a('s_lshl_b32 s50, s%d, 10' % S_W)
    a('s_add_u32 s50, s50, %d' % L_WQ)
    nq = [0]
    def wq(n=1):
        for _ in range(n):
            a('s_mov_b32 m0, s50')
            a('s_add_u32 s50, s50, %d' % (7 * 1024))
            a('buffer_load_dwordx4 v5, %s, s49 offen lds' % srd(S_WQ))
            a('s_add_u32 s49, s49, %d' % (7 * 8192))
            nq[0] += 1
    wq(2)
    a('s_waitcnt vmcnt(5)')
    rows = [XQ + 4 * t for t in range(7)]
    ln_stats(a, rows[0:4], TS, TQ, SB)
    wq(2)
    for t in range(4):
        ln_apply(a, rows[t], SB + 2 * t, TT)
        xstore(QR[t], rows[t])
        if t % 2 == 1: wq(1)
    a('s_waitcnt vmcnt(6)')
    ln_stats(a, [rows[4], rows[5], rows[6], rows[3]], TS, TQ, SB)
    wq(2)
    for t in range(4, 7):
        ln_apply(a, rows[t], SB + 2 * (t - 4), TT)
        xstore(QR[t], rows[t])
        if t == 4: wq(1)
    assert nq[0] == 9
    a('s_cmp_lg_u32 s%d, 0' % S_W)
    a('s_cbranch_scc1 L_p1_wq9')
    wq(1)
    a.label('L_p1_wq9')
    stamp(a, 7)
    a('s_waitcnt vmcnt(0) lgkmcnt(0)')
    stamp(a, 8)
    a('s_barrier')
    stamp(a, 9)
    a('s_cmp_ge_u32 s%d, 4' % S_W)
    a('s_cbranch_scc1 L_q_done')
    a('s_and_b32 s48, s%d, 1' % S_W)
    a('s_lshr_b32 s49, s%d, 1' % S_W)
    a('v_lshrrev_b32 v8, 5, v1')
    a('v_bfe_u32 v9, v1, 4, 1')
    a('v_bfe_u32 v10, v1, 2, 2')
    a('v_and_b32 v11, 3, v1')
    a('v_lshrrev_b32 v12, 1, v11')
    a('v_lshl_add_u32 v12, v9, 1, v12')
    a('v_lshrrev_b32 v13, 1, v10')
    a('v_lshlrev_b32 v13, 2, v13')
    a('v_xor_b32 v12, v12, v13')
    a('v_lshlrev_b32 v12, 4, v12')
    a('v_and_b32 v11, 1, v11')
    a('v_lshl_add_u32 v12, v11, 3, v12')
    a('v_lshl_add_u32 v13, v8, 3, v10')
    a('v_lshl_add_u32 v13, v13, 7, v12')
    a('s_lshl_b32 s43, s48, 6')
    a('v_xor_b32 v13, s43, v13')
    a('v_add_u32 v13, %d, v13' % L_WQ)
    a('v_and_b32 v16, 31, v1')
    a('v_and_b32 v17, 15, v1')
    a('v_xor_b32 v17, v17, v8')
    a('v_lshlrev_b32 v17, 4, v17')
    a('v_lshl_add_u32 v17, v16, 10, v17')
    a('s_lshl_b32 s3, s49, 15')
    a('s_add_u32 s3, s3, %d' % L_X)
    a('v_add_u32 v24, s3, v17')
    for q in range(1, 8):
        a('v_xor_b32 v%d, %d, v24' % (24 + q, 32 * q))
    QA, QB, QD, NR, PF = 64, 128, 32, 8, 4
    def qload(s):
        a('ds_read_b64_tr_b16 %s, v13 offset:%d' % (vr(QA + 4 * (s % NR), 2), 2048 * s))
        a('ds_read_b64_tr_b16 %s, v13 offset:%d' % (vr(QA + 4 * (s % NR) + 2, 2), 2048 * s + 512))
        a('ds_read_b128 %s, v%d offset:%d' % (vr(QB + 4 * (s % NR), 4), 24 + s % 8, (s // 8) * 256))
    for s in range(PF): qload(s)
    for s in range(32):
        if s + PF < 32: qload(s + PF)
        rem = min(32, s + PF + 1) - (s + 1)
        a('s_waitcnt lgkmcnt(%d)' % min(15, 3 * rem))
        a('v_mfma_f32_32x32x16_bf16 %s, %s, %s, %s' % (vr(QD, 16), vr(QA + 4 * (s % NR), 4), vr(QB + 4 * (s % NR), 4), '0' if s == 0 else vr(QD, 16)))
    a('s_mov_b32 s3, 0x%x' % f2u(0.25 * LOG2E))
    a('s_lshl_b32 s43, s%d, 10' % S_W)
    a('v_add_u32 v8, s43, v2')
    a.fence(12)
    for k in range(16):
        a('v_mul_f32 v%d, s3, v%d' % (QD + k, QD + k))
    for k in range(4):
        a('v_cvt_pk_bf16_f32 v%d, v%d, v%d' % (8 + 4 + k, QD + 8 + 2 * k, QD + 9 + 2 * k))
    a('ds_write_b128 v8, v[12:15] offset:%d' % L_QX)
    for k in range(4):
        a('v_cvt_pk_bf16_f32 v%d, v%d, v%d' % (R_Q + k, QD + 2 * k, QD + 2 * k + 1))
    a.label('L_q_done')
    a('s_waitcnt lgkmcnt(0)')
    stamp(a, 11)
    a('s_barrier')
    a('s_branch L_p1_end')
    a.label('L_p1_w7b')
    a.fence(4)
    a('s_waitcnt vmcnt(0) lgkmcnt(0)')
    if not KVP:
        stamp(a, 3)
        a('s_barrier')
        stamp(a, 4)
    KW, KX = 64, 128
    a('v_lshrrev_b32 v8, 4, v1')
    a('v_and_b32 v9, 15, v1')
    a('v_lshlrev_b32 v10, 8, v8')
    a('v_lshl_add_u32 v10, v9, 3, v10')
    a('v_xor_b32 v11, v8, v9')
    a('v_lshlrev_b32 v11, 4, v11')
    a('v_add_u32 v12, s47, v9')
    a('v_lshlrev_b32 v12, 10, v12')
    a('v_add_u32 v12, %d, v12' % L_X)
    a('v_add_u32 v12, v12, v11')
    a('v_xor_b32 v13, 64, v12')
    a('v_xor_b32 v14, 0x80, v12')
    a('v_xor_b32 v15, 0xc0, v12')
    def kvload(ks):
        if not KVP:
            a('ds_read_b64_tr_b16 %s, v10 offset:%d' % (vr(KW + 4 * ks, 2), 1024 * ks))
            a('ds_read_b64_tr_b16 %s, v10 offset:%d' % (vr(KW + 4 * ks + 2, 2), 1024 * ks + 128))
        a('ds_read_b128 %s, v%d offset:%d' % (vr(KX + 4 * ks, 4), 12 + ks % 4, (ks // 4) * 256))
    KPF = 8 if KVP else 4
    if KVP:
        for ks in range(16):
            a('ds_read_b64_tr_b16 %s, v10 offset:%d' % (vr(KW + 4 * ks, 2), 1024 * ks))
            a('ds_read_b64_tr_b16 %s, v10 offset:%d' % (vr(KW + 4 * ks + 2, 2), 1024 * ks + 128))
            if ks % 4 == 3: a('s_waitcnt lgkmcnt(4)')
        a('s_waitcnt lgkmcnt(0)')
        stamp(a, 3)
        a('s_barrier')
        stamp(a, 4)
    for ks in range(KPF): kvload(ks)
    a('s_bitcmp1_b32 s%d, 0' % S_J)
    a('s_cbranch_scc1 L_kv_v')
    for var in (0, 1):
        if var: a.label('L_kv_v'); a.fence(4)
        for ks in range(16):
            if ks + KPF < 16: kvload(ks + KPF)
            a('s_waitcnt lgkmcnt(%d)' % ((1 if KVP else 3) * (min(16, ks + KPF + 1) - (ks + 1))))
            acc = 16 + 4 * (ks % 2)
            A, B = (KW + 4 * ks, KX + 4 * ks) if var == 0 else (KX + 4 * ks, KW + 4 * ks)
            a('v_mfma_f32_16x16x32_bf16 %s, %s, %s, %s' % (vr(acc, 4), vr(A, 4), vr(B, 4), '0' if ks < 2 else vr(acc, 4)))
        for k in range(4):
            a('v_add_f32 v%d, v%d, v%d' % (16 + k, 16 + k, 20 + k))
        a('v_cvt_pk_bf16_f32 v16, v16, v17')
        a('v_cvt_pk_bf16_f32 v17, v18, v19')
        a('v_and_b32 v18, 1, v8')
        a('v_lshlrev_b32 v18, %d, v18' % (9 if var == 0 else 8))
        a('v_lshl_add_u32 v18, v9, 4, v18')
        a('v_lshrrev_b32 v19, 1, v8')
        a('v_lshl_add_u32 v18, v19, 3, v18')
        a('s_lshl_b32 s3, s%d, 1' % S_RB)
        a('s_lshr_b32 s43, s47, 5')
        a('s_add_u32 s3, s3, s43')
        a('s_lshl_b32 s3, s3, 11')
        a('s_and_b32 s43, s47, 16')
        if var == 0:
            a('s_lshl_b32 s43, s43, 4')
        else:
            a('s_lshl_b32 s43, s43, 5')
            a('s_add_u32 s43, s43, 1024')
        a('s_add_u32 s3, s3, s43')
        a('buffer_store_dwordx2 v[16:17], v18, %s, s3 offen sc1' % srd(S_WS))
        if var == 0:
            a('v_dot2_f32_bf16 v20, v16, v16, 0')
            a('v_dot2_f32_bf16 v20, v17, v17, v20')
            a('v_mov_b32 v21, v20')
            a('v_permlane32_swap_b32 v20, v21')
            a('v_add_f32 v20, v20, v21')
            a('v_mov_b32 v21, v20')
            a('v_permlane16_swap_b32 v20, v21')
            a('v_add_f32 v20, v20, v21')
            for sh in (8, 4, 2, 1):
                a('v_max_f32_dpp v20, v20, v20 row_ror:%d row_mask:0xf bank_mask:0xf' % sh)
            a('s_lshl_b32 s3, s%d, 2' % S_RB)
            a('s_lshr_b32 s43, s%d, 1' % S_J)
            a('s_add_u32 s3, s3, s43')
            a('s_lshl_b32 s3, s3, 2')
            a('s_add_u32 s3, s3, 0x%x' % WS_KMAX)
            a('s_mov_b64 exec, 1')
            a('buffer_store_dword v20, off, %s, s3 sc1' % srd(S_WS))
            a('s_mov_b64 exec, -1')
            a('s_branch L_kv_done')
    a.label('L_kv_done')
    a.fence(4)
    stamp(a, 5)
    a('s_lshl_b32 s3, s%d, 3' % S_RB)
    a('s_add_u32 s3, s3, s%d' % S_J)
    a('s_lshl_b32 s3, s3, 2')
    a('s_add_u32 s3, s3, 0x%x' % WS_F1)
    a('s_waitcnt vmcnt(0)')
    stamp(a, 6)
    flag_store(a, 's3', S_F1V, ' sc1', 8)
    a('s_barrier')
    stamp(a, 8)
    poll256(a, WS_F1, 56)
    stamp(a, 7)
    a('v_and_b32 v8, 7, v1')
    a('v_lshlrev_b32 v8, 2, v8')
    a('s_lshl_b32 s3, s%d, 5' % S_RB)
    a('s_add_u32 s3, s3, 0x%x' % WS_F1)
    a('buffer_load_dword v12, v8, %s, s3 offen sc1' % srd(S_WS))
    a('v_lshlrev_b32 v8, 3, v1')
    a('s_mov_b32 s3, 0x%x' % WS_KMAX)
    a('buffer_load_dwordx2 v[10:11], v8, %s, s3 offen sc1' % srd(S_WS))
    a('s_mov_b32 s3, 0')
    a('s_mov_b32 s43, %d' % KVB)
    for t in range(8):
        a('s_mov_b32 m0, s43')
        a('s_add_u32 s43, s43, %d' % TS_)
        a('buffer_load_dwordx4 v2, %s, s3 offen sc1 lds' % srd(S_WS))
        a('buffer_load_dwordx4 v2, %s, s3 offen offset:1024 sc1 lds' % srd(S_WS))
        if t < 7: a('s_add_u32 s3, s3, 2048')
    a('s_waitcnt vmcnt(16)')
    a('v_cmp_ne_u32 vcc, s%d, v12' % S_F1V)
    a('s_cmp_eq_u64 vcc, 0')
    a('s_cselect_b32 s3, 1, 0')
    a('v_max_f32 v10, v10, v11')
    a('v_mov_b32 v11, v10')
    a('v_permlane32_swap_b32 v10, v11')
    a('v_max_f32 v10, v10, v11')
    a('v_mov_b32 v11, v10')
    a('v_permlane16_swap_b32 v10, v11')
    a('v_max_f32 v10, v10, v11')
    for sh in (8, 4, 2, 1):
        a('v_max_f32_dpp v10, v10, v10 row_ror:%d row_mask:0xf bank_mask:0xf' % sh)
    a('v_mov_b32 v11, s3')
    a('v_mov_b32 v12, 0')
    a('v_mov_b32 v13, 0')
    a('v_mov_b32 v8, %d' % L_BC)
    a('s_mov_b64 exec, 1')
    a('ds_write_b128 v8, v[10:13]')
    a('ds_write_b32 v8, v12 offset:16')
    a('s_mov_b64 exec, -1')
    a('s_waitcnt vmcnt(0) lgkmcnt(0)')
    stamp(a, 11)
    a('s_barrier')
    a.label('L_p1_end')
    a.fence(4)
    stamp(a, 12)


R_Q, R_S0, R_S1, R_O, R_P0, R_P1 = 4, 8, 24, 40, 56, 60
R_V0, R_V1, R_K = 64, 72, 80
R_KAD, R_VA0, R_VA1, R_ROW, R_XRES = 88, 3, 89, 90, 92
R_WO, R_W1 = 192, 96


def prefetch_list(a):
    L = []
    def wo_addr():
        a('s_lshr_b32 s51, s%d, 1' % S_W)
        a('s_lshl_b32 s51, s51, 3')
        a('s_lshl_b32 s52, s%d, 6' % S_J)
        a('s_add_u32 s51, s51, s52')
        a('s_lshl_b32 s51, s51, 10')
        a('s_add_u32 s51, s51, 0x%x' % WS_WO)
        a('s_add_u32 s52, s51, %d' % (32 * 1024))
    def wo(nt, s):
        def f():
            if nt == 0 and s == 0: wo_addr()
            if s == 4: a('s_add_u32 s%d, s%d, 4096' % (51 + nt, 51 + nt))
            a('buffer_load_dwordx4 %s, v2, %s, s%d offen offset:%d sc1' % (vr(R_WO + 32 * nt + 4 * s, 4), srd(S_WS), 51 + nt, (s % 4) * 1024))
        return f
    for s in range(8):
        for nt in range(2): L.append(wo(nt, s))
    def xres():
        a('s_and_b32 s3, s%d, 1' % S_W)
        a('s_lshl_b32 s43, s%d, 1' % S_RB)
        a('s_add_u32 s3, s3, s43')
        a('s_lshl_b32 s3, s3, 15')
        a('s_lshl_b32 s43, s%d, 7' % S_J)
        a('s_add_u32 s3, s3, s43')
        a('s_lshr_b32 s43, s%d, 1' % S_W)
        a('s_lshl_b32 s43, s43, 5')
        a('s_add_u32 s53, s3, s43')
        a('buffer_load_dwordx4 %s, v%d, %s, s53 offen' % (vr(R_XRES, 4), R_ROW, srd(S_X)))
    L.append(xres)
    def w1_addr():
        a('s_mul_i32 s54, s%d, 7' % S_J)
        a('s_add_u32 s54, s54, s%d' % S_W)
        a('s_lshl_b32 s54, s54, 15')
        a('s_add_u32 s54, s54, 0x%x' % WS_W1)
        w2_base(a, 's55')
        a('s_add_u32 s56, s55, %d' % (8 * 1024))
        a('s_cmp_eq_u32 s%d, 7' % S_W)
        a('s_cselect_b32 s57, s56, s54')
        a('s_cselect_b32 s58, %d, 0' % ((112 - 14) * 1024))
    def w1(i):
        def f():
            if i == 0: w1_addr()
            if i < 6:
                if i == 4: a('s_add_u32 s57, s57, 4096')
                off = (i % 4) * 1024
            else:
                if i == 6:
                    a('s_add_u32 s57, s57, 2048'); a('s_add_u32 s57, s57, s58')
                elif (i - 6) % 4 == 0:
                    a('s_add_u32 s57, s57, 4096')
                off = ((i - 6) % 4) * 1024
            a('buffer_load_dwordx4 %s, v2, %s, s57 offen offset:%d sc1' % (vr(R_W1 + 4 * i, 4), srd(S_WS), off))
        return f
    for i in range(24): L.append(w1(i))
    return L


def w2_base(a, dst):
    a('s_mul_i32 %s, s%d, %d' % (dst, S_J, 2 * 112))
    a('s_mul_i32 s43, s%d, 14' % S_W)
    a('s_add_u32 %s, %s, s43' % (dst, dst))
    a('s_lshl_b32 %s, %s, 10' % (dst, dst))
    a('s_add_u32 %s, %s, 0x%x' % (dst, dst, WS_W2))


def w2_slot_reg(q):
    return 224 + 4 * q if q < 8 else 96 + 4 * (q - 8)


def attn_tile(a, u, extra=()):
    c, n = u % 2, (u + 1) % 2
    a0 = a
    def a(t):
        if OPT.get('xnods') and t.startswith('ds_read'): return
        if OPT.get('xnomf') and t.startswith('v_mfma'): return
        if OPT.get('xnocv') and t.startswith('v_cvt_pk'): return
        if OPT.get('xnoexp') and t.startswith('v_exp'): return
        if OPT.get('xhalfexp') and t.startswith('v_exp') and int(t.split()[1][1:-1]) % 2: return
        a0(t)
    S = [R_S0, R_S1]
    K = lambda b: R_K + 4 * b
    V0 = lambda b: R_V0 + 4 * b
    V1 = lambda b: R_V1 + 4 * b
    ex = list(extra)
    def E(k): a('v_exp_f32 v%d, v%d' % (S[c] + k, S[c] + k))
    def X():
        if ex: ex.pop(0)()
    def CV(d, x, y):
        if OPT.get('perm'): a('v_perm_b32 v%d, v%d, v%d, s63' % (d, y, x))
        else: a('v_cvt_pk_bf16_f32 v%d, v%d, v%d' % (d, x, y))
    a('s_waitcnt lgkmcnt(0)')
    if OPT.get('sched', 1) == 0:
        E(0)
        a('ds_read_b128 %s, v%d offset:%d' % (vr(K(c), 4), R_KAD, (u + 2) * TS_))
        E(1)
        a('ds_read_b128 %s, v%d offset:%d' % (vr(V0(n), 4), R_VA0, (u + 1) * TS_))
        E(2)
        a('ds_read_b128 %s, v%d offset:%d' % (vr(V1(c), 4), R_VA1, u * TS_))
        E(3)
        a('v_mfma_f32_32x32x16_bf16 %s, %s, %s, 0' % (vr(S[n], 16), vr(K(n), 4), vr(R_Q, 4)))
        E(4); X(); E(5); X(); E(6); X(); E(7)
        for k in range(4): a('v_cvt_pk_bf16_f32 v%d, v%d, v%d' % (R_P0 + k, S[c] + 2 * k, S[c] + 2 * k + 1))
        a('v_mfma_f32_32x32x16_bf16 %s, %s, %s, %s' % (vr(R_O, 16), vr(V1(n), 4), vr(R_P1, 4), vr(R_O, 16)))
        E(8); X(); E(9); X(); E(10); X(); E(11)
        a('v_mfma_f32_32x32x16_bf16 %s, %s, %s, %s' % (vr(R_O, 16), vr(V0(c), 4), vr(R_P0, 4), vr(R_O, 16)))
        for k in range(12, 16): E(k)
        for k in range(4): a('v_cvt_pk_bf16_f32 v%d, v%d, v%d' % (R_P1 + k, S[c] + 8 + 2 * k, S[c] + 9 + 2 * k))
    else:
        a('v_mfma_f32_32x32x16_bf16 %s, %s, %s, 0' % (vr(S[n], 16), vr(K(n), 4), vr(R_Q, 4)))
        a('ds_read_b128 %s, v%d offset:%d' % (vr(K(c), 4), R_KAD, (u + 2) * TS_))
        a('ds_read_b128 %s, v%d offset:%d' % (vr(V0(n), 4), R_VA0, (u + 1) * TS_))
        a('ds_read_b128 %s, v%d offset:%d' % (vr(V1(c), 4), R_VA1, u * TS_))
        E(0); E(1); X(); E(2); E(3); X(); E(4); E(5); X(); E(6); E(7)
        a('v_mfma_f32_32x32x16_bf16 %s, %s, %s, %s' % (vr(R_O, 16), vr(V1(n), 4), vr(R_P1, 4), vr(R_O, 16)))
        for k in range(4): CV(R_P0 + k, S[c] + 2 * k, S[c] + 2 * k + 1)
        E(8); X(); E(9); X(); E(10); X(); E(11)
        a('v_mfma_f32_32x32x16_bf16 %s, %s, %s, %s' % (vr(R_O, 16), vr(V0(c), 4), vr(R_P0, 4), vr(R_O, 16)))
        for k in range(12, 16): E(k)
        for k in range(4): CV(R_P1 + k, S[c] + 8 + 2 * k, S[c] + 9 + 2 * k)
    while ex: ex.pop(0)()


def attn_advance(a):
    for r in (R_KAD, R_VA0, R_VA1):
        a('v_add_u32 v%d, 0x%x, v%d' % (r, 8 * TS_, r))


def early_dma_list(a):
    L = []
    def kv(i):
        def f():
            a('s_mov_b32 m0, s19')
            a('s_add_u32 s19, s19, %d' % (8 * TS_))
            a('buffer_load_dwordx4 v2, %s, s18 offen sc1 lds' % srd(S_WS))
            a('buffer_load_dwordx4 v2, %s, s18 offen offset:1024 sc1 lds' % srd(S_WS))
            a('s_add_u32 s18, s18, 16384')
        return f
    for i in range(1, 8): L.append(kv(i))
    def tb(k):
        def f():
            a('s_mov_b32 m0, s60')
            a('s_add_u32 s60, s60, 1024')
            a('buffer_load_dwordx4 v99, s[52:55], s57 offen lds')
            if k == 0:
                a('s_lshl_b32 s61, s56, 3')
                a('s_add_u32 s57, s57, s61')
        return f
    L += [tb(0), tb(1)]
    return L


def tb_read_list(a):
    def rd(nt):
        def f():
            a('ds_read_b64_tr_b16 %s, v%d' % (vr(104 + 4 * nt, 2), 100 + nt))
            a('ds_read_b64_tr_b16 %s, v%d offset:1024' % (vr(106 + 4 * nt, 2), 100 + nt))
        return f
    return [rd(0), rd(1)]


def tb_store_list(a):
    def st(nt):
        def f():
            a('buffer_store_dwordx4 %s, v2, %s, s58 offen sc1' % (vr(104 + 4 * nt, 4), srd(S_WS)))
            if nt == 0: a('s_add_u32 s58, s58, s59')
        return f
    return [st(0), st(1)]


def f2_publish(a):
    sk = uid('L_f2')
    a('s_cmp_lg_u32 s%d, %d' % (S_W, CTRL))
    a('s_cbranch_scc1 %s' % sk)
    a('s_lshl_b32 s18, s2, 2')
    a('s_add_u32 s18, s18, 0x%x' % WS_F2)
    flag_store(a, 's18', S_TAG, ' sc1', 96)
    a.label(sk)


def f2_count(a):
    sk = uid('L_f2n')
    a('v_mov_b32 v96, %d' % (L_BC + 16))
    a('v_mov_b32 v97, 1')
    a('s_waitcnt vmcnt(0)')
    a('s_mov_b64 exec, 1')
    a('ds_add_rtn_u32 v97, v96, v97')
    a('s_waitcnt lgkmcnt(0)')
    a('s_mov_b64 exec, -1')
    a('v_readfirstlane_b32 s18, v97')
    a('s_cmp_lg_u32 s18, 7')
    a('s_cbranch_scc1 %s' % sk)
    a('s_lshl_b32 s18, s2, 2')
    a('s_add_u32 s18, s18, 0x%x' % WS_F2)
    flag_store(a, 's18', S_TAG, ' sc1', 96)
    a.label(sk)


def fair_prio(a):
    if not OPT.get('fair'): return
    d = uid('L_fp')
    lv = {1: [(5, 3), (3, 2), (2, 1), (0, 0)], 2: [(6, 3), (5, 2), (3, 1), (0, 0)], 3: [(5, 3), (4, 2), (2, 1), (0, 0)]}[OPT['fair']]
    for (th, pr) in lv:
        a('s_setprio %d' % pr)
        if th:
            a('s_cmp_ge_u32 s62, %d' % th)
            a('s_cbranch_scc1 %s' % d)
    a.label(d)


def attention_fast(a):
    if OPT.get('fair'): a('s_setprio 3')
    if OPT.get('perm'): a('s_mov_b32 s63, 0x07060302')
    if OPT.get('prio') in (1, 2):
        a('s_cmp_lt_u32 s%d, 4' % S_W)
        a('s_cbranch_scc1 L_prio0')
        a('s_setprio 1')
        a.label('L_prio0')
    a('ds_read_b128 %s, v%d' % (vr(R_K, 4), R_KAD))
    a('ds_read_b128 %s, v%d offset:%d' % (vr(R_K + 4, 4), R_KAD, TS_))
    a('ds_read_b128 %s, v%d' % (vr(R_V0, 4), R_VA0))
    for k in range(16): a('v_mov_b32 v%d, 0' % (R_O + k))
    for k in range(4): a('v_mov_b32 v%d, 0' % (R_P1 + k))
    for k in range(4): a('v_mov_b32 v%d, 0' % (R_V1 + 4 + k))
    a('s_waitcnt lgkmcnt(2)')
    a('v_mfma_f32_32x32x16_bf16 %s, %s, %s, 0' % (vr(R_S0, 16), vr(R_K, 4), vr(R_Q, 4)))
    a.fence(12)
    E = early_dma_list(a)
    tbw = lambda: a('s_waitcnt vmcnt(8)')
    TB2 = OPT.get('tb2', 0)
    if TB2:
        ex0 = [[E[0]], [E[1]], [E[7], E[8]], [E[2]], [E[3]], [E[4]], [E[5]], [E[6]]]
        w10 = lambda: a('s_waitcnt vmcnt(10)')
        ex1 = [[w10] + tb_read_list(a), tb_store_list(a), [], [], [], [], [], []]
    else:
        ex0 = [[E[0], E[7]], [E[8], E[1]], [E[2]], [E[3]], [E[4]], [tbw] + tb_read_list(a), tb_store_list(a) + [E[5]], [E[6]]]
        ex1 = [[] for _ in range(8)]
    for u in range(8):
        if u == 6:
            stamp(a, 15)
            if TB2: a('s_waitcnt vmcnt(10)')
            a('s_barrier')
            stamp(a, 16)
        attn_tile(a, u, ex0[u])
    attn_advance(a)
    for u in range(8):
        if u == 6:
            if TB2 == 2:
                a('s_waitcnt vmcnt(2)')
                a('s_barrier')
            else:
                a('s_waitcnt vmcnt(0)')
                a('s_barrier')
                f2_publish(a)
            stamp(a, 13)
        attn_tile(a, u, ex1[u])
    if TB2 == 2: f2_count(a)
    attn_advance(a)
    a('s_mov_b32 s62, 6')
    if OPT.get('stag'):
        a('s_lshr_b32 s63, s%d, 2' % S_W)
    if OPT.get('late'):
        a('s_cmp_lt_u32 s%d, 4' % S_W)
        a('s_cselect_b32 s63, 1, 0')
        a('s_cbranch_scc1 L_attn_b')
    a('s_mov_b32 s3, 0x%x' % WS_F2)
    a.raw('.p2align 6')
    a.label('L_attn_a')
    fair_prio(a)
    f2ld = lambda: a('buffer_load_dwordx4 %s, v2, %s, s3 offen sc1' % (vr(R_WO, 4), srd(S_WS)))
    for u in range(8): attn_tile(a, u, [f2ld] if u == OPT.get('f2u', 0) else [])
    attn_advance(a)
    a('s_sub_u32 s62, s62, 1')
    stamp(a, 10)
    a('s_waitcnt vmcnt(0)')
    check256(a, R_WO)
    if OPT.get('xnof2'): a('s_branch L_attn_p')
    if OPT.get('stag'):
        a('s_cbranch_vccnz L_attn_nf')
        a('s_cmp_eq_u32 s63, 0')
        a('s_cbranch_scc1 L_attn_p')
        a('s_mov_b32 s63, 0')
        a('s_cmp_gt_u32 s62, %d' % OPT.get('lim', 3))
        a('s_cbranch_scc1 L_attn_a')
        a('s_branch L_attn_p')
        a.label('L_attn_nf')
    else:
        a('s_cbranch_vccz L_attn_p')
    a('s_cmp_gt_u32 s62, %d' % OPT.get('lim', 3))
    a('s_cbranch_scc1 L_attn_a')
    poll256(a, WS_F2, R_WO)
    a.label('L_attn_p')
    stamp(a, 30)
    if OPT.get('prio') == 2: a('s_setprio 0')
    fair_prio(a)
    L = prefetch_list(a)
    per = [L[(len(L) * u) // 8:(len(L) * (u + 1)) // 8] for u in range(8)]
    a.fence(2)
    for u in range(8): attn_tile(a, u, per[u])
    attn_advance(a)
    a('s_sub_u32 s62, s62, 1')
    a.raw('.p2align 6')
    a.label('L_attn_b')
    fair_prio(a)
    for u in range(8): attn_tile(a, u)
    attn_advance(a)
    a('s_sub_u32 s62, s62, 1')
    a('s_cmp_lg_u32 s62, 0')
    a('s_cbranch_scc1 L_attn_b')
    if OPT.get('prio') or OPT.get('fair'): a('s_setprio 0')
    a('s_waitcnt lgkmcnt(0)')
    a('v_mfma_f32_32x32x16_bf16 %s, %s, %s, %s' % (vr(R_O, 16), vr(R_V1 + 4, 4), vr(R_P1, 4), vr(R_O, 16)))


def attention_slow(a):
    Q, O, P = R_Q, R_O, R_P0
    S = R_S0; K = R_K; V = R_V0
    M, MN, AL, T = R_S1, R_S1 + 1, R_S1 + 2, R_S1 + 3
    for f in early_dma_list(a): f()
    a('s_waitcnt vmcnt(0)')
    for f in tb_read_list(a): f()
    a('s_waitcnt lgkmcnt(0)')
    for f in tb_store_list(a): f()
    a('s_barrier')
    a('s_waitcnt vmcnt(0)')
    a('s_barrier')
    if OPT.get('tb2') == 2: f2_count(a)
    else: f2_publish(a)
    for k in range(16): a('v_mov_b32 v%d, 0' % (O + k))
    a('v_mov_b32 v%d, 0xff7fffff' % M)
    a('s_mov_b32 s62, 64')
    a.fence(4)
    a.label('L_attn_slow')
    a('ds_read_b128 %s, v%d' % (vr(K, 4), R_KAD))
    a('ds_read_b128 %s, v%d' % (vr(V, 4), R_VA0))
    a('ds_read_b128 %s, v%d' % (vr(V + 4, 4), R_VA1))
    for r in (R_KAD, R_VA0, R_VA1):
        a('v_add_u32 v%d, 0x%x, v%d' % (r, TS_, r))
    a('s_waitcnt lgkmcnt(0)')
    a('v_mfma_f32_32x32x16_bf16 %s, %s, %s, 0' % (vr(S, 16), vr(K, 4), vr(Q, 4)))
    a('v_max_f32 v%d, v%d, v%d' % (MN, S, S + 1))
    for k in range(2, 16, 2):
        a('v_max3_f32 v%d, v%d, v%d, v%d' % (MN, MN, S + k, S + k + 1))
    a('v_mov_b32 v%d, v%d' % (T, MN))
    a('v_permlane32_swap_b32 v%d, v%d' % (MN, T))
    a('v_max3_f32 v%d, v%d, v%d, v%d' % (MN, MN, T, M))
    a('v_sub_f32 v%d, v%d, v%d' % (AL, M, MN))
    a('v_exp_f32 v%d, v%d' % (AL, AL))
    a('v_mov_b32 v%d, v%d' % (M, MN))
    for k in range(16):
        a('v_sub_f32 v%d, v%d, v%d' % (S + k, S + k, MN))
    for k in range(16):
        a('v_exp_f32 v%d, v%d' % (S + k, S + k))
    for k in range(16):
        a('v_mul_f32 v%d, v%d, v%d' % (O + k, O + k, AL))
    for k in range(8):
        a('v_cvt_pk_bf16_f32 v%d, v%d, v%d' % (P + k, S + 2 * k, S + 2 * k + 1))
    a('v_mfma_f32_32x32x16_bf16 %s, %s, %s, %s' % (vr(O, 16), vr(V, 4), vr(P, 4), vr(O, 16)))
    a('v_mfma_f32_32x32x16_bf16 %s, %s, %s, %s' % (vr(O, 16), vr(V + 4, 4), vr(P + 4, 4), vr(O, 16)))
    a('s_sub_u32 s62, s62, 1')
    a('s_cmp_lg_u32 s62, 0')
    a('s_nop 7'); a('s_nop 7')
    a('s_cbranch_scc1 L_attn_slow')
    poll256(a, WS_F2, R_WO)
    for f in prefetch_list(a): f()


def phase2(a, force_slow=False):
    a('s_and_b32 s48, s%d, 1' % S_W)
    a('s_bfe_u32 s49, s%d, 0x10001' % S_W)
    a('s_lshr_b32 s50, s%d, 2' % S_W)
    a('v_mov_b32 v8, %d' % L_BC)
    a('ds_read_b64 v[10:11], v8')
    a('s_cmp_eq_u32 s50, 0')
    a('s_cbranch_scc1 L_q_have')
    a('s_and_b32 s3, s%d, 3' % S_W)
    a('s_lshl_b32 s3, s3, 10')
    a('v_add_u32 v9, s3, v2')
    a('ds_read_b128 %s, v9 offset:%d' % (vr(R_Q, 4), L_QX))
    a.label('L_q_have')
    a.fence(2)
    a('v_mov_b32 v16, 0x3f803f80')
    for k in range(1, 4): a('v_mov_b32 v%d, v16' % (16 + k))
    a('s_movk_i32 s3, %d' % TS_)
    a('v_mul_lo_u32 v20, v1, s3')
    a('v_add_u32 v20, %d, v20' % (KVB + 2048))
    a('ds_write_b128 v20, v[16:19]')
    a('v_lshrrev_b32 v8, 5, v1')
    a('v_and_b32 v9, 15, v1')
    a('v_lshl_add_u32 v8, v8, 4, v9')
    a('v_lshlrev_b32 v8, 4, v8')
    a('v_add_u32 v8, %d, v8' % (KVB + 1024))
    a('v_add_u32 v9, 512, v8')
    a('v_and_b32 v13, 16, v1')
    a('v_cmp_eq_u32 vcc, 0, v13')
    a('v_mov_b32 v13, %d' % (KVB + 2048))
    a('v_cndmask_b32 v%d, v13, v8, vcc' % R_VA0)
    a('v_cndmask_b32 v%d, v13, v9, vcc' % R_VA1)
    a('v_add_u32 v%d, %d, v2' % (R_KAD, KVB))
    a('v_and_b32 v13, 31, v1')
    a('v_lshrrev_b32 v14, 5, v1')
    a('v_lshlrev_b32 v13, 10, v13')
    a('v_lshl_add_u32 v%d, v14, 4, v13' % R_ROW)
    swz_off(a, 96, 97)
    a('v_mul_lo_u32 v99, v96, s56')
    a('v_add_u32 v99, v99, v97')
    a('v_bfe_u32 v21, v1, 4, 1')
    a('v_bfe_u32 v22, v1, 2, 2')
    a('v_and_b32 v23, 3, v1')
    a('v_lshrrev_b32 v24, 1, v23')
    a('v_lshl_add_u32 v24, v21, 1, v24')
    a('v_lshrrev_b32 v25, 1, v22')
    a('v_lshlrev_b32 v25, 2, v25')
    a('v_xor_b32 v24, v24, v25')
    a('v_lshlrev_b32 v24, 4, v24')
    a('v_and_b32 v23, 1, v23')
    a('v_lshl_add_u32 v24, v23, 3, v24')
    a('v_lshl_add_u32 v25, v14, 2, v22')
    a('v_lshl_add_u32 v25, v25, 7, v24')
    a('v_add_u32 v100, s60, v25')
    a('v_xor_b32 v101, 64, v100')
    a('s_lshl_b32 s18, s%d, 11' % S_W)
    a('s_add_u32 s18, s18, 16384')
    a('s_mul_i32 s19, s%d, %d' % (S_W, TS_))
    a('s_add_u32 s19, s19, %d' % (KVB + 8 * TS_))
    a('s_waitcnt lgkmcnt(1)')
    a('v_readfirstlane_b32 s%d, v11' % S_FAST)
    a('v_dot2_f32_bf16 v14, v%d, v%d, 0' % (R_Q, R_Q))
    for k in range(1, 4): a('v_dot2_f32_bf16 v14, v%d, v%d, v14' % (R_Q + k, R_Q + k))
    a('v_mov_b32 v13, v14')
    a('v_permlane32_swap_b32 v14, v13')
    a('v_add_f32 v14, v14, v13')
    a('v_mul_f32 v14, v14, v10')
    a('s_mov_b32 s3, 0x%x' % f2u(-1.0 if force_slow else LIMIT2))
    a('v_cmp_nle_f32 vcc, v14, s3')
    a('s_waitcnt lgkmcnt(0)')
    stamp(a, 14)
    if OPT.get('late'): a('s_mov_b32 s63, 0')
    a('s_cbranch_vccnz L_attn_fb')
    attention_fast(a)
    a('s_branch L_attn_fin')
    a.label('L_attn_fb')
    a.fence(4)
    attention_slow(a)
    a.label('L_attn_fin')
    a.fence(12)
    stamp(a, 17)
    O = R_O
    a('v_rcp_f32 v8, v%d' % (O + 8))
    for k in range(8): a('v_mul_f32 v%d, v%d, v8' % (O + k, O + k))
    for k in range(4): a('v_cvt_pk_bf16_f32 v%d, v%d, v%d' % (O + k, O + 2 * k, O + 2 * k + 1))
    G.q_frag_off(a, WS_O, 's48', 's49', 's50', 's3')
    both(a, lambda m: a('buffer_store_dwordx4 %s, v2, %s, s3 offen%s' % (vr(O, 4), srd(S_WS), m)))
    a('s_lshl_b32 s3, s%d, 1' % S_RB)
    a('s_add_u32 s3, s3, s49')
    a('s_lshl_b32 s3, s3, 3')
    a('s_add_u32 s3, s3, s%d' % S_J)
    a('s_lshl_b32 s3, s3, 1')
    a('s_add_u32 s3, s3, s50')
    a('s_lshl_b32 s3, s3, 1')
    a('s_add_u32 s3, s3, s48')
    a('s_lshl_b32 s3, s3, 2')
    a('s_add_u32 s3, s3, 0x%x' % WS_F3)
    a('s_waitcnt vmcnt(0)')
    both(a, lambda m: flag_store(a, 's3', S_TAG, m, 8))
    stamp(a, 18)
    if OPT.get('late'):
        a('s_cmp_eq_u32 s63, 0')
        a('s_cbranch_scc1 L_late_skip')
        poll256(a, WS_F2, R_WO)
        for f in prefetch_list(a): f()
        a('s_waitcnt vmcnt(0)')
        a.label('L_late_skip')


def colsum(a, ks_list, regf, first):
    for ks in ks_list:
        for k in range(4):
            c = 80 + k
            a('v_dot2_f32_bf16 v%d, v%d, s44, %s' % (c, regf(ks) + k, '0' if (first and ks == ks_list[0]) else 'v%d' % c))


def w1reg(ks):
    return R_W1 + 4 * ks if ks < 24 else 192 + 4 * (ks - 24)


def phase3(a):
    A, B = R_WO, 8
    D = [40, 64]
    a('s_and_b32 s48, s%d, 1' % S_W)
    a('s_lshr_b32 s49, s%d, 1' % S_W)
    a('s_mov_b32 s44, 0x3f803f80')
    a('s_cmp_eq_u32 s%d, 7' % S_W)
    a('s_cbranch_scc1 L_cs_skip')
    colsum(a, list(range(24)), w1reg, True)
    a.label('L_cs_skip')
    a('s_lshl_b32 s3, s%d, 1' % S_RB)
    a('s_add_u32 s3, s3, s48')
    a('s_lshl_b32 s50, s3, 5')
    a('s_lshl_b32 s3, s49, 3')
    a('s_add_u32 s3, s3, s50')
    a('s_lshl_b32 s18, s3, 10')
    a('s_add_u32 s18, s18, 0x%x' % WS_O)
    a('s_lshl_b32 s3, s3, 2')
    a('s_add_u32 s3, s3, 0x%x' % WS_F3)
    poll8(a, 's3', 72)
    stamp(a, 19)
    for s in range(8):
        if s == 4: a('s_add_u32 s18, s18, 4096')
        a('buffer_load_dwordx4 %s, v2, %s, s18 offen offset:%d sc1' % (vr(B + 4 * s, 4), srd(S_WS), (s % 4) * 1024))
    for s in range(8):
        a('s_waitcnt vmcnt(%d)' % (7 - s))
        for nt in range(2):
            a('v_mfma_f32_32x32x16_bf16 %s, %s, %s, %s' % (vr(D[nt], 16), vr(A + 32 * nt + 4 * s, 4), vr(B + 4 * s, 4),
                                                          '0' if s == 0 else vr(D[nt], 16)))
    stamp(a, 20)
    a('s_barrier')
    a('s_lshl_b32 s3, s48, 15')
    a('s_lshl_b32 s43, s49, 11')
    a('s_add_u32 s3, s3, s43')
    a('v_add_u32 v84, s3, v2')
    a.fence(8)
    for q in range(4):
        r = D[q // 2] + 8 * (q % 2)
        a('s_cmp_eq_u32 s49, %d' % q)
        a('s_cbranch_scc1 L_o_skip%d' % q)
        a('ds_write_b128 v84, %s offset:%d' % (vr(r, 4), q * 8192))
        a('ds_write_b128 v84, %s offset:%d' % (vr(r + 4, 4), q * 8192 + 1024))
        a('s_branch L_o_nxt%d' % q)
        a.label('L_o_skip%d' % q)
        for k in range(8): a('v_mov_b32 v%d, v%d' % (56 + k, r + k))
        a.label('L_o_nxt%d' % q)
    a('s_waitcnt lgkmcnt(0)')
    a('s_barrier')
    a('s_lshl_b32 s3, s48, 15')
    a('s_lshl_b32 s43, s49, 13')
    a('s_add_u32 s3, s3, s43')
    for d in range(1, 4):
        a('s_add_u32 s43, s49, %d' % d)
        a('s_and_b32 s43, s43, 3')
        a('s_lshl_b32 s43, s43, 11')
        a('s_add_u32 s43, s43, s3')
        a('v_add_u32 v%d, s43, v2' % (83 + d))
        a('ds_read_b128 %s, v%d' % (vr(8 + 8 * (d - 1), 4), 83 + d))
        a('ds_read_b128 %s, v%d offset:1024' % (vr(12 + 8 * (d - 1), 4), 83 + d))
    X = R_XRES
    a('v_permlane32_swap_b32 v%d, v%d' % (X, X + 2))
    a('v_permlane32_swap_b32 v%d, v%d' % (X + 1, X + 3))
    for k in range(4):
        a('v_lshlrev_b32 v%d, 16, v%d' % (32 + 2 * k, X + k))
        a('v_and_b32 v%d, 0xffff0000, v%d' % (33 + 2 * k, X + k))
    a('s_waitcnt lgkmcnt(0)')
    for k in range(8):
        a('v_add_f32 v%d, v%d, v%d' % (56 + k, 56 + k, 8 + k))
        a('v_add_f32 v%d, v%d, v%d' % (16 + k, 16 + k, 24 + k))
    for k in range(8):
        a('v_add_f32 v%d, v%d, v%d' % (56 + k, 56 + k, 16 + k))
    for k in range(8):
        a('v_add_f32 v%d, v%d, v%d' % (56 + k, 56 + k, 32 + k))
    for k in range(4):
        a('v_cvt_pk_bf16_f32 v%d, v%d, v%d' % (4 + k, 56 + 2 * k, 57 + 2 * k))
    a('s_lshl_b32 s3, s%d, 2' % S_J)
    a('s_add_u32 s3, s3, s49')
    a('s_add_u32 s3, s3, s50')
    a('s_lshl_b32 s3, s3, 10')
    a('s_add_u32 s3, s3, 0x%x' % WS_H)
    both(a, lambda m: a('buffer_store_dwordx4 v[4:7], v2, %s, s3 offen%s' % (srd(S_WS), m)))
    a('s_lshl_b32 s3, s%d, 3' % S_RB)
    a('s_add_u32 s3, s3, s%d' % S_J)
    a('s_lshl_b32 s3, s3, 3')
    a('s_add_u32 s3, s3, s%d' % S_W)
    a('s_lshl_b32 s3, s3, 2')
    a('s_add_u32 s3, s3, 0x%x' % WS_F4)
    a('s_waitcnt vmcnt(0)')
    both(a, lambda m: flag_store(a, 's3', S_TAG, m, 72))
    stamp(a, 21)


L_H, L_ACT, L_ST, L_CS = 65536, 131072, 159744, 160256


def phase45(a):
    D1 = 32
    BB = 8
    G1 = OPT.get('g1', 0)
    w2_base(a, 's55')
    a('s_add_u32 s56, s55, %d' % (112 * 1024))
    def w1rest():
        a('s_add_u32 s54, s54, %d' % (24 * 1024))
        for ks in range(24, 32):
            if ks == 28: a('s_add_u32 s54, s54, 4096')
            a('buffer_load_dwordx4 %s, v2, %s, s54 offen offset:%d sc1' % (vr(w1reg(ks), 4), srd(S_WS), (ks % 4) * 1024))
        a('s_mul_i32 s48, s%d, 7' % S_J)
        a('s_add_u32 s48, s48, s%d' % S_W)
        a('v_lshrrev_b32 v3, 5, v1')
        a('v_lshlrev_b32 v3, 3, v3')
        a('s_lshl_b32 s50, s48, 6')
        for q in range(4):
            a('buffer_load_dwordx2 %s, v3, %s, s50 offen offset:%d' % (vr(64 + 2 * q, 2), srd(S_B1), 16 * q))
    def w2load(q):
        nt, s = q // 14, q % 14
        base = 's55' if nt == 0 else 's56'
        hi = (s // 4) * 4096
        if hi:
            a('s_add_u32 s57, %s, %d' % (base, hi)); base = 's57'
        a('buffer_load_dwordx4 %s, v2, %s, %s offen offset:%d sc1' % (vr(w2_slot_reg(q), 4), srd(S_WS), base, (s % 4) * 1024))
    if G1:
        a('s_cmp_eq_u32 s%d, 7' % S_W)
        a('s_cbranch_scc1 L_g1_now1')
        w1rest()
        a.label('L_g1_now1')
    a('s_lshl_b32 s3, s%d, 3' % S_RB)
    a('s_add_u32 s3, s3, s%d' % S_W)
    a('s_lshl_b32 s3, s3, 5')
    a('s_add_u32 s3, s3, 0x%x' % WS_F4)
    poll8(a, 's3', 72)
    stamp(a, 22)
    a('s_lshl_b32 s43, s%d, 16' % S_RB)
    a('s_lshl_b32 s3, s%d, 12' % S_W)
    a('s_add_u32 s43, s43, s3')
    a('s_add_u32 s43, s43, 0x%x' % WS_H)
    a('s_add_u32 s3, s3, %d' % L_H)
    for mt in range(2):
        a('s_mov_b32 m0, s3')
        a('s_nop 0')
        for k in range(4):
            a('buffer_load_dwordx4 v2, %s, s43 offen offset:%d sc1 lds' % (srd(S_WS), k * 1024))
        if mt == 0:
            a('s_add_u32 s3, s3, 32768'); a('s_add_u32 s43, s43, 32768')
    a('s_cmp_eq_u32 s%d, 7' % S_W)
    a('s_cbranch_scc1 L_g1_stats')
    if G1:
        a('s_waitcnt vmcnt(0)')
    else:
        w1rest()
        for q in range(8): w2load(q)
        a('s_waitcnt vmcnt(20)')
    stamp(a, 23)
    a('s_barrier')
    seq = [(ks, mt) for ks in range(32) for mt in range(2)]
    NB = 6
    def bload(i):
        ks, mt = seq[i]
        a('ds_read_b128 %s, v92 offset:%d' % (vr(BB + 4 * (i % NB), 4), (mt * 32 + ks) * 1024))
    a('v_add_u32 v92, %d, v2' % L_H)
    PF = 5
    for i in range(PF): bload(i)
    nw2 = 0
    for i, (ks, mt) in enumerate(seq):
        if i + PF < len(seq): bload(i + PF)
        rem = min(len(seq), i + PF + 1) - (i + 1)
        if ks == 24 and mt == 0 and not G1:
            a('s_waitcnt vmcnt(%d) lgkmcnt(%d)' % (12 + nw2, rem))
        else:
            a('s_waitcnt lgkmcnt(%d)' % rem)
        a('v_mfma_f32_32x32x16_bf16 %s, %s, %s, %s' % (vr(D1 + 16 * mt, 16), vr(w1reg(ks), 4), vr(BB + 4 * (i % NB), 4),
                                                      '0' if ks == 0 else vr(D1 + 16 * mt, 16)))
        if G1:
            if mt == 1 and ks < 28:
                order = list(range(8)) + list(range(8, 28))
                w2load(order[ks])
        elif mt == 1 and 1 <= ks <= 20:
            w2load(8 + ks - 1); nw2 += 1
        if mt == 1 and ks >= 25:
            colsum(a, [ks - 1], w1reg, False)
    colsum(a, [31], w1reg, False)
    a('v_add_f32 v80, v80, v81')
    a('v_add_f32 v82, v82, v83')
    a('v_add_f32 v80, v80, v82')
    a('v_mov_b32 v81, v80')
    a('v_permlane32_swap_b32 v80, v81')
    a('v_add_f32 v80, v80, v81')
    a('s_lshl_b32 s3, s%d, 7' % S_W)
    a('s_add_u32 s3, s3, %d' % L_CS)
    a('v_and_b32 v93, 31, v1')
    a('v_lshlrev_b32 v93, 2, v93')
    a('v_add_u32 v93, s3, v93')
    a('ds_write_b32 v93, v80')
    a('v_lshrrev_b32 v93, 5, v1')
    a('v_lshlrev_b32 v93, 4, v93')
    a('v_add_u32 v93, s3, v93')
    a('s_waitcnt lgkmcnt(0)')
    for q in range(4):
        a('ds_read_b128 %s, v93 offset:%d' % (vr(72 + 4 * q, 4), 32 * q))
    a('s_branch L_g1_epi')
    a.label('L_g1_stats')
    a.fence(4)
    if G1:
        a('s_waitcnt vmcnt(0)')
        a('s_barrier')
        for q in range(8): w2load(q)
    else:
        for q in range(8): w2load(q)
        a('s_waitcnt vmcnt(8)')
        a('s_barrier')
    a('v_add_u32 v92, %d, v2' % L_H)
    for mt in range(2):
        SA, QA = 64 + 8 * mt, 68 + 8 * mt
        for ks0 in range(0, 32, 4):
            for u in range(4):
                a('ds_read_b128 %s, v92 offset:%d' % (vr(BB + 4 * u, 4), (mt * 32 + ks0 + u) * 1024))
            for u in range(4):
                a('s_waitcnt lgkmcnt(%d)' % (3 - u))
                for k in range(4):
                    first = (ks0 == 0 and u == 0)
                    a('v_dot2_f32_bf16 v%d, v%d, s44, %s' % (SA + k, BB + 4 * u + k, '0' if first else 'v%d' % (SA + k)))
                    a('v_dot2_f32_bf16 v%d, v%d, v%d, %s' % (QA + k, BB + 4 * u + k, BB + 4 * u + k, '0' if first else 'v%d' % (QA + k)))
        for base in (SA, QA):
            a('v_add_f32 v%d, v%d, v%d' % (base, base, base + 1))
            a('v_add_f32 v%d, v%d, v%d' % (base + 2, base + 2, base + 3))
            a('v_add_f32 v%d, v%d, v%d' % (base, base, base + 2))
    for (x, y) in ((64, 72), (68, 76)):
        a('v_permlane32_swap_b32 v%d, v%d' % (x, y))
        a('v_add_f32 v%d, v%d, v%d' % (x, x, y))
    a('s_mov_b32 s45, 0x%x' % f2u(1.0 / 512))
    a('s_mov_b32 s46, 0x%x' % f2u(1e-5))
    a('v_mul_f32 v64, s45, v64')
    a('v_mul_f32 v65, v64, v64')
    a('v_fma_f32 v68, v68, s45, -v65')
    a('v_add_f32 v68, s46, v68')
    a('v_rsq_f32 v68, v68')
    a('s_mov_b32 s45, 0x%x' % f2u(LOG2E))
    a('v_mul_f32 v68, s45, v68')
    a('v_mul_f32_e64 v69, -v64, v68')
    a('v_lshlrev_b32 v93, 3, v1')
    a('v_add_u32 v93, %d, v93' % L_ST)
    a('ds_write_b64 v93, v[68:69]')
    if OPT.get('wb'):
        if OPT['wb'] == 1:
            a('s_cmp_ge_u32 s2, 8')
            a('s_cbranch_scc1 L_g1_epi')
        a('buffer_wbl2 sc1')
    a.label('L_g1_epi')
    a.fence(12)
    stamp(a, 24)
    a('s_waitcnt lgkmcnt(0)')
    a('s_barrier')
    a('s_cmp_eq_u32 s%d, 7' % S_W)
    a('s_cbranch_scc1 L_g1_done')
    a('v_and_b32 v88, 31, v1')
    a('v_lshlrev_b32 v88, 3, v88')
    a('v_add_u32 v88, %d, v88' % L_ST)
    a('ds_read_b64 v[90:91], v88 offset:256')
    a('ds_read_b64 v[88:89], v88')
    a('s_waitcnt vmcnt(28)')
    for q in range(4):
        for e in range(2):
            a('v_lshlrev_b32 v%d, 16, v%d' % (8 + 4 * q + 2 * e, 64 + 2 * q + e))
            a('v_and_b32 v%d, 0xffff0000, v%d' % (8 + 4 * q + 2 * e + 1, 64 + 2 * q + e))
    a('s_mov_b32 s58, 0x%x' % f2u(LOG2E))
    a('s_mov_b32 s59, s58')
    for k in range(8):
        a('v_pk_mul_f32 v[%d:%d], v[%d:%d], s[58:59]' % (8 + 2 * k, 9 + 2 * k, 8 + 2 * k, 9 + 2 * k))
    a('s_lshl_b32 s3, s%d, 3' % S_RB)
    a('s_add_u32 s3, s3, s%d' % S_J)
    a('s_mul_i32 s3, s3, 28')
    a('s_lshl_b32 s43, s%d, 1' % S_W)
    a('s_add_u32 s3, s3, s43')
    a('s_lshl_b32 s3, s3, 10')
    a('s_add_u32 s48, s3, 0x%x' % WS_P)
    a('s_add_u32 s49, s48, %d' % (14 * 1024))
    a('s_mov_b32 s60, 0.5'); a('s_mov_b32 s61, 0.5')
    a('s_waitcnt lgkmcnt(0)')
    P2 = lambda r: 'v[%d:%d]' % (r, r + 1)
    for mt in range(2):
        RS = 88 + 2 * mt
        for g in range(0, 16, 8):
            d = D1 + 16 * mt + g
            T, U = 24, 64
            for k in range(4):
                a('v_pk_fma_f32 %s, %s, %s, %s op_sel:[0,1,0] op_sel_hi:[1,1,1]' % (P2(T + 2 * k), P2(72 + g + 2 * k), P2(RS), P2(8 + g + 2 * k)))
            for k in range(4):
                a('v_pk_fma_f32 %s, %s, %s, %s op_sel:[0,0,0] op_sel_hi:[1,0,1]' % (P2(d + 2 * k), P2(d + 2 * k), P2(RS), P2(T + 2 * k)))
            for k in range(8): a('v_exp_f32 v%d, v%d' % (T + k, d + k))
            for k in range(4):
                a('v_pk_fma_f32 %s, %s, s[60:61], 1.0 op_sel_hi:[1,1,0]' % (P2(U + 2 * k), P2(T + 2 * k)))
            for k in range(4):
                a('v_pk_fma_f32 %s, %s, %s, 1.0 op_sel_hi:[1,1,0]' % (P2(U + 2 * k), P2(T + 2 * k), P2(U + 2 * k)))
            for k in range(8): a('v_rcp_f32 v%d, v%d' % (U + k, U + k))
            for k in range(4):
                a('v_pk_fma_f32 %s, %s, %s, %s neg_lo:[1,0,0] neg_hi:[1,0,0]' % (P2(d + 2 * k), P2(d + 2 * k), P2(U + 2 * k), P2(d + 2 * k)))
            TO = 72 + 8 * mt + 4 * (g // 8)
            TO = 176 + 8 * mt + 4 * (g // 8)
            for k in range(4):
                a('v_cvt_pk_bf16_f32 v%d, v%d, v%d' % (TO + k, d + 2 * k, d + 2 * k + 1))
            st = lambda m, TO=TO, mt=mt, g=g: a('buffer_store_dwordx4 %s, v2, %s, s%d offen offset:%d%s' % (vr(TO, 4), srd(S_WS), 48 + mt, (g // 8) * 1024, m))
            if OPT.get('asc1') == 2: both(a, lambda m: st(m + ' nt'))
            elif OPT.get('asc1') == 3: st(' sc1 nt')
            elif OPT.get('asc1') == 4: both(a, lambda m: st(' sc1' if m else ' sc0'))
            elif OPT.get('asc1'): st(' sc1')
            else: both(a, st)
    a.label('L_g1_done')
    a.fence(4)
    stamp(a, 25)
    a('s_lshl_b32 s3, s%d, 3' % S_RB)
    a('s_add_u32 s3, s3, s%d' % S_J)
    a('s_lshl_b32 s3, s3, 3')
    a('s_add_u32 s3, s3, s%d' % S_W)
    a('s_lshl_b32 s3, s3, 2')
    a('s_add_u32 s3, s3, 0x%x' % WS_F5)
    fm = lambda f: both(a, f)
    if OPT.get('split'):
        a('s_waitcnt vmcnt(2)')
        fm(lambda m: flag_store(a, 's3', S_TAG, m, 72))
        a('s_add_u32 s3, s3, 0x%x' % (WS_F5B - WS_F5))
        a('s_waitcnt vmcnt(1)')
        fm(lambda m: flag_store(a, 's3', S_TAG, m, 72))
    else:
        a('s_waitcnt vmcnt(0)')
        both(a, lambda m: flag_store(a, 's3', S_TAG, m, 72))
    stamp(a, 26)
    a('s_lshl_b32 s3, s%d, 3' % S_RB)
    a('s_add_u32 s3, s3, s%d' % S_W)
    a('s_mul_i32 s18, s3, %d' % (28 * 1024))
    a('s_add_u32 s18, s18, 0x%x' % WS_P)
    a('s_add_u32 s19, s18, %d' % (14 * 1024))
    a('s_lshl_b32 s3, s3, 5')
    a('s_add_u32 s3, s3, 0x%x' % WS_F5)
    poll8(a, 's3', 72)
    stamp(a, 27)
    D2, B2, NB2 = 8, 176, OPT.get('nb2', 12)
    b2r = lambda k: (B2 + 4 * k) if k < 12 else (72 + 4 * (k - 12))
    assert NB2 <= 18
    seq = [(s_, mt) for s_ in range(14) for mt in range(2)]
    if OPT.get('split'): seq = [(s_, mt) for mt in range(2) for s_ in range(14)]
    def bload2(i):
        s_, mt = seq[i]
        base = 18 + mt
        if s_ in (4, 8, 12): a('s_add_u32 s%d, s%d, 4096' % (base, base))
        a('buffer_load_dwordx4 %s, v2, %s, s%d offen offset:%d sc1' % (vr(b2r(i % NB2), 4), srd(S_WS), base, (s_ % 4) * 1024))
    if OPT.get('split'): a('s_add_u32 s50, s3, 0x%x' % (WS_F5B - WS_F5))
    for i in range(NB2): bload2(i)
    if OPT.get('split'): poll8(a, 's50', 72)
    W2B = OPT.get('wb2', 0)
    for i, (s_, mt) in enumerate(seq):
        issued = min(len(seq), i + NB2)
        if W2B and i == len(seq) - NB2:
            lw = uid('L_wb2')
            a('s_cmp_lg_u32 s%d, %d' % (S_W, 7 if W2B != 3 else 0))
            a('s_cbranch_scc1 %s' % lw)
            if W2B in (1, 3):
                a('s_cmp_ge_u32 s2, 8')
            else:
                a('s_cmp_lg_u32 s%d, 0' % S_J)
            a('s_cbranch_scc1 %s' % lw)
            a('buffer_wbl2 sc1')
            for i2 in range(i, len(seq)):
                s2_, mt2 = seq[i2]
                a('s_waitcnt vmcnt(%d)' % (len(seq) - (i2 + 1) + 1))
                for nt in range(2):
                    acc = D2 + 16 * (2 * nt + mt2)
                    a('v_mfma_f32_32x32x16_bf16 %s, %s, %s, %s' % (vr(acc, 16), vr(w2_slot_reg(nt * 14 + s2_), 4), vr(b2r(i2 % NB2), 4), vr(acc, 16)))
            a('s_branch L_g2_done')
            a.label(lw)
        a('s_waitcnt vmcnt(%d)' % (issued - (i + 1)))
        for nt in range(2):
            acc = D2 + 16 * (2 * nt + mt)
            a('v_mfma_f32_32x32x16_bf16 %s, %s, %s, %s' % (vr(acc, 16), vr(w2_slot_reg(nt * 14 + s_), 4), vr(b2r(i % NB2), 4),
                                                          '0' if s_ == 0 else vr(acc, 16)))
        if i + NB2 < len(seq): bload2(i + NB2)
    a.label('L_g2_done')
    a.fence(2)
    stamp(a, 28)
    a('s_lshr_b32 s48, s%d, 2' % S_W)
    a('s_lshl_b32 s48, s48, 2')
    a('s_and_b32 s49, s%d, 1' % S_W)
    a('s_lshl_b32 s49, s49, 1')
    a('s_bfe_u32 s50, s%d, 0x10001' % S_W)
    a('s_add_u32 s48, s48, s49')
    a('s_add_u32 s48, s48, s50')
    a('s_lshl_b32 s3, s%d, 11' % S_W)
    a('v_add_u32 v72, s3, v2')
    a('v_add_u32 v73, 0x10000, v72')
    a.fence(12)
    for p_ in range(8):
        nt, mt, hf = p_ >> 2, (p_ >> 1) & 1, p_ & 1
        r = D2 + 16 * (2 * nt + mt) + 8 * hf
        lo, ln = uid('L_own'), uid('L_nx')
        a('s_cmp_eq_u32 s48, %d' % p_)
        a('s_cbranch_scc1 %s' % lo)
        vb, off = (72, p_ * 16384) if p_ < 4 else (73, (p_ - 4) * 16384)
        a('ds_write_b128 v%d, %s offset:%d' % (vb, vr(r, 4), off))
        a('ds_write_b128 v%d, %s offset:%d' % (vb, vr(r + 4, 4), off + 1024))
        a('s_branch %s' % ln)
        a.label(lo)
        for k in range(8): a('v_mov_b32 v%d, v%d' % (80 + k, r + k))
        a.label(ln)
    a('s_lshl_b32 s3, s48, 14')
    a('v_add_u32 v74, s3, v2')
    for k in range(4):
        a('v_lshlrev_b32 v%d, 16, v%d' % (88 + 2 * k, 4 + k))
        a('v_and_b32 v%d, 0xffff0000, v%d' % (89 + 2 * k, 4 + k))
    a('s_waitcnt lgkmcnt(0)')
    a('s_barrier')
    stamp(a, 29)
    for d in range(1, 8):
        a('s_add_u32 s3, s%d, %d' % (S_W, d))
        a('s_and_b32 s3, s3, 7')
        a('s_lshl_b32 s3, s3, 11')
        a('v_add_u32 v75, s3, v74')
        a('ds_read_b128 %s, v75' % vr(8 + 8 * (d - 1), 4))
        a('ds_read_b128 %s, v75 offset:1024' % vr(12 + 8 * (d - 1), 4))
    P2 = lambda r: 'v[%d:%d]' % (r, r + 1)
    for d in range(1, 8):
        a('s_waitcnt lgkmcnt(%d)' % (2 * (7 - d)))
        for k in range(4):
            a('v_pk_add_f32 %s, %s, %s' % (P2(80 + 2 * k), P2(80 + 2 * k), P2(8 + 8 * (d - 1) + 2 * k)))
    a('s_mov_b32 s3, 0x%x' % f2u(1.0 / LOG2E))
    for k in range(8): a('v_fma_f32 v%d, v%d, s3, v%d' % (80 + k, 80 + k, 88 + k))
    for k in range(4): a('v_cvt_pk_bf16_f32 v%d, v%d, v%d' % (8 + k, 80 + 2 * k, 81 + 2 * k))
    a('v_permlane32_swap_b32 v8, v10')
    a('v_permlane32_swap_b32 v9, v11')
    a('v_and_b32 v13, 31, v1')
    a('v_lshrrev_b32 v14, 5, v1')
    a('v_lshlrev_b32 v13, 10, v13')
    a('v_lshl_add_u32 v13, v14, 4, v13')
    a('buffer_store_dwordx4 v[8:11], v13, %s, s53 offen%s' % (srd(S_OUT), {0: '', 1: ' sc1', 2: ' nt', 3: ' sc1 nt'}[OPT.get('osc1', 0)]))
    a('s_cmp_lg_u32 s2, 0')
    a('s_cbranch_scc1 L_ep_done')
    a('s_cmp_lg_u32 s%d, 0' % S_W)
    a('s_cbranch_scc1 L_ep_done')
    a('s_mov_b32 s3, 0x%x' % WS_EPOCH)
    flag_store(a, 's3', S_E1, ' sc1', 72)
    a.label('L_ep_done')


def gen_fused(force_slow=False):
    n = NAME + '_kernel'
    text = HEADER + '; @launch grid=(256,1,1) block=(512,1,1) lds=163840\n'
    text += '.amdgcn_target "amdgcn-amd-amdhsa--gfx950"\n.text\n'
    a = Asm()
    end = 'L_end'
    setup(a, end)
    if STAMPS: a('v_mov_b32 v%d, 0' % STAMP_V)
    stamp(a, 0)
    phase1(a)
    phase2(a, force_slow)
    phase3(a)
    phase45(a)
    if STAMPS:
        a('s_waitcnt vmcnt(0)')
        stamp(a, 31)
        stamp_flush(a)
    if not OPT.get('noend'): a('s_waitcnt vmcnt(0)')
    a.label(end)
    a('s_endpgm')
    text += G.kernel_wrap(n, a.text())
    text += '.section .rodata,"a"\n.p2align 6\n' + G.desc(n)
    return text


if __name__ == '__main__':
    out = sys.argv[1] if len(sys.argv) > 1 else 'cdna_kernels/%s.s' % NAME
    for t in sys.argv[2:]:
        if '=' in t:
            k, v = t.split('='); OPT[k] = int(v)
        else:
            OPT[t] = 1
    STAMPS = 'stamps' in OPT
    t = gen_fused(force_slow='slow' in OPT)
    open(out, 'w').write(t)
    print('wrote', out, len(t))
```
